```python
import torch

def _softmax(x, axis=-1):
    return torch.softmax(x, dim=axis)
def _gelu(x):
    return torch.nn.functional.gelu(x, approximate="tanh")
def _silu(x):
    return torch.nn.functional.silu(x)
def _sigmoid(x):
    return torch.sigmoid(x)
def _layernorm(x, axis=-1, eps=1e-5):
    m = x.mean(dim=axis, keepdim=True)
    v = x.var(dim=axis, keepdim=True, unbiased=False)
    return (x - m) / torch.sqrt(v + eps)
def _scatter_add(tgt, idx, src, axis=0):
    return tgt.clone().index_add_(axis, idx, src)
def _segment_sum(src, seg, n):
    out = torch.zeros((n,) + src.shape[1:], dtype=src.dtype)
    return out.index_add_(0, seg, src)
def _pad(x, pw):
    flat = tuple(v for pair in reversed(pw) for v in pair)
    return torch.nn.functional.pad(x, flat)

kernel_name = 'interleave_layers__sliding_block_cached__geglu_ffn__decode'

def setup_inputs():

    _w = (lambda a: (lambda t: t.to(torch.bfloat16) if t.is_floating_point() else t)(torch.as_tensor(a)))
    def _A_setup():
        B, Sq, D = 4, 1, 512
        Hq, Hkv, Sk, Dh = 32, 32, 4096, 128
        assert Hq % Hkv == 0, (Hq, Hkv)
        return {
            "x": _w((lambda *s: torch.randn(*s, dtype=torch.bfloat16) * 0.05)(B, Sq, D)),
            "k_cache": _w((lambda *s: torch.randn(*s, dtype=torch.bfloat16) * 1.6)(B, Hkv, Sk, Dh)),
            "v_cache": _w((lambda *s: torch.randn(*s, dtype=torch.bfloat16) * 1.6)(B, Hkv, Sk, Dh)),
            "wq": _w((lambda *s: torch.randn(*s, dtype=torch.bfloat16) * 1.6)(D, Hq * Dh) * (D ** -0.5)),
            "wo": _w((lambda *s: torch.randn(*s, dtype=torch.bfloat16) * 1.6)(Hq * Dh, D) * ((Hq * Dh) ** -0.5)),
        }
    _A_in = _A_setup()

    def _B_setup():
        B, S, D, F = 4, 1, 512, 1376
        return {
            "x": _w((lambda *s: torch.randn(*s, dtype=torch.bfloat16) * 0.05)(B, S, D)),
            "w_gate": _w((lambda *s: torch.randn(*s, dtype=torch.bfloat16) * 0.05)(D, F)),
            "w_up": _w((lambda *s: torch.randn(*s, dtype=torch.bfloat16) * 0.05)(D, F)),
            "w_down": _w((lambda *s: torch.randn(*s, dtype=torch.bfloat16) * 0.05)(F, D)),
        }
    _B_in = _B_setup()

    return {
        "A_x": _A_in["x"],
        "A_k_cache": _A_in["k_cache"],
        "A_v_cache": _A_in["v_cache"],
        "A_wq": _A_in["wq"],
        "A_wo": _A_in["wo"],
        "B_x": _B_in["x"],
        "B_w_gate": _B_in["w_gate"],
        "B_w_up": _B_in["w_up"],
        "B_w_down": _B_in["w_down"],
    }

def reference(A_x, A_k_cache, A_v_cache, A_wq, A_wo, B_x, B_w_gate, B_w_up, B_w_down):
    def _A_ref(x, k_cache, v_cache, wq, wo):
        B, Sq, D = x.shape
        Hq, Dh = 32, 128
        Hkv, Sk = k_cache.shape[1], k_cache.shape[2]
        W = min(4096, max(256, Sk // 4))
        rep = Hq // Hkv
        q = (lambda x, *d: x.permute(*d))((x @ wq).reshape(B, Sq, Hq, Dh), 0, 2, 1, 3)
        k = (lambda x, n, axis: torch.repeat_interleave(x, n, dim=axis))(k_cache[:, :, Sk - W:, :], rep, axis=1)
        v = (lambda x, n, axis: torch.repeat_interleave(x, n, dim=axis))(v_cache[:, :, Sk - W:, :], rep, axis=1)
        scores = torch.einsum("bhqd,bhkd->bhqk", q, k) * (Dh ** -0.5)
        p = _softmax(scores, axis=-1)
        o = torch.einsum("bhqk,bhkd->bhqd", p, v)
        return (lambda x, *d: x.permute(*d))(o, 0, 2, 1, 3).reshape(B, Sq, Hq * Dh) @ wo

    def _B_ref(x, w_gate, w_up, w_down):
        return (_gelu(x @ w_gate) * (x @ w_up)) @ w_down

    x = A_x
    x = x + _A_ref(_layernorm(x, axis=-1), A_k_cache, A_v_cache, A_wq, A_wo)
    x = x + _B_ref(_layernorm(x, axis=-1), B_w_gate, B_w_up, B_w_down)
    x = x + _A_ref(_layernorm(x, axis=-1), A_k_cache, A_v_cache, A_wq, A_wo)
    x = x + _B_ref(_layernorm(x, axis=-1), B_w_gate, B_w_up, B_w_down)
    return x
```

```python
import re
NAME = "interleave_layers__sliding_block_cached__geglu_ffn__decode"

TRANS = ("v_exp_f32", "v_log_f32", "v_rcp_f32", "v_rsq_f32", "v_sqrt_f32", "v_sin_f32", "v_cos_f32")

def regs_of(op):
    op = op.strip()
    op = op.lstrip("-")
    m = re.fullmatch(r"abs\((.*)\)", op)
    if m: op = m.group(1)
    op = op.strip("|")
    m = re.fullmatch(r"([vas])\[(\d+):(\d+)\]", op)
    if m: return {f"{m.group(1)}{k}" for k in range(int(m.group(2)), int(m.group(3)) + 1)}
    m = re.fullmatch(r"([vas])(\d+)", op)
    if m: return {op}
    if op in ("vcc", "vcc_lo", "vcc_hi"): return {"vcc"}
    if op in ("exec", "exec_lo", "exec_hi"): return {"exec"}
    if op == "m0": return {"m0"}
    return set()

class Ins:
    def __init__(self, text):
        self.text = text
        t = text.split(";")[0].strip()
        parts = t.split(None, 1)
        self.mn = parts[0]
        rest = parts[1] if len(parts) > 1 else ""
        ops, depth, cur = [], 0, ""
        for ch in rest:
            if ch in "[(": depth += 1
            if ch in "])": depth -= 1
            if ch == "," and depth == 0: ops.append(cur.strip()); cur = ""
            else: cur += ch
        if cur.strip(): ops.append(cur.strip())
        mods = ""
        if ops:
            last = ops[-1].split(None, 1)
            ops[-1] = last[0]
            mods = last[1] if len(last) > 1 else ""
        self.ops, self.mods = ops, mods
        mn = self.mn
        self.mfma = mn.startswith("v_mfma")
        self.valu = mn.startswith("v_") and not self.mfma
        self.trans = any(mn.startswith(x) for x in TRANS)
        self.dpp = "_dpp" in mn or "quad_perm" in mods or "row_" in mods
        self.perml = mn.startswith("v_permlane")
        self.rdlane = mn.startswith("v_readlane") or mn.startswith("v_readfirstlane")
        self.ds = mn.startswith("ds_")
        self.vmem = mn.startswith("buffer_") or mn.startswith("global_")
        self.salu = mn.startswith("s_")
        self.ldsdma = self.vmem and re.search(r"\blds\b", mods) is not None
        R = [regs_of(o) for o in ops]
        self.w, self.r = set(), set()
        self.srcC = set(); self.srcAB = set(); self.stdata = set()
        if self.mfma:
            self.w = R[0]; self.srcAB = R[1] | R[2]; self.srcC = R[3]; self.r = self.srcAB | self.srcC
        elif self.valu:
            if mn.startswith("v_swap") or self.perml:
                self.w = R[0] | R[1]; self.r = R[0] | R[1]
            elif mn.startswith("v_nop"):
                pass
            else:
                self.w = set(R[0]); self.r = set().union(*R[1:]) if len(R) > 1 else set()
                if mn.startswith(("v_fmac", "v_dot2c", "v_pk_fmac")): self.r |= R[0]
                if self.dpp: self.r |= R[0]
                if "_co_" in mn: self.w |= R[1]; self.r = set().union(*R[2:])
                if mn.startswith("v_cmpx"): self.w |= {"exec"}
        elif self.ds:
            if mn.startswith("ds_read") or "_rtn" in mn or "permute" in mn or "swizzle" in mn:
                self.w = R[0]; self.r = set().union(*R[1:])
            else:
                self.r = set().union(*R)
        elif self.vmem:
            if "load" in mn and not self.ldsdma:
                self.w = R[0]; self.r = set().union(*R[1:])
            elif "atomic" in mn and "sc0" in mods and mn.startswith("buffer"):
                self.w = R[0]; self.r = set().union(*R)
            else:
                self.r = set().union(*R) if R else set()
                if "store" in mn and ("x3" in mn or "x4" in mn):
                    self.stdata = R[0] if mn.startswith("buffer") else R[1]
            if self.ldsdma: self.r |= {"m0"}
        elif self.salu:
            if R and not mn.startswith(("s_cmp", "s_cbranch", "s_branch", "s_waitcnt", "s_nop", "s_barrier", "s_sleep", "s_setprio", "s_endpgm", "s_bitcmp", "s_setpc")):
                self.w = R[0]; self.r = set().union(*R[1:]) if len(R) > 1 else set()
            else:
                self.r = set().union(*R) if R else set()
        self.states = 1
        if mn == "s_nop": self.states = int(ops[0], 0) + 1

def isv(S): return {x for x in S if x[0] in "va" and x not in ("vcc",)}
def iss(S): return {x for x in S if x[0] == "s" or x == "vcc"}

def need(p, c):
    n = 0
    if p.valu:
        pv = isv(p.w); ps = iss(p.w)
        if c.valu and c.dpp and pv & c.r: n = max(n, 2)
        if c.perml and pv & c.r: n = max(n, 2)
        if c.rdlane and pv & c.r: n = max(n, 1)
        if c.mfma and pv & c.r: n = max(n, 2)
        if p.trans and (c.valu and not c.trans or c.mfma) and pv & c.r: n = max(n, 1)
        if c.valu and ps & c.r: n = max(n, 2)
        if c.valu and "vcc" in ps and c.mn.startswith("v_cndmask") and len(c.ops) == 4 and c.ops[3] == "vcc": n = max(n, 2)
        if c.vmem and ps & c.r: n = max(n, 5)
        if c.rdlane and ps & c.r: n = max(n, 4)
        if "exec" in p.w and (c.dpp or c.mfma or c.rdlane or c.perml): n = max(n, 5)
        if c.salu and ps & c.r: n = max(n, 1)
    if p.mfma:
        if c.mfma:
            if p.w & c.srcAB: n = max(n, 8)
            if p.w & c.srcC and p.w != c.srcC: n = max(n, 6)
            if p.w & c.w and p.w != c.srcC: n = max(n, 6)
        elif c.valu:
            if p.w & (c.r | c.w): n = max(n, 8)
            if p.srcC & c.w: n = max(n, 3)
        elif c.ds or c.vmem:
            if p.w & (c.r | c.w): n = max(n, 8)
    if p.stdata and (c.valu or c.mfma) and p.stdata & c.w: n = max(n, 2)
    if p.stdata and (c.ds or c.vmem) and p.stdata & c.w: n = max(n, 1)
    if p.salu and "m0" in p.w and c.ldsdma: n = max(n, 1)
    return n

class Asm:
    def __init__(self, auto=True):
        self.l = []; self.hist = []; self.auto = auto; self.nops = 0
    def raw(self, s): self.l.append(s)
    def __call__(self, s):
        for x in s.split("\n"):
            x = x.strip()
            if not x: continue
            if x.startswith(";"): self.l.append("    " + x); continue
            if x.endswith(":"): self.l.append(x); continue
            if x.startswith("."): self.l.append("    " + x); continue
            ins = Ins(x)
            if self.auto:
                dist, pad = 0, 0
                for p in reversed(self.hist):
                    k = need(p, ins) - dist
                    pad = max(pad, k)
                    dist += p.states
                    if dist >= 12: break
                if pad > 0:
                    nop = Ins(f"s_nop {pad-1}")
                    self.l.append("    " + nop.text); self.hist.append(nop); self.nops += pad
            self.l.append("    " + x); self.hist.append(ins)
            self.hist = self.hist[-16:]
    def label(self, n): self.l.append(n + ":")
    def text(self): return "\n".join(self.l) + "\n"

HEADER_COMMENT = open("cdna_kernels/" + NAME + ".s.ref").read().split("; Override launch")[0]

def wrap(body, grid, block, lds, nvgpr=512, accum=256, nsgpr=102, comment=""):
    return (HEADER_COMMENT +
f"""; @launch grid=({grid},1,1) block=({block},1,1) lds={lds}
{comment}.amdgcn_target "amdgcn-amd-amdhsa--gfx950"
.text
.globl {NAME}_kernel
.p2align 8
.type {NAME}_kernel,@function
{NAME}_kernel:
{body}
.section .rodata,"a"
.p2align 6
.amdhsa_kernel {NAME}_kernel
  .amdhsa_next_free_vgpr {nvgpr}
  .amdhsa_next_free_sgpr {nsgpr}
  .amdhsa_accum_offset {accum}
  .amdhsa_group_segment_fixed_size 0
  .amdhsa_kernarg_size 96
  .amdhsa_user_sgpr_count 2
  .amdhsa_user_sgpr_kernarg_segment_ptr 1
  .amdhsa_system_sgpr_workgroup_id_x 1
  .amdhsa_float_denorm_mode_32 3
  .amdhsa_float_denorm_mode_16_64 3
.end_amdhsa_kernel
""")
```

```python
import sys, math
from asmlib import *

AST = 11648
OFF_Q = [0, 2688]; QSTAT = 2560
OFF_G = [5376, 7424]; GCS = 1536; GSTAT = 1920
OFF_O = [9472, 9856]; OLSE = 256
OFF_H = [10240, 10368]
OFF_Y = [10496, 11008]; OFF_Z = [10752, 11264]
WSN = 256 * AST
OOB = 0x7FFF0000
LWQ = 0; LWO = 16384; LGU = 32768; LWD = 49152
LXS = 55296; XSS = 144
LQS = 56064
LZERO = 56320
LMODE = 56336
LDUM = 56352
LOW = 57856
LML = 61952
LYW = 62080
LDS_SIZE = 65536
C2 = math.log2(math.e) / math.sqrt(128.0)
DPP = "row_mask:0xf bank_mask:0xf"

def f32(x):
    import struct
    return "0x%08x" % struct.unpack("<I", struct.pack("<f", x))[0]

sK, sV, sWq, sWo, sGU, sWd, sWS, sWSP, sWSS, sX, sOut, sDbg = [f"s[{28+4*k}:{31+4*k}]" for k in range(12)]
def sr(srd, k): return "s%d" % (int(srd[2:srd.index(":")]) + k)
sG, sI, sHL, sJ, sW, sB, sH, sAr, sT0, sT1, sT2, sT3, sCnt, sOff, sOff2, sOff3, sNT, sTB, sXcc, sFin = [f"s{76+k}" for k in range(20)]
vL, vN, vGK = "v1", "v2", "v3"
W = lambda k: f"v{4+k}"
def WR(k, n): return f"v[{4+k}:{4+k+n-1}]"
P = ["v%d" % k for k in list(range(48, 64)) + list(range(128, 144))]
(vQG, vQS, vOG, vLG, vXG, vA0, vA1, vA2, vA3, vA4, vQP, vSP, vOP, vGP, vGCP, vRES,
 vXSW, vXSR, vQSW, vQR0, vQR1, vQR2, vQR3, vOWW, vOWR, vMLR, vYWW, vL4, vCSQ, vPM, vTR32, vST) = P
def vV(t, c): return 64 + 16 * t + 4 * c
def aK(t, c): return f"a[{16*t+4*c}:{16*t+4*c+3}]"
aWQ, aWO, aGU, aWD = 64, 72, 80, 88
def AR(b, n=4): return f"a[{b}:{b+n-1}]"
def VR(b, n=4): return f"v[{b}:{b+n-1}]"

def gen(stamps=False, limit=4000000):
    a = Asm()
    nst = [0]
    def stamp(name):
        if not stamps: return
        k = nst[0]; nst[0] += 1
        a(f"s_memrealtime s[4:5]\ns_waitcnt lgkmcnt(0)\nv_writelane_b32 {vST}, s4, {k}")
    uid = [0]
    def lab(p):
        uid[0] += 1; return f"L_{p}{uid[0]}"
    def poll(loads, regs, pre=""):
        L = lab("poll")
        a.label(L)
        a(loads)
        a(f"s_add_u32 {sCnt}, {sCnt}, 1\ns_cmp_gt_u32 {sCnt}, {limit}\ns_cbranch_scc1 L_end")
        a("s_waitcnt vmcnt(0)")
        t = W(43); r = list(regs)
        if len(r) == 1: cur = r[0]
        else:
            if len(r) == 2: a(f"v_max_u32 {t}, {r[0]}, {r[1]}"); r = []
            else: a(f"v_max3_u32 {t}, {r[0]}, {r[1]}, {r[2]}"); r = r[3:]
            while len(r) >= 2: a(f"v_max3_u32 {t}, {t}, {r[0]}, {r[1]}"); r = r[2:]
            if r: a(f"v_max_u32 {t}, {t}, {r[0]}")
            cur = t
        a(f"v_cmp_eq_u32 vcc, -1, {cur}\ns_cbranch_vccnz {L}")
    def lstore(op, data, vaddr, soff, extra=""):
        a(f"{op} {data}, {vaddr}, {sWSP}, {soff} offen {extra}")
        a(f"{op} {data}, {vaddr}, {sWSS}, {soff} offen {extra} sc1")
    def red8(r0, r1, r2, r3):
        a(f"v_permlane32_swap_b32 {r0}, {r1}\nv_permlane32_swap_b32 {r2}, {r3}")
        a(f"v_add_f32 {r0}, {r0}, {r1}\nv_add_f32 {r2}, {r2}, {r3}")
        a(f"v_permlane16_swap_b32 {r0}, {r2}\nv_add_f32 {r0}, {r0}, {r2}")
        a(f"v_add_f32_dpp {r0}, {r0}, {r0} row_ror:8 {DPP}")
    def lo8(op, regs):
        for m in ("quad_perm:[1,0,3,2]", "quad_perm:[2,3,0,1]", "row_half_mirror"):
            for r in regs: a(f"{op}_dpp {r}, {r}, {r} {m} {DPP}")
    def ln_stats(vss, vsum, vmu, vrs):
        a(f"v_mul_f32 {vmu}, {f32(1/512)}, {vsum}\nv_mul_f32 {vrs}, {f32(1/512)}, {vss}")
        a(f"v_fma_f32 {vrs}, -{vmu}, {vmu}, {vrs}\nv_max_f32 {vrs}, 0, {vrs}\nv_add_f32 {vrs}, {f32(1e-5)}, {vrs}\nv_rsq_f32 {vrs}, {vrs}")
    def trread(dst, kind, vbase, off, qstride):
        a(f"ds_read_b64_tr_b16 {kind}[{dst}:{dst+1}], {vbase} offset:{off}")
        a(f"ds_read_b64_tr_b16 {kind}[{dst+2}:{dst+3}], {vbase} offset:{off+qstride}")

    a("s_cmp_ge_u32 s2, 256\ns_cbranch_scc1 L_end")
    a("s_load_dwordx16 s[4:19], s[0:1], 0\ns_load_dwordx8 s[20:27], s[0:1], 64")
    if stamps: a(f"s_memrealtime s[96:97]")
    a(f"v_lshrrev_b32 v4, 6, v0\nv_and_b32 {vL}, 63, v0\nv_readfirstlane_b32 {sW}, v4")
    a(f"v_and_b32 {vN}, 15, v0\nv_lshrrev_b32 {vGK}, 4, {vL}")
    a(f"s_and_b32 {sG}, s2, 7\ns_lshr_b32 {sI}, s2, 3\ns_and_b32 {sHL}, {sI}, 3\ns_lshr_b32 {sJ}, {sI}, 2")
    a(f"s_and_b32 {sB}, {sJ}, 3\ns_lshl_b32 {sH}, {sG}, 2\ns_add_u32 {sH}, {sH}, {sHL}")
    a(f"s_lshl_b32 {sT0}, {sB}, 5\ns_add_u32 {sT0}, {sT0}, {sH}\ns_lshl_b32 {sT0}, {sT0}, 20\ns_add_u32 {sT0}, {sT0}, 0xC0000")
    a(f"s_lshr_b32 {sT1}, {sJ}, 2\ns_lshl_b32 {sT1}, {sT1}, 17\ns_add_u32 {sT0}, {sT0}, {sT1}")
    a(f"s_lshr_b32 {sT1}, {sW}, 2\ns_lshl_b32 {sT1}, {sT1}, 16\ns_add_u32 {sT0}, {sT0}, {sT1}")
    a(f"s_and_b32 {sT1}, {sW}, 3\ns_lshl_b32 {sT1}, {sT1}, 12\ns_add_u32 {sT0}, {sT0}, {sT1}")
    vKO, vVO, vWQO = W(40), W(41), W(42)
    a(f"v_lshrrev_b32 v4, 2, {vN}\nv_lshlrev_b32 v4, 8, v4\nv_lshl_add_u32 v4, {vGK}, 6, v4\nv_and_b32 v5, 3, {vN}\nv_lshl_add_u32 {vKO}, v5, 4, v4")
    a(f"v_lshlrev_b32 {vVO}, 4, {vL}")
    a(f"v_lshlrev_b32 v4, 13, {vGK}\nv_lshl_add_u32 {vWQO}, {vN}, 4, v4")
    a(f"s_lshl_b32 {sT1}, {sJ}, 3\ns_add_u32 {sT1}, {sT1}, {sW}\ns_lshl_b32 {sT1}, {sT1}, 16\ns_lshl_b32 {sT2}, {sH}, 8\ns_add_u32 {sT1}, {sT1}, {sT2}")
    a(f"s_lshl_b32 {sT2}, {sW}, 11\ns_mov_b32 m0, {sT2}")
    for srd in (sK, sV, sWq, sWo, sGU, sWd, sWS, sWSP, sWSS, sX, sOut, sDbg): a(f"s_mov_b32 {sr(srd,3)}, 0x20000")
    a(f"s_mov_b32 {sr(sK,2)}, 0xD000\ns_mov_b32 {sr(sV,2)}, 0xD000\ns_mov_b32 {sr(sWq,2)}, 0x400000")
    a("s_waitcnt lgkmcnt(0)")
    a(f"s_mov_b32 {sr(sWq,0)}, s10\ns_mov_b32 {sr(sWq,1)}, s11")
    a(f"s_add_u32 {sr(sK,0)}, s6, {sT0}\ns_addc_u32 {sr(sK,1)}, s7, 0")
    a(f"buffer_load_dwordx4 {vWQO}, {sWq}, {sT1} offen nt lds")
    a(f"s_add_u32 m0, {sT2}, 1024\ns_add_u32 {sT1}, {sT1}, 32768")
    a(f"buffer_load_dwordx4 {vWQO}, {sWq}, {sT1} offen nt lds")
    a(f"s_add_u32 {sr(sV,0)}, s8, {sT0}\ns_addc_u32 {sr(sV,1)}, s9, 0")
    def ldK(t):
        a(f"s_mov_b32 {sT3}, {t*16384}")
        for c in range(4): a(f"buffer_load_dwordx4 {aK(t,c)}, {vKO}, {sK}, {sT3} offen offset:{c*1024} nt")
    def ldV(t):
        a(f"s_mov_b32 {sT3}, {t*16384}")
        for c in range(4): a(f"buffer_load_dwordx4 {VR(vV(t,c))}, {vVO}, {sV}, {sT3} offen offset:{c*1024} nt")
    a(f"s_cmp_ge_u32 {sW}, 4\ns_cbranch_scc1 L_late0")
    ldK(0); ldK(1)
    a.label("L_late0")
    a(f"s_mov_b32 {sr(sWo,0)}, s12\ns_mov_b32 {sr(sWo,1)}, s13\ns_mov_b32 {sr(sWo,2)}, 0x400000")
    a(f"s_bitcmp1_b32 {sW}, 0\ns_cselect_b32 {sr(sGU,0)}, s18, s16\ns_cselect_b32 {sr(sGU,1)}, s19, s17\ns_mov_b32 {sr(sGU,2)}, 1409024")
    a(f"s_mul_i32 {sTB}, {sG}, 11\ns_cmp_eq_u32 {sG}, 7\ns_cselect_b32 {sTB}, 76, {sTB}\ns_cmp_lt_u32 {sG}, 6\ns_cselect_b32 {sNT}, 11, 10")
    a(f"s_add_u32 {sT0}, {sTB}, {sNT}\ns_lshl_b32 {sr(sWd,2)}, {sT0}, 14\ns_mov_b32 {sr(sWd,0)}, s20\ns_mov_b32 {sr(sWd,1)}, s21")
    for srd in (sWS, sWSP, sWSS): a(f"s_mov_b32 {sr(srd,0)}, s26\ns_mov_b32 {sr(srd,1)}, s27")
    a(f"s_mov_b32 {sr(sWS,2)}, {WSN}\ns_mov_b32 {sr(sWSP,2)}, 0\ns_mov_b32 {sr(sWSS,2)}, 0")
    a(f"s_mov_b32 {sr(sX,0)}, s4\ns_mov_b32 {sr(sX,1)}, s5\ns_mov_b32 {sr(sX,2)}, 4096")
    a(f"s_mov_b32 {sr(sOut,0)}, s22\ns_mov_b32 {sr(sOut,1)}, s23\ns_mov_b32 {sr(sOut,2)}, 4096")
    a(f"s_mov_b32 {sr(sDbg,0)}, s24\ns_mov_b32 {sr(sDbg,1)}, s25\ns_mov_b32 {sr(sDbg,2)}, 256")
    if stamps: a("s_mov_b32 s98, s26\ns_mov_b32 s99, s27")
    a(f"s_mul_i32 {sAr}, s2, {AST}\ns_mov_b32 {sCnt}, 0")
    a(f"s_getreg_b32 {sXcc}, hwreg(HW_REG_XCC_ID)\ns_and_b32 {sXcc}, {sXcc}, 15\ns_or_b32 {sXcc}, {sXcc}, 0x80")
    a(f"s_xor_b32 {sFin}, {sG}, {sJ}\ns_or_b32 {sFin}, {sFin}, {sHL}")
    if stamps: a(f"v_mov_b32 {vST}, 0\nv_writelane_b32 {vST}, s96, 0"); nst[0] = 1
    t0, t1, t2, t3, vE, vHi3, vLo3 = W(0), W(1), W(2), W(3), W(4), W(5), W(6)
    sAST8, sAST32 = sT2, sT3
    a(f"s_mov_b32 {sAST8}, {8*AST}\ns_mov_b32 {sAST32}, {32*AST}")
    a(f"v_lshrrev_b32 {vHi3}, 3, {vL}\nv_and_b32 {vLo3}, 7, {vL}")
    a(f"v_lshrrev_b32 {t0}, 1, {vGK}\nv_and_b32 {t1}, 1, {vGK}\nv_lshl_add_u32 {vE}, {t1}, 1, {t0}")
    a(f"v_lshlrev_b32 {vL4}, 2, {vL}")
    a(f"s_and_b32 {sT0}, s2, 31\ns_mul_i32 {sT0}, {sT0}, {AST}")
    a(f"v_mul_lo_u32 {t0}, {vHi3}, {sAST32}\nv_lshl_add_u32 {t0}, {vLo3}, 4, {t0}")
    a(f"s_lshl_b32 {sT1}, {sW}, 7\ns_add_u32 {sT1}, {sT1}, {sT0}\nv_add_u32 {vQG}, {sT1}, {t0}")
    a(f"v_mul_lo_u32 {t0}, {vLo3}, {sAST32}\nv_add_u32 {vQS}, {sT0}, {t0}")
    a(f"v_bfe_u32 {t0}, {vN}, 1, 2\nv_and_b32 {t1}, 1, {vN}\nv_lshl_add_u32 {t0}, {t1}, 2, {t0}\nv_mul_lo_u32 {t0}, {t0}, {sAST32}")
    a(f"s_lshr_b32 {sT0}, {sW}, 1\ns_lshl_b32 {sT0}, {sT0}, 3\ns_add_u32 {sT0}, {sT0}, {sG}\ns_mul_i32 {sT0}, {sT0}, {AST}")
    a(f"v_add_u32 {vLG}, {sT0}, {t0}")
    a(f"v_lshrrev_b32 {t1}, 3, {vN}\nv_lshlrev_b32 {t1}, 6, {t1}\nv_lshl_add_u32 {t1}, {vGK}, 4, {t1}")
    a(f"s_and_b32 {sT1}, {sW}, 1\ns_lshl_b32 {sT1}, {sT1}, 7\nv_add3_u32 {vOG}, {vLG}, {t1}, {sT1}")
    a(f"s_lshl_b32 {sT0}, {sJ}, 2\ns_lshr_b32 {sOff}, {sW}, 1\ns_add_u32 {sT0}, {sT0}, {sOff}\ns_mul_i32 {sT0}, {sT0}, {8*AST}\ns_add_u32 {sT0}, {sT0}, {sT1}")
    a(f"s_mov_b32 {sOff}, {AST}\nv_mul_lo_u32 {t0}, {vHi3}, {sOff}\nv_lshl_add_u32 {t0}, {vLo3}, 4, {t0}\nv_add_u32 {vXG}, {sT0}, {t0}")
    a(f"v_mov_b32 {t3}, {OOB}")
    a(f"v_lshlrev_b32 {t0}, 9, {vN}\nv_lshl_add_u32 {t0}, {vGK}, 4, {t0}\nv_cmp_gt_u32 vcc, 5, {vN}\nv_cndmask_b32 {vQP}, {t3}, {t0}, vcc")
    a(f"v_lshlrev_b32 {t0}, 4, {vL}\nv_cmp_gt_u32 vcc, 5, {vL}\nv_cndmask_b32 {vSP}, {t3}, {t0}, vcc")
    a(f"v_cmp_gt_u32 vcc, 16, {vL}\nv_cndmask_b32 {vGP}, {t3}, {t0}, vcc")
    a(f"v_lshlrev_b32 {t0}, 2, {vN}\nv_cmp_eq_u32 vcc, 1, {vGK}\nv_cndmask_b32 {vGCP}, {t3}, {t0}, vcc")
    a(f"v_lshlrev_b32 {t0}, 4, {vN}\nv_lshl_add_u32 {vOP}, {vGK}, 2, {t0}")
    a(f"v_lshrrev_b32 {t0}, 1, {vLo3}\nv_and_b32 {t1}, 1, {vL}\nv_lshl_add_u32 {t1}, {t1}, 2, {vE}\ns_lshl_b32 {sT0}, {sW}, 3\nv_add_u32 {t1}, {sT0}, {t1}")
    a(f"v_mul_u32_u24 {t2}, {XSS}, {t0}\nv_lshl_add_u32 {t2}, {t1}, 1, {t2}\nv_add_u32 {vXSW}, {LXS}, {t2}")
    vXO = W(39)
    a(f"v_lshlrev_b32 {t0}, 10, {t0}\nv_lshl_add_u32 {t0}, {t1}, 1, {t0}\ns_lshl_b32 {sT0}, {sJ}, 7\nv_add_u32 {vXO}, {sT0}, {t0}")
    a(f"buffer_load_ushort {vRES}, {vXO}, {sX}, 0 offen")
    a(f"v_mov_b32 v0, {vXO}")
    a(f"v_min_u32 {t0}, 4, {vN}\nv_mul_u32_u24 {t0}, {XSS}, {t0}\nv_lshl_add_u32 {t0}, {vGK}, 4, {t0}\nv_add_u32 {vXSR}, {LXS}, {t0}")
    a(f"v_lshl_add_u32 {t0}, {vLo3}, 2, {vE}\ns_lshl_b32 {sT0}, {sW}, 6\ns_add_u32 {sT0}, {sT0}, {LQS}\nv_lshl_add_u32 {vQSW}, {t0}, 1, {sT0}")
    a(f"v_and_b32 {t0}, 3, {vN}\nv_lshlrev_b32 {t0}, 4, {t0}\nv_lshl_add_u32 {t0}, {vGK}, 6, {t0}\nv_add_u32 {t0}, {LQS}, {t0}\nv_mov_b32 {t1}, {LZERO}\nv_lshrrev_b32 {t2}, 2, {vN}")
    for c, r in enumerate((vQR0, vQR1, vQR2, vQR3)):
        a(f"v_cmp_eq_u32 vcc, {c}, {t2}\nv_cndmask_b32 {r}, {t1}, {t0}, vcc")
    a(f"s_lshl_b32 {sT0}, {sW}, 9\ns_add_u32 {sT0}, {sT0}, {LOW}\nv_lshl_add_u32 {t0}, {vN}, 3, {sT0}\nv_lshlrev_b32 {t1}, 3, {vN}\nv_add_u32 {t1}, {LDUM}, {t1}")
    a(f"v_cmp_gt_u32 vcc, 16, {vL}\nv_cndmask_b32 {vOWW}, {t1}, {t0}, vcc")
    a(f"v_lshlrev_b32 {t0}, 3, {vL}\nv_add_u32 {vOWR}, {LOW}, {t0}")
    a(f"v_lshlrev_b32 {t0}, 3, {vLo3}\nv_add_u32 {vMLR}, {LML}, {t0}")
    a(f"v_lshrrev_b32 {t0}, 1, {vGK}\nv_lshl_add_u32 {t0}, {t0}, 3, {vN}\nv_and_b32 {t1}, 1, {vGK}\nv_add_u32 {t0}, {t0}, {t1}")
    a(f"s_lshl_b32 {sT0}, {sW}, 8\ns_add_u32 {sT0}, {sT0}, {LYW}\nv_lshl_add_u32 {t2}, {t0}, 4, {sT0}")
    a(f"v_lshlrev_b32 {t1}, 4, {vL}\nv_add_u32 {t1}, {LDUM}, {t1}\nv_and_b32 {t0}, 9, {vN}\nv_cmp_eq_u32 vcc, 0, {t0}\nv_cndmask_b32 {vYWW}, {t1}, {t2}, vcc")
    a(f"v_and_b32 {t0}, 1, {vL}\nv_lshlrev_b32 {t0}, 4, {t0}\nv_mov_b32 {t1}, 0xffff\nv_lshlrev_b32 {vPM}, {t0}, {t1}")
    vTR256 = W(38)
    a(f"v_lshrrev_b32 {t0}, 2, {vN}\nv_lshl_add_u32 {t0}, {vGK}, 3, {t0}\nv_and_b32 {t1}, 3, {vN}\nv_lshlrev_b32 {t1}, 3, {t1}")
    a(f"v_lshl_add_u32 {vTR256}, {t0}, 8, {t1}\nv_lshl_add_u32 {vTR32}, {t0}, 5, {t1}")
    a(f"s_cmp_lg_u32 {sW}, 1\ns_cbranch_scc1 L_role0")
    a(f"s_mul_i32 {sT0}, {sG}, {AST}\nv_and_b32 {t1}, 3, {vN}\nv_lshl_add_u32 {t1}, {t1}, 4, {sT0}")
    a(f"v_mul_lo_u32 {t0}, {vGK}, {sAST8}\nv_add_u32 {vA0}, {t0}, {t1}")
    a(f"s_lshl_b32 {sT1}, {sNT}, 1\ns_sub_u32 {sT1}, {sT1}, 1\nv_add_u32 {t0}, 20, {vGK}\nv_min_u32 {t0}, {sT1}, {t0}\nv_mul_lo_u32 {t0}, {t0}, {sAST8}\nv_add_u32 {vA1}, {t0}, {t1}")
    a(f"v_lshrrev_b32 {t0}, 1, {vGK}\nv_lshlrev_b32 {t0}, 3, {t0}\nv_lshl_add_u32 {t0}, {vN}, 1, {t0}\nv_and_b32 {t1}, 1, {vGK}\nv_add_lshl_u32 {t0}, {t0}, {t1}, 4")
    a(f"v_cmp_gt_u32 vcc, 4, {vN}\nv_cndmask_b32 {vA2}, {t3}, {t0}, vcc\nv_mov_b32 {vA3}, 0\nv_mov_b32 {vA4}, 0")
    a("s_branch L_role1")
    a.label("L_role0")
    a(f"s_lshr_b32 {sT0}, {sI}, 1\ns_mul_i32 {sT1}, {sT0}, 43\ns_lshr_b32 {sT1}, {sT1}, 7\ns_min_u32 {sT1}, {sT1}, 3\ns_mul_i32 {sOff}, {sT1}, 3\ns_sub_u32 {sT0}, {sT0}, {sOff}")
    a(f"s_lshl_b32 {sT1}, {sT1}, 3\ns_add_u32 {sT1}, {sT1}, {sG}\ns_mul_i32 {sT1}, {sT1}, {AST}")
    a(f"s_and_b32 {sOff}, {sI}, 1\ns_lshl_b32 {sT0}, {sT0}, 2\ns_add_u32 {sT0}, {sT0}, {sOff}")
    a(f"v_mul_lo_u32 {t0}, {vHi3}, {sAST32}\nv_add_u32 {t0}, {sT1}, {t0}")
    a(f"s_lshl_b32 {sOff}, {sT0}, 7\nv_lshl_add_u32 {t1}, {vLo3}, 4, {sOff}\nv_add_u32 {vA0}, {t0}, {t1}")
    a(f"s_lshl_b32 {sOff}, {sT0}, 5\nv_lshl_add_u32 {t1}, {vLo3}, 2, {sOff}\nv_add_u32 {vA1}, {t0}, {t1}")
    a(f"v_mul_lo_u32 {t0}, {vLo3}, {sAST32}\nv_add_u32 {t0}, {sT1}, {t0}")
    a(f"v_mul_u32_u24 {t1}, 20, {vE}\nv_add_u32 {vA2}, {t0}, {t1}\nv_lshl_add_u32 {vA3}, {vE}, 2, {t0}")
    a(f"v_lshlrev_b32 {t0}, 1, {vLo3}\nv_lshl_add_u32 {t0}, {vE}, 4, {t0}\nv_and_b32 {t1}, 9, {vN}\nv_cmp_eq_u32 vcc, 0, {t1}\nv_cndmask_b32 {vA4}, {t3}, {t0}, vcc")
    a.label("L_role1")
    vR1K, vRGU = W(36), W(37)
    a(f"v_lshrrev_b32 {t0}, 1, {vL}\nv_and_b32 {t1}, 1, {vL}\nv_lshlrev_b32 {t1}, 4, {t1}\nv_lshl_add_u32 {vR1K}, {t0}, 10, {t1}")
    a(f"v_mul_u32_u24 {t0}, 2752, {t0}\nv_add_u32 {vRGU}, {t0}, {t1}")
    a(f"s_cmp_lg_u32 {sW}, 7\ns_cbranch_scc1 L_not7a")
    XB = 8
    a(f"v_min_u32 {t0}, 3, {vN}\nv_lshlrev_b32 {t0}, 10, {t0}\nv_lshl_add_u32 {t0}, {vGK}, 4, {t0}\ns_lshl_b32 {sT0}, {sJ}, 7")
    a(f"buffer_load_dwordx4 {WR(XB,4)}, {t0}, {sX}, {sT0} offen\nbuffer_load_dwordx4 {WR(XB+4,4)}, {t0}, {sX}, {sT0} offen offset:64")
    a(f"v_mov_b32 {W(16)}, -1\ns_add_u32 {sT0}, {sAr}, {OFF_O[0]}\ns_add_u32 {sT1}, {sAr}, {OFF_Y[0]}")
    a(f"buffer_store_dword {W(16)}, {vL4}, {sWS}, {sT0} offen sc1\nbuffer_store_dword {W(16)}, {vL4}, {sWS}, {sT0} offen offset:128 sc1")
    a(f"buffer_store_dword {W(16)}, {vL4}, {sWS}, {sT1} offen sc1")
    a(f"v_mov_b32 {t0}, 0x3f803f80\nv_add_u32 {t1}, {LXS+4*XSS}, {vL4}\nv_cmp_gt_u32 vcc, 32, {vL}\nv_mov_b32 {t2}, {LDUM}\nv_cndmask_b32 {t1}, {t2}, {t1}, vcc\nds_write_b32 {t1}, {t0}")
    a(f"v_mov_b32 {t0}, 0\nv_and_b32 {t1}, 12, {vL4}\nv_add_u32 {t1}, {LZERO}, {t1}\nds_write_b32 {t1}, {t0}")
    a.label("L_not7a")
    a(f"s_cmp_ge_u32 {sW}, 4\ns_cbranch_scc1 L_late1\ns_waitcnt vmcnt(9)\ns_branch L_barA")
    a.label("L_late1")
    a("s_waitcnt vmcnt(0) lgkmcnt(0)")
    a.label("L_barA")
    a("s_barrier")
    stamp("barA")
    a(f"s_cmp_lg_u32 {sW}, 7\ns_cbranch_scc1 L_not7b")
    a(f"v_mov_b32 {t0}, 0x3f803f80\nv_cmp_gt_u32 vcc, 4, {vN}")
    for k in range(8): a(f"v_cndmask_b32 {W(XB+k)}, {t0}, {W(XB+k)}, vcc")
    for tl in range(8):
        for c in range(2): trread(4 + 16 + 4 * c, "v", vTR256, LWQ + c * 8192 + tl * 32, 1024)
        a("s_waitcnt lgkmcnt(0)")
        d = 24 + 4 * (tl & 1)
        a(f"v_mfma_f32_16x16x32_bf16 {WR(d,4)}, {WR(16,4)}, {WR(XB,4)}, 0")
        a(f"v_mfma_f32_16x16x32_bf16 {WR(d,4)}, {WR(20,4)}, {WR(XB+4,4)}, {WR(d,4)}")
        a(f"buffer_store_dwordx4 {WR(d,4)}, {vQP}, {sWS}, {sAr} offen offset:{OFF_Q[0]+tl*64} sc1")
    a(f"v_mfma_f32_16x16x32_bf16 {WR(32,4)}, {WR(XB,4)}, {WR(XB,4)}, 0")
    a(f"v_mfma_f32_16x16x32_bf16 {WR(32,4)}, {WR(XB+4,4)}, {WR(XB+4,4)}, {WR(32,4)}")
    a(f"buffer_store_dwordx4 {WR(32,4)}, {vSP}, {sWS}, {sAr} offen offset:{OFF_Q[0]+QSTAT} sc1")
    a(f"s_lshl_b32 {sT0}, {sG}, 5\ns_add_u32 {sT0}, {sT0}, {sI}\nv_mov_b32 {t0}, {sXcc}\nv_mov_b32 {t1}, {OOB}\nv_cmp_eq_u32 vcc, 0, {vL}\nv_cndmask_b32 {t1}, {t1}, 0, vcc")
    a("s_waitcnt vmcnt(0)")
    a(f"buffer_store_byte {t0}, {t1}, {sDbg}, {sT0} offen sc1")
    a.label("L_not7b")
    a(f"s_cmp_ge_u32 {sW}, 6\ns_cbranch_scc1 L_nogu")
    a(f"s_mul_i32 {sT0}, {sHL}, 3\ns_add_u32 {sT0}, {sT0}, {sTB}\ns_lshr_b32 {sT1}, {sW}, 1\ns_add_u32 {sT0}, {sT0}, {sT1}\ns_lshl_b32 {sT0}, {sT0}, 5")
    a(f"s_mul_i32 {sT1}, {sJ}, {64*2752}\ns_add_u32 {sT0}, {sT0}, {sT1}")
    a(f"s_lshl_b32 {sT2}, {sW}, 11\ns_add_u32 m0, {sT2}, {LGU}")
    a(f"buffer_load_dwordx4 {vRGU}, {sGU}, {sT0} offen nt lds")
    a(f"s_add_u32 m0, {sT2}, {LGU+1024}\ns_add_u32 {sT0}, {sT0}, {32*2752}")
    a(f"buffer_load_dwordx4 {vRGU}, {sGU}, {sT0} offen nt lds")
    a(f"s_lshl_b32 {sT0}, {sTB}, 14\ns_lshl_b32 {sT1}, {sW}, 15\ns_add_u32 {sT0}, {sT0}, {sT1}\ns_lshl_b32 {sT1}, {sI}, 5\ns_add_u32 {sT0}, {sT0}, {sT1}")
    a(f"s_lshl_b32 {sT2}, {sW}, 10\ns_add_u32 m0, {sT2}, {LWD}")
    a(f"buffer_load_dwordx4 {vR1K}, {sWd}, {sT0} offen nt lds")
    a.label("L_nogu")
    a(f"s_cmp_lt_u32 {sW}, 4\ns_cbranch_scc1 L_early2")
    ldK(0); ldK(1)
    a.label("L_early2")
    ldK(2); ldK(3)
    for t in range(4): ldV(t)
    a(f"s_lshl_b32 {sT0}, {sG}, 19\ns_lshl_b32 {sT1}, {sW}, 16\ns_add_u32 {sT0}, {sT0}, {sT1}\ns_lshl_b32 {sT1}, {sI}, 5\ns_add_u32 {sT0}, {sT0}, {sT1}")
    a(f"s_lshl_b32 {sT2}, {sW}, 11\ns_add_u32 m0, {sT2}, {LWO}")
    a(f"buffer_load_dwordx4 {vR1K}, {sWo}, {sT0} offen nt lds")
    a(f"s_add_u32 m0, {sT2}, {LWO+1024}\ns_add_u32 {sT0}, {sT0}, 32768")
    a(f"buffer_load_dwordx4 {vR1K}, {sWo}, {sT0} offen nt lds")
    stamp("issued")
    a(f"s_lshl_b32 {sT0}, {sW}, 5\nv_add_u32 {t0}, {sT0}, {vTR256}")
    for c in range(2): trread(aWQ + 4 * c, "a", t0, LWQ + c * 8192, 1024)
    a(f"s_lshl_b32 {sT0}, {sW}, 11\nv_add_u32 {W(38)}, {sT0}, {vTR32}")
    vTRW = W(38)
    a(f"s_cmp_ge_u32 {sW}, 4\ns_cbranch_scc1 L_toC0")
    La = lab("arr")
    a.label(La)
    a(f"buffer_load_dword {W(0)}, {vL4}, {sDbg}, 0 offen sc1")
    a(f"s_add_u32 {sCnt}, {sCnt}, 1\ns_cmp_gt_u32 {sCnt}, {limit}\ns_cbranch_scc1 L_end")
    a(f"s_mov_b32 {sT0}, 0x80808080\ns_mul_i32 {sT1}, {sXcc}, 0x01010101\ns_waitcnt vmcnt(0)")
    a(f"v_and_b32 {W(1)}, {sT0}, {W(0)}\nv_cmp_ne_u32 vcc, {sT0}, {W(1)}\ns_cbranch_vccnz {La}")
    a(f"v_cmp_eq_u32 vcc, {sT1}, {W(0)}\ns_lshl_b32 {sT0}, {sG}, 3\ns_nop 1\ns_lshr_b64 s[4:5], vcc, {sT0}\ns_and_b32 s4, s4, 0xff\ns_cmp_eq_u32 s4, 0xff")
    a(f"s_cselect_b32 {sr(sWSP,2)}, {WSN}, 0\ns_cselect_b32 {sr(sWSS,2)}, 0, {WSN}")
    stamp("arrived")
    a(f"s_mov_b32 {sOff}, {OFF_Q[0]+4*512}\nbuffer_load_dwordx4 {WR(0,4)}, {vQG}, {sWS}, {sOff} offen sc1")
    a(f"s_cmp_lg_u32 {sW}, 0\ns_cbranch_scc1 L_noclr")
    a(f"v_mov_b32 {W(4)}, {sr(sWSP,2)}\nv_mov_b32 {W(5)}, {LMODE}\nds_write_b32 {W(5)}, {W(4)}")
    for k in range(4): a(f"v_mov_b32 {W(8+k)}, -1")
    a(f"v_lshlrev_b32 {W(6)}, 4, {vL}\nv_mov_b32 {W(7)}, {OOB}\nv_cmp_gt_u32 vcc, 40, {vL}\nv_cndmask_b32 {W(12)}, {W(7)}, {W(6)}, vcc\nv_cmp_gt_u32 vcc, 48, {vL}\nv_cndmask_b32 {W(13)}, {W(7)}, {W(6)}, vcc")
    for k in range(8):
        a(f"s_add_u32 {sT0}, {sAr}, {OFF_Q[1]+k*1024}")
        lstore("buffer_store_dwordx4", WR(8, 4), W(6) if k < 7 else W(12), sT0)
    a(f"s_add_u32 {sT0}, {sAr}, {OFF_Z[0]}\nbuffer_store_dwordx4 {WR(8,4)}, {W(13)}, {sWS}, {sT0} offen sc1")
    a.label("L_noclr")
    a("s_waitcnt vmcnt(0)")
    red8(W(0), W(1), W(2), W(3))
    a(f"v_mov_b32 {vCSQ}, {W(0)}")

    def q_gather(L):
        a(f"s_lshl_b32 {sOff}, {sB}, 9\ns_add_u32 {sOff}, {sOff}, {OFF_Q[L]}")
        a(f"s_mul_i32 {sOff2}, {sB}, 20\ns_add_u32 {sOff2}, {sOff2}, {OFF_Q[L]+QSTAT}")
        a(f"s_lshl_b32 {sOff3}, {sB}, 2\ns_add_u32 {sOff3}, {sOff3}, {OFF_Q[L]+QSTAT+64}")
        poll(f"buffer_load_dwordx4 {WR(0,4)}, {vQG}, {sWS}, {sOff} offen sc1\n"
             f"buffer_load_dword {W(4)}, {vQS}, {sWS}, {sOff2} offen sc1\n"
             f"buffer_load_dword {W(5)}, {vQS}, {sWS}, {sOff3} offen sc1", [W(k) for k in range(6)])
        lo8("v_add_f32", [W(4), W(5)])
        red8(W(0), W(1), W(2), W(3))
        ln_stats(W(4), W(5), W(6), W(7))
        a(f"v_fma_f32 {W(0)}, -{W(6)}, {vCSQ}, {W(0)}\nv_mul_f32 {W(7)}, {f32(C2)}, {W(7)}\nv_mul_f32 {W(0)}, {W(0)}, {W(7)}")
        a(f"v_cvt_pk_bf16_f32 {W(0)}, {W(0)}, {W(0)}\nds_write_b16 {vQSW}, {W(0)}")

    def attention(L):
        BQ, SD, S = 0, 16, 32
        for c, r in enumerate((vQR0, vQR1, vQR2, vQR3)): a(f"ds_read_b128 {WR(BQ+4*c,4)}, {r}")
        if L == 0:
            a(f"v_mov_b32 {W(36)}, {LMODE}\nds_read_b32 {W(36)}, {W(36)}")
            a("s_waitcnt vmcnt(18) lgkmcnt(0)")
            a(f"v_readfirstlane_b32 {sT0}, {W(36)}\ns_cmp_lg_u32 {sT0}, 0\ns_cselect_b32 {sr(sWSP,2)}, {WSN}, 0\ns_cselect_b32 {sr(sWSS,2)}, 0, {WSN}")
            a(f"v_lshlrev_b32 {vRES}, 16, {vRES}")
        else:
            a("s_waitcnt lgkmcnt(3)")
        def qk(t, c):
            if L == 1 and t == 0 and c > 0: a(f"s_waitcnt lgkmcnt({3-c})")
            a(f"v_mfma_f32_16x16x32_bf16 {WR(SD+4*t,4)}, {aK(t,c)}, {WR(BQ+4*c,4)}, {'0' if c == 0 else WR(SD+4*t,4)}")
        def dsum(t, r):
            q = f"quad_perm:[{r},{r},{r},{r}] {DPP}"
            if r == 0: a(f"v_mov_b32_dpp {W(S+t)}, {W(SD+4*t)} {q}")
            else: a(f"v_add_f32_dpp {W(S+t)}, {W(SD+4*t+r)}, {W(S+t)} {q}")
        for t in range(4):
            for c in range(4): qk(t, c)
        for r in range(4):
            for t in range(4): dsum(t, r)
        m, mt, l, lt = W(36), W(37), W(39), W(40)
        a(f"v_max3_f32 {m}, {W(S)}, {W(S+1)}, {W(S+2)}\nv_max_f32 {m}, {m}, {W(S+3)}")
        a(f"v_max_f32_dpp {m}, {m}, {m} row_ror:4 {DPP}\nv_max_f32_dpp {m}, {m}, {m} row_ror:8 {DPP}")
        a(f"v_mov_b32 {mt}, {m}\nv_permlane16_swap_b32 {m}, {mt}\nv_max_f32 {m}, {m}, {mt}")
        a(f"v_mov_b32 {mt}, {m}\nv_permlane32_swap_b32 {m}, {mt}\nv_max_f32 {m}, {m}, {mt}")
        for t in range(4): a(f"v_sub_f32 {W(S+t)}, {W(S+t)}, {m}")
        for t in range(4): a(f"v_exp_f32 {W(S+t)}, {W(S+t)}")
        a(f"v_add_f32 {l}, {W(S)}, {W(S+1)}\nv_add_f32 {lt}, {W(S+2)}, {W(S+3)}")
        for t in range(4): a(f"v_cvt_pk_bf16_f32 {W(S+t)}, {W(S+t)}, {W(S+t)}")
        a(f"v_add_f32 {l}, {l}, {lt}")
        for t in range(4):
            for c in range(4): a(f"v_and_b32_dpp {W(SD+4*t+c)}, {W(S+t)}, {vPM} row_newbcast:{4*c} {DPP}")
        a(f"v_add_f32_dpp {l}, {l}, {l} row_ror:4 {DPP}\nv_add_f32_dpp {l}, {l}, {l} row_ror:8 {DPP}")
        a(f"v_mov_b32 {lt}, {l}\nv_permlane16_swap_b32 {l}, {lt}\nv_add_f32 {l}, {l}, {lt}")
        a(f"v_mov_b32 {lt}, {l}\nv_permlane32_swap_b32 {l}, {lt}\nv_add_f32 {mt}, {l}, {lt}")
        a(f"s_lshl_b32 {sT0}, {sW}, 3\ns_add_u32 {sT0}, {sT0}, {LML}\nv_mov_b32 {lt}, {sT0}\nds_write_b64 {lt}, {WR(36,2)}")
        for t in range(4):
            if L == 0:
                a(f"s_waitcnt vmcnt({2+4*(3-t)})")
                for c in range(4):
                    for u in range(c + 1, 4): a(f"v_swap_b32 v{vV(t,c)+u}, v{vV(t,u)+c}")
            for u in range(4):
                a(f"v_mfma_f32_16x16x32_bf16 {WR(BQ+4*u,4)}, {WR(SD+4*t,4)}, {VR(vV(t,u))}, {'0' if t == 0 else WR(BQ+4*u,4)}")
        a(f"ds_write2_b64 {vOWW}, {WR(BQ,2)}, {WR(BQ+4,2)} offset0:0 offset1:16")
        a(f"ds_write2_b64 {vOWW}, {WR(BQ+8,2)}, {WR(BQ+12,2)} offset0:32 offset1:48")
        a("s_waitcnt lgkmcnt(0)\ns_barrier")
        stamp(f"barD{L}")
        Ls = lab("ocomb")
        a(f"s_cmp_lg_u32 {sW}, 0\ns_cbranch_scc1 {Ls}")
        a(f"ds_read_b64 {WR(16,2)}, {vMLR}")
        for k in range(4): a(f"ds_read2st64_b64 {WR(4*k,4)}, {vOWR} offset0:{2*k} offset1:{2*k+1}")
        a(f"s_add_u32 {sT0}, {sAr}, {OFF_O[L]}")
        a("s_waitcnt lgkmcnt(4)")
        M, F, FL = W(18), W(19), W(20)
        a(f"v_mov_b32 {M}, {W(16)}")
        lo8("v_max_f32", [M])
        a(f"v_sub_f32 {F}, {W(16)}, {M}\nv_exp_f32 {F}, {F}\nv_mul_f32 {FL}, {F}, {W(17)}")
        lo8("v_add_f32", [FL])
        a("s_waitcnt lgkmcnt(0)")
        for w in range(8):
            op = "v_mul_f32_dpp" if w == 0 else "v_fmac_f32_dpp"
            a(f"{op} {W(22)}, {F}, {W(2*w)} row_newbcast:{w} {DPP}\n{op} {W(23)}, {F}, {W(2*w+1)} row_newbcast:{w} {DPP}")
            if w == 0: a(f"v_rcp_f32 {W(21)}, {FL}")
            if w == 1: a(f"v_log_f32 {FL}, {FL}")
        a(f"v_mul_f32 {W(22)}, {W(22)}, {W(21)}\nv_mul_f32 {W(23)}, {W(23)}, {W(21)}\nv_add_f32 {M}, {M}, {FL}")
        a(f"v_cvt_pk_bf16_f32 {W(22)}, {W(22)}, {W(23)}\nv_min_u32 {W(22)}, -2, {W(22)}")
        lstore("buffer_store_dword", W(22), vOP, sT0)
        lstore("buffer_store_dword", M, vSP, sT0, f"offset:{OLSE}")
        a.label(Ls)

    def wo_stage(L):
        if L == 0:
            a("s_waitcnt vmcnt(0)")
            for c in range(2): trread(aWO + 4 * c, "a", vTRW, LWO + c * 1024, 128)
            for c in range(2): trread(aGU + 4 * c, "a", vTRW, LGU + c * 1024, 128)
            for c in range(6): trread(aWD + 4 * c, "a", vTR32, LWD + c * 1024, 128)
        a(f"s_mov_b32 {sOff}, {OFF_O[L]}")
        poll(f"buffer_load_dwordx4 {WR(0,4)}, {vOG}, {sWS}, {sOff} offen sc1\n"
             f"buffer_load_dword {W(4)}, {vLG}, {sWS}, {sOff} offen offset:{OLSE} sc1", [W(k) for k in range(5)])
        stamp(f"ogot{L}")
        if L == 0: a("s_waitcnt lgkmcnt(0)")
        a(f"v_mfma_f32_16x16x32_bf16 {WR(8,4)}, {AR(aWO)}, {WR(0,4)}, 0")
        a(f"v_mfma_f32_16x16x32_bf16 {WR(12,4)}, {AR(aWO+4)}, {WR(0,4)}, 0")
        a(f"v_sub_f32_dpp {W(5)}, {W(4)}, {W(4)} quad_perm:[1,0,3,2] {DPP}\nv_exp_f32 {W(5)}, {W(5)}\nv_add_f32 {W(5)}, 1.0, {W(5)}\nv_rcp_f32 {W(5)}, {W(5)}")
        for r in range(4): a(f"v_add_f32_dpp {W(8+r)}, {W(12+r)}, {W(8+r)} row_ror:8 {DPP}")
        for r in range(4): a(f"v_mul_f32 {W(8+r)}, {W(8+r)}, {W(5)}")
        for r in range(4): a(f"v_add_f32_dpp {W(8+r)}, {W(8+r)}, {W(8+r)} quad_perm:[1,0,3,2] {DPP}")
        a(f"ds_write_b128 {vYWW}, {WR(8,4)}")
        a("s_waitcnt lgkmcnt(0)\ns_barrier")
        Ls = lab("ysum")
        a(f"s_cmp_lg_u32 {sW}, 0\ns_cbranch_scc1 {Ls}")
        a(f"v_add_u32 {W(8)}, {LYW}, {vL4}")
        for k in range(4): a(f"ds_read2st64_b32 {WR(2*k,2)}, {W(8)} offset0:{2*k} offset1:{2*k+1}")
        a(f"s_add_u32 {sT0}, {sAr}, {OFF_Y[L]}")
        a("s_waitcnt lgkmcnt(2)")
        a(f"v_add_f32 {W(0)}, {W(0)}, {W(1)}\nv_add_f32 {W(2)}, {W(2)}, {W(3)}")
        a("s_waitcnt lgkmcnt(0)")
        a(f"v_add_f32 {W(4)}, {W(4)}, {W(5)}\nv_add_f32 {W(6)}, {W(6)}, {W(7)}\nv_add_f32 {W(0)}, {W(0)}, {W(2)}\nv_add_f32 {W(4)}, {W(4)}, {W(6)}\nv_add_f32 {W(0)}, {W(0)}, {W(4)}")
        a(f"buffer_store_dword {W(0)}, {vL4}, {sWS}, {sT0} offen sc1")
        a.label(Ls)
        stamp(f"ypub{L}")

    def x_gather(off):
        a(f"s_mov_b32 {sOff}, {off}")
        poll(f"buffer_load_dwordx4 {WR(0,4)}, {vXG}, {sWS}, {sOff} offen sc1", [W(k) for k in range(4)])
        red8(W(0), W(1), W(2), W(3))
        a(f"v_add_f32 {W(0)}, {W(0)}, {vRES}\nv_cvt_pk_bf16_f32 {W(0)}, {W(0)}, {W(0)}")

    def xs_publish():
        a(f"ds_write_b16 {vXSW}, {W(0)}\nv_and_b32 {vRES}, 0xffff0000, {W(0)}")
        a("s_waitcnt lgkmcnt(0)\ns_barrier")
        a(f"ds_read_b128 {WR(0,4)}, {vXSR}\nds_read_b128 {WR(4,4)}, {vXSR} offset:64")

    def gram_store(soff, off):
        a(f"v_mfma_f32_16x16x32_bf16 {WR(12,4)}, {WR(0,4)}, {WR(0,4)}, 0")
        a(f"v_mfma_f32_16x16x32_bf16 {WR(12,4)}, {WR(4,4)}, {WR(4,4)}, {WR(12,4)}")
        lstore("buffer_store_dwordx4", WR(12, 4), vSP, soff, f"offset:{off}")

    def gu_stage(L):
        x_gather(OFF_Y[L])
        stamp(f"ygot{L}")
        xs_publish()
        L6, Ld = lab("gu6"), lab("gud")
        a(f"s_add_u32 {sT0}, {sAr}, {OFF_G[L]}\ns_lshl_b32 {sT1}, {sW}, 8\ns_add_u32 {sT1}, {sT1}, {sT0}\ns_lshl_b32 {sT2}, {sW}, 6\ns_add_u32 {sT2}, {sT2}, {sT0}")
        a(f"s_cmp_ge_u32 {sW}, 6\ns_cbranch_scc1 {L6}")
        a("s_waitcnt lgkmcnt(1)")
        a(f"v_mfma_f32_16x16x32_bf16 {WR(8,4)}, {WR(0,4)}, {AR(aGU)}, 0")
        a("s_waitcnt lgkmcnt(0)")
        a(f"v_mfma_f32_16x16x32_bf16 {WR(8,4)}, {WR(4,4)}, {AR(aGU+4)}, {WR(8,4)}")
        lstore("buffer_store_dwordx4", WR(8, 4), vGP, sT1)
        lstore("buffer_store_dword", W(8), vGCP, sT2, f"offset:{GCS}")
        a(f"s_branch {Ld}")
        a.label(L6)
        a(f"s_waitcnt lgkmcnt(0)\ns_cmp_lg_u32 {sW}, 7\ns_cbranch_scc1 {Ld}")
        gram_store(sT0, GSTAT)
        a.label(Ld)
        stamp(f"gupub{L}")

    def ffn_tail(L):
        Lw1, Lh = lab("w1"), lab("barH")
        a(f"s_cmp_lg_u32 {sW}, 0\ns_cbranch_scc1 {Lw1}")
        a(f"s_lshl_b32 {sT0}, {sNT}, 1\ns_cmp_ge_u32 {sI}, {sT0}\ns_cbranch_scc1 {Lh}")
        a(f"s_mov_b32 {sOff}, {OFF_G[L]}\ns_add_u32 {sT0}, {sAr}, {OFF_H[L]}")
        poll(f"buffer_load_dwordx4 {WR(0,4)}, {vA0}, {sWS}, {sOff} offen sc1\n"
             f"buffer_load_dwordx4 {WR(4,4)}, {vA0}, {sWS}, {sOff} offen offset:256 sc1\n"
             f"buffer_load_dword {W(8)}, {vA2}, {sWS}, {sOff} offen offset:{GSTAT} sc1\n"
             f"buffer_load_dword {W(9)}, {vA3}, {sWS}, {sOff} offen offset:{GSTAT+64} sc1\n"
             f"buffer_load_dword {W(10)}, {vA1}, {sWS}, {sOff} offen offset:{GCS} sc1\n"
             f"buffer_load_dword {W(11)}, {vA1}, {sWS}, {sOff} offen offset:{GCS+64} sc1", [W(k) for k in range(12)])
        lo8("v_add_f32", [W(8), W(9)])
        red8(W(0), W(1), W(2), W(3))
        red8(W(4), W(5), W(6), W(7))
        a(f"v_permlane32_swap_b32 {W(10)}, {W(11)}\nv_add_f32 {W(10)}, {W(10)}, {W(11)}")
        a(f"v_mov_b32 {W(11)}, {W(10)}\nv_permlane16_swap_b32 {W(10)}, {W(11)}\nv_add_f32 {W(10)}, {W(10)}, {W(11)}")
        a(f"v_add_f32_dpp {W(10)}, {W(10)}, {W(10)} row_ror:8 {DPP}")
        a(f"v_mov_b32 {W(11)}, {W(10)}\nv_permlane32_swap_b32 {W(10)}, {W(11)}")
        ln_stats(W(8), W(9), W(12), W(13))
        g, u = W(0), W(4)
        a(f"v_fma_f32 {g}, -{W(12)}, {W(10)}, {g}\nv_fma_f32 {u}, -{W(12)}, {W(11)}, {u}\nv_mul_f32 {g}, {g}, {W(13)}\nv_mul_f32 {u}, {u}, {W(13)}")
        k1 = -2.0 * math.sqrt(2.0 / math.pi) * math.log2(math.e); k2 = k1 * 0.044715
        a(f"v_mul_f32 {W(1)}, {g}, {g}\nv_mov_b32 {W(2)}, {f32(k1)}\nv_fmac_f32 {W(2)}, {f32(k2)}, {W(1)}\nv_mul_f32 {W(2)}, {W(2)}, {g}")
        a(f"v_exp_f32 {W(2)}, {W(2)}\nv_mul_f32 {u}, {u}, {g}\nv_add_f32 {W(2)}, 1.0, {W(2)}\nv_rcp_f32 {W(2)}, {W(2)}\nv_mul_f32 {u}, {u}, {W(2)}")
        a(f"v_mov_b32_dpp {W(5)}, {u} quad_perm:[1,0,3,2] {DPP}\nv_cvt_pk_bf16_f32 {u}, {u}, {W(5)}\nv_min_u32 {u}, -2, {u}")
        lstore("buffer_store_dword", u, vA4, sT0)
        a(f"s_branch {Lh}")
        a.label(Lw1)
        a(f"s_cmp_lg_u32 {sW}, 1\ns_cbranch_scc1 {Lh}")
        ld = ""
        for c in range(5): a(f"s_mov_b32 s{6+c}, {OFF_H[L]+c*32*AST}")
        a(f"s_add_u32 {sT0}, {sAr}, {OFF_Z[L]}")
        for c in range(5): ld += f"buffer_load_dwordx4 {WR(4*c,4)}, {vA0}, {sWS}, s{6+c} offen sc1\n"
        ld += f"buffer_load_dwordx4 {WR(20,4)}, {vA1}, {sWS}, s6 offen sc1"
        poll(ld, [W(k) for k in range(24)])
        for c in range(6):
            a(f"v_mfma_f32_16x16x32_bf16 {WR(24,4)}, {AR(aWD+4*c)}, {WR(4*c,4)}, {'0' if c == 0 else WR(24,4)}")
        a(f"buffer_store_dwordx4 {WR(24,4)}, {vA2}, {sWS}, {sT0} offen sc1")
        a.label(Lh)
        a("s_barrier")
        stamp(f"zpub{L}")

    def q_stage():
        x_gather(OFF_Z[0])
        stamp("zgot0")
        xs_publish()
        a(f"s_add_u32 {sT0}, {sAr}, {OFF_Q[1]}\ns_lshl_b32 {sT1}, {sW}, 6\ns_add_u32 {sT1}, {sT1}, {sT0}")
        a("s_waitcnt lgkmcnt(1)")
        a(f"v_mfma_f32_16x16x32_bf16 {WR(8,4)}, {AR(aWQ)}, {WR(0,4)}, 0")
        a("s_waitcnt lgkmcnt(0)")
        a(f"v_mfma_f32_16x16x32_bf16 {WR(8,4)}, {AR(aWQ+4)}, {WR(4,4)}, {WR(8,4)}")
        lstore("buffer_store_dwordx4", WR(8, 4), vQP, sT1)
        Ls = lab("qst")
        a(f"s_cmp_lg_u32 {sW}, 7\ns_cbranch_scc1 {Ls}")
        gram_store(sT0, QSTAT)
        a.label(Ls)
        stamp("qpub1")

    q_gather(0)
    a.label("L_toC0")
    a("s_waitcnt lgkmcnt(0)\ns_barrier")
    stamp("barC0")
    attention(0); wo_stage(0); gu_stage(0); ffn_tail(0); q_stage()
    a(f"s_cmp_ge_u32 {sW}, 4\ns_cbranch_scc1 L_toC1")
    q_gather(1)
    a.label("L_toC1")
    a("s_waitcnt lgkmcnt(0)\ns_barrier")
    stamp("barC1")
    attention(1); wo_stage(1); gu_stage(1); ffn_tail(1)
    a(f"s_cmp_lg_u32 {sFin}, 0\ns_cbranch_scc1 L_fin")
    x_gather(OFF_Z[1])
    a(f"buffer_store_short {W(0)}, v0, {sOut}, 0 offen")
    a.label("L_fin")
    if stamps:
        stamp("end")
        a(f"s_cmp_lg_u32 {sW}, 0\ns_cbranch_scc1 L_end")
        a(f"s_lshl_b32 {sT0}, s2, 8\ns_add_u32 {sT0}, {sT0}, 0x10000000\ns_add_u32 s98, s98, {sT0}\ns_addc_u32 s99, s99, 0")
        a(f"v_lshlrev_b32 {W(0)}, 1, {vL4}\nv_mov_b32 {W(2)}, {vST}\nv_mov_b32 {W(3)}, 0\nv_cmp_gt_u32 vcc, 32, {vL}\ns_and_saveexec_b64 s[6:7], vcc")
        a(f"global_store_dwordx2 {W(0)}, {WR(2,2)}, s[98:99]")
    a.label("L_end")
    a("s_endpgm")
    return wrap(a.text(), 256, 512, LDS_SIZE, 256, 144), nst[0]

if __name__ == "__main__":
    t, _ = gen(); open("k.s", "w").write(t)
    t, n = gen(stamps=True); open("ks.s", "w").write(t)
    print("stamps", n)
```

```python
import re
NAME = "interleave_layers__sliding_block_cached__geglu_ffn__decode"

TRANS = ("v_exp_f32", "v_log_f32", "v_rcp_f32", "v_rsq_f32", "v_sqrt_f32", "v_sin_f32", "v_cos_f32")

def regs_of(op):
    op = op.strip()
    op = op.lstrip("-")
    m = re.fullmatch(r"abs\((.*)\)", op)
    if m: op = m.group(1)
    op = op.strip("|")
    m = re.fullmatch(r"([vas])\[(\d+):(\d+)\]", op)
    if m: return {f"{m.group(1)}{k}" for k in range(int(m.group(2)), int(m.group(3)) + 1)}
    m = re.fullmatch(r"([vas])(\d+)", op)
    if m: return {op}
    if op in ("vcc", "vcc_lo", "vcc_hi"): return {"vcc"}
    if op in ("exec", "exec_lo", "exec_hi"): return {"exec"}
    if op == "m0": return {"m0"}
    return set()

class Ins:
    def __init__(self, text):
        self.text = text
        t = text.split(";")[0].strip()
        parts = t.split(None, 1)
        self.mn = parts[0]
        rest = parts[1] if len(parts) > 1 else ""
        ops, depth, cur = [], 0, ""
        for ch in rest:
            if ch in "[(": depth += 1
            if ch in "])": depth -= 1
            if ch == "," and depth == 0: ops.append(cur.strip()); cur = ""
            else: cur += ch
        if cur.strip(): ops.append(cur.strip())
        mods = ""
        if ops:
            last = ops[-1].split(None, 1)
            ops[-1] = last[0]
            mods = last[1] if len(last) > 1 else ""
        self.ops, self.mods = ops, mods
        mn = self.mn
        self.mfma = mn.startswith("v_mfma") or mn.startswith("v_smfmac")
        self.valu = mn.startswith("v_") and not self.mfma
        self.trans = any(mn.startswith(x) for x in TRANS)
        self.dpp = "_dpp" in mn or "quad_perm" in mods or "row_" in mods
        self.perml = mn.startswith("v_permlane")
        self.rdlane = mn.startswith("v_readlane") or mn.startswith("v_readfirstlane")
        self.ds = mn.startswith("ds_")
        self.vmem = mn.startswith("buffer_") or mn.startswith("global_")
        self.salu = mn.startswith("s_")
        self.ldsdma = self.vmem and re.search(r"\blds\b", mods) is not None
        R = [regs_of(o) for o in ops]
        self.w, self.r = set(), set()
        self.srcC = set(); self.srcAB = set(); self.stdata = set()
        if self.mfma:
            self.w = R[0]; self.srcAB = R[1] | R[2]; self.srcC = R[3]
            if mn.startswith("v_smfmac"): self.srcAB |= R[3]; self.srcC = R[0]
            self.r = self.srcAB | self.srcC
        elif self.valu:
            if mn.startswith("v_swap") or self.perml:
                self.w = R[0] | R[1]; self.r = R[0] | R[1]
            elif mn.startswith("v_nop"):
                pass
            else:
                self.w = set(R[0]); self.r = set().union(*R[1:]) if len(R) > 1 else set()
                if mn.startswith(("v_fmac", "v_dot2c", "v_pk_fmac", "v_writelane")): self.r |= R[0]
                if self.dpp: self.r |= R[0]
                if "_co_" in mn: self.w |= R[1]; self.r = set().union(*R[2:])
                if mn.startswith("v_cmpx"): self.w |= {"exec"}
        elif self.ds:
            if mn.startswith("ds_read") or "_rtn" in mn or "permute" in mn or "swizzle" in mn:
                self.w = R[0]; self.r = set().union(*R[1:])
            else:
                self.r = set().union(*R)
        elif self.vmem:
            if "load" in mn and not self.ldsdma:
                self.w = R[0]; self.r = set().union(*R[1:])
            elif "atomic" in mn and "sc0" in mods and mn.startswith("buffer"):
                self.w = R[0]; self.r = set().union(*R)
            else:
                self.r = set().union(*R) if R else set()
                if "store" in mn and ("x3" in mn or "x4" in mn):
                    self.stdata = R[0] if mn.startswith("buffer") else R[1]
            if self.ldsdma: self.r |= {"m0"}
        elif self.salu:
            if R and not mn.startswith(("s_cmp", "s_cbranch", "s_branch", "s_waitcnt", "s_nop", "s_barrier", "s_sleep", "s_setprio", "s_endpgm", "s_bitcmp", "s_setpc")):
                self.w = R[0]; self.r = set().union(*R[1:]) if len(R) > 1 else set()
            else:
                self.r = set().union(*R) if R else set()
        self.states = 1
        if mn == "s_nop": self.states = int(ops[0], 0) + 1

def isv(S): return {x for x in S if x[0] in "va" and x not in ("vcc",)}
def iss(S): return {x for x in S if x[0] == "s" or x == "vcc"}

def need(p, c):
    n = 0
    if p.valu:
        pv = isv(p.w); ps = iss(p.w)
        if c.valu and c.dpp and pv & c.r: n = max(n, 2)
        if c.perml and pv & c.r: n = max(n, 2)
        if c.rdlane and pv & c.r: n = max(n, 1)
        if c.mfma and pv & c.r: n = max(n, 2)
        if p.trans and (c.valu and not c.trans or c.mfma) and pv & c.r: n = max(n, 1)
        if c.valu and ps & c.r: n = max(n, 2)
        if c.valu and "vcc" in ps and c.mn.startswith("v_cndmask") and len(c.ops) == 4 and c.ops[3] == "vcc": n = max(n, 2)
        if c.vmem and ps & c.r: n = max(n, 5)
        if c.rdlane and ps & c.r: n = max(n, 4)
        if "exec" in p.w and (c.dpp or c.mfma or c.rdlane or c.perml): n = max(n, 5)
        if c.salu and ps & c.r: n = max(n, 1)
    if p.mfma:
        if c.mfma:
            if p.w & c.srcAB: n = max(n, 8)
            if p.w & c.srcC and p.w != c.srcC: n = max(n, 6)
            if p.w & c.w and p.w != c.srcC: n = max(n, 6)
        elif c.valu:
            if p.w & (c.r | c.w): n = max(n, 8)
            if p.srcC & c.w: n = max(n, 3)
        elif c.ds or c.vmem:
            if p.w & (c.r | c.w): n = max(n, 8)
    if p.stdata and (c.valu or c.mfma) and p.stdata & c.w: n = max(n, 2)
    if p.stdata and (c.ds or c.vmem) and p.stdata & c.w: n = max(n, 1)
    if p.salu and "m0" in p.w and c.ldsdma: n = max(n, 1)
    return n

class Asm:
    def __init__(self, auto=True):
        self.l = []; self.hist = []; self.auto = auto; self.nops = 0
    def raw(self, s): self.l.append(s)
    def __call__(self, s):
        for x in s.split("\n"):
            x = x.strip()
            if not x: continue
            if x.startswith(";"): self.l.append("    " + x); continue
            if x.endswith(":"): self.l.append(x); continue
            if x.startswith("."): self.l.append("    " + x); continue
            ins = Ins(x)
            if self.auto:
                dist, pad = 0, 0
                for p in reversed(self.hist):
                    k = need(p, ins) - dist
                    pad = max(pad, k)
                    dist += p.states
                    if dist >= 12: break
                if pad > 0:
                    nop = Ins(f"s_nop {pad-1}")
                    self.l.append("    " + nop.text); self.hist.append(nop); self.nops += pad
            self.l.append("    " + x); self.hist.append(ins)
            self.hist = self.hist[-16:]
    def label(self, n): self.l.append(n + ":")
    def text(self): return "\n".join(self.l) + "\n"

HEADER_COMMENT = open("cdna_kernels/" + NAME + ".s.ref").read().split("; Override launch")[0]

def wrap(body, grid, block, lds, nvgpr=512, accum=256, nsgpr=102, comment=""):
    return (HEADER_COMMENT +
f"""; @launch grid=({grid},1,1) block=({block},1,1) lds={lds}
{comment}.amdgcn_target "amdgcn-amd-amdhsa--gfx950"
.text
.globl {NAME}_kernel
.p2align 8
.type {NAME}_kernel,@function
{NAME}_kernel:
{body}
.section .rodata,"a"
.p2align 6
.amdhsa_kernel {NAME}_kernel
  .amdhsa_next_free_vgpr {nvgpr}
  .amdhsa_next_free_sgpr {nsgpr}
  .amdhsa_accum_offset {accum}
  .amdhsa_group_segment_fixed_size 0
  .amdhsa_kernarg_size 96
  .amdhsa_user_sgpr_count 2
  .amdhsa_user_sgpr_kernarg_segment_ptr 1
  .amdhsa_system_sgpr_workgroup_id_x 1
  .amdhsa_float_denorm_mode_32 3
  .amdhsa_float_denorm_mode_16_64 3
.end_amdhsa_kernel
""")
```

```python
import sys, math, struct
from asmlib import *

XB = [0, 65536, 131072, 196608]
FLG = 262144
EPO = FLG + 1024
GA = FLG + 2048
G_OD = [0, 8320]; G_LSE = [8192, 16512]
G_ST = {"G0": 16640, "Q1": 16896, "G1": 17152}
G_H = [17408, 18944]
G_LATE = 8320
GST = 8320 + 12288 + 128
WA = GA + 8 * GST + 128 * 6
A_Q = [0, 0]; A_G = [2560, 2560]; GCS = 1536
AST = 4480
WSN = WA + 256 * AST
OOB = 0x7FFF0000
LWQ = 0; LWO = 16384; LGU = 32768; LWD = 49152
LXS = 55296; XSS = 144
LQS = 56064; LZERO = 56320; LMODE = 56336; LDUM = 56352
LOW = 57856; LML = 61952; LYW = 62080
LDS_SIZE = 65536
C2 = math.log2(math.e) / math.sqrt(128.0)
DPP = "row_mask:0xf bank_mask:0xf"
def f32(x): return "0x%08x" % struct.unpack("<I", struct.pack("<f", x))[0]

sK, sV, sWq, sWo, sWg, sWu, sWd, sWS, sX, sOut = [f"s[{28+4*k}:{31+4*k}]" for k in range(10)]
def sr(srd, k): return "s%d" % (int(srd[2:srd.index(":")]) + k)
(sG, sI, sHL, sJ, sW, sB, sH, sAr, sGa, sT0, sT1, sT2, sT3, sCnt, sOff, sOff2, sNT, sTB, sXcc, sFin,
 sEp, sMode, sXp, sGUo, sWDo) = [f"s{68+k}" for k in range(25)]
sM1, sM2, sM3 = "s[12:13]", "s[14:15]", "s[16:17]"
vL, vN, vGK = "v1", "v2", "v3"
W = lambda k: f"v{4+k}"
def WR(k, n): return f"v[{4+k}:{4+k+n-1}]"
P = ["v%d" % k for k in list(range(48, 64)) + list(range(128, 144))]
(vQG, vSG, vOG, vLG, vXG, vA0, vA1, vA2, vA3, vQP, vOP, vGP, vGCP, vRES, vXP, vDMA,
 vXSW, vXSR, vQSW, vQR0, vQR1, vQR2, vQR3, vOWW, vOWR, vMLR, vYWW, vL4, vCSQ, vIDX, vTRW, vST) = P
def vVld(t, c): return 64 + 32 * (t >> 1) + 8 * c + 4 * (t & 1)
def aK(t, c): return f"a[{16*t+4*c}:{16*t+4*c+3}]"
aWQ, aWO, aGU, aWD = 64, 72, 80, 88
def AR(b, n=4): return f"a[{b}:{b+n-1}]"
def VR(b, n=4): return f"v[{b}:{b+n-1}]"

def gen(stamps=False, limit=4000000, stw=0, ackbar=True, xdelay=0, prio=True, fine=False, cyc=False, nearly=4):
    a = Asm()
    nst = [0]; slow = []
    def stamp(name):
        if not stamps: return
        k = nst[0]; nst[0] += 1
        a(f"{'s_memtime' if cyc else 's_memrealtime'} s[4:5]\ns_waitcnt lgkmcnt(0)\nv_writelane_b32 {vST}, s4, {k}")
    uid = [0]
    def lab(p):
        uid[0] += 1; return f"L_{p}{uid[0]}"
    def poll(loads, regs, once="", nonce=0):
        L = lab("poll")
        if once:
            a(loads); a(once); a(f"s_waitcnt vmcnt({nonce})\ns_branch {L}c")
        a.label(L)
        a(loads)
        a(f"s_add_u32 {sCnt}, {sCnt}, 1\ns_cmp_gt_u32 {sCnt}, {limit}\ns_cbranch_scc1 L_end")
        a("s_waitcnt vmcnt(0)")
        if once: a.label(L + "c")
        t = W(43); r = list(regs)
        a(f"v_max3_u32 {t}, {r[0]}, {r[1]}, {r[2]}"); r = r[3:]
        while len(r) >= 2: a(f"v_max3_u32 {t}, {t}, {r[0]}, {r[1]}"); r = r[2:]
        if r: a(f"v_max_u32 {t}, {t}, {r[0]}")
        a(f"v_cmp_eq_u32 vcc, -1, {t}\ns_cbranch_vccnz {L}")
    def lstore(stores):
        L = lab("slow")
        a(f"s_cmp_eq_u32 {sMode}, 0\ns_cbranch_scc1 {L}")
        for s_ in stores: a(s_)
        a.label(L + "r")
        slow.append((L, stores))
    def red8(r0, r1, r2, r3):
        a(f"v_permlane32_swap_b32 {r0}, {r1}\nv_permlane32_swap_b32 {r2}, {r3}")
        a(f"v_add_f32 {r0}, {r0}, {r1}\nv_add_f32 {r2}, {r2}, {r3}")
        a(f"v_permlane16_swap_b32 {r0}, {r2}\nv_add_f32 {r0}, {r0}, {r2}")
        a(f"v_add_f32_dpp {r0}, {r0}, {r0} row_ror:8 {DPP}")
    LO8 = ("quad_perm:[1,0,3,2]", "quad_perm:[2,3,0,1]", "row_half_mirror")
    def lo8(op, regs):
        for m in LO8:
            for r in regs: a(f"{op}_dpp {r}, {r}, {r} {m} {DPP}")
    def ln_fin(vmu, vrs):
        a(f"v_fma_f32 {vrs}, -{vmu}, {vmu}, {vrs}\nv_max_f32 {vrs}, 0, {vrs}\nv_add_f32 {vrs}, {f32(1e-5)}, {vrs}\nv_rsq_f32 {vrs}, {vrs}")
    def trread(dst, kind, vbase, off, qstride):
        a(f"ds_read_b64_tr_b16 {kind}[{dst}:{dst+1}], {vbase} offset:{off}")
        a(f"ds_read_b64_tr_b16 {kind}[{dst+2}:{dst+3}], {vbase} offset:{off+qstride}")
    def sel(dst, vfalse, vtrue, cmp):
        a(f"{cmp}\nv_cndmask_b32 {dst}, {vfalse}, {vtrue}, vcc")

    a("s_cmp_ge_u32 s2, 256\ns_cbranch_scc1 L_end")
    a("s_load_dwordx16 s[4:19], s[0:1], 0\ns_load_dwordx8 s[20:27], s[0:1], 64")
    if stamps: a(f"{'s_memtime' if cyc else 's_memrealtime'} s[96:97]")
    a(f"v_lshrrev_b32 v4, 6, v0\nv_and_b32 {vL}, 63, v0\nv_readfirstlane_b32 {sW}, v4")
    a(f"v_and_b32 {vN}, 15, v0\nv_lshrrev_b32 {vGK}, 4, {vL}")
    a(f"s_and_b32 {sG}, s2, 7\ns_lshr_b32 {sI}, s2, 3\ns_and_b32 {sHL}, {sI}, 3\ns_lshr_b32 {sJ}, {sI}, 2")
    a(f"s_and_b32 {sB}, {sJ}, 3\ns_lshl_b32 {sH}, {sG}, 2\ns_add_u32 {sH}, {sH}, {sHL}")
    a(f"s_lshl_b32 {sT0}, {sB}, 5\ns_add_u32 {sT0}, {sT0}, {sH}\ns_lshl_b32 {sT0}, {sT0}, 20\ns_add_u32 {sT0}, {sT0}, 0xC0000")
    a(f"s_lshr_b32 {sT1}, {sJ}, 2\ns_lshl_b32 {sT1}, {sT1}, 17\ns_add_u32 {sT0}, {sT0}, {sT1}")
    a(f"s_lshr_b32 {sT1}, {sW}, 2\ns_lshl_b32 {sT1}, {sT1}, 16\ns_add_u32 {sT0}, {sT0}, {sT1}")
    a(f"s_and_b32 {sT1}, {sW}, 3\ns_lshl_b32 {sT1}, {sT1}, 12\ns_add_u32 {sT0}, {sT0}, {sT1}")
    vKO, vVO, vWQO = W(40), W(41), W(42)
    t0, t1, t2, t3, vE, vHi3, vLo3 = W(0), W(1), W(2), W(3), W(4), W(5), W(6)
    a(f"s_cmp_lt_u32 {sW}, 4\ns_cbranch_scc1 L_prio\ns_setprio 3")
    a.label("L_prio")
    a(f"v_and_b32 v4, 6, {vN}\nv_lshlrev_b32 v4, 9, v4\nv_lshl_add_u32 v4, {vGK}, 5, v4\nv_and_b32 v5, 8, {vN}\nv_lshl_add_u32 v4, v5, 5, v4\nv_and_b32 v5, 1, {vN}\nv_lshl_add_u32 {vKO}, v5, 4, v4")
    a(f"v_lshlrev_b32 {vVO}, 4, {vL}")
    for srd in (sK, sV, sWq, sWo, sWg, sWu, sWd, sWS, sX, sOut): a(f"s_mov_b32 {sr(srd,3)}, 0x20000")
    a(f"s_mov_b32 {sr(sK,2)}, 0xD000\ns_mov_b32 {sr(sV,2)}, 0xD000\ns_mov_b32 {sr(sWq,2)}, 0x400000\ns_mov_b32 {sr(sX,2)}, 4096\ns_mov_b32 {sr(sWS,2)}, {WSN}")
    a(f"v_lshlrev_b32 v4, 13, {vGK}\nv_lshl_add_u32 {vWQO}, {vN}, 4, v4")
    a(f"v_lshrrev_b32 {vHi3}, 3, {vL}\nv_and_b32 {vLo3}, 7, {vL}")
    a(f"v_lshrrev_b32 {t0}, 1, {vGK}\nv_and_b32 {t1}, 1, {vGK}\nv_lshl_add_u32 {vE}, {t1}, 1, {t0}")
    a(f"v_and_b32 {t0}, 3, {vL}\nv_and_b32 {t1}, 4, {vL}\ns_lshl_b32 {sT1}, {sW}, 3\nv_add3_u32 {t1}, {t1}, {vE}, {sT1}")
    a(f"v_mul_u32_u24 {t2}, {XSS}, {t0}\nv_lshl_add_u32 {t2}, {t1}, 1, {t2}\nv_add_u32 {vXSW}, {LXS}, {t2}")
    a(f"v_lshlrev_b32 {t0}, 10, {t0}\nv_lshl_add_u32 {t0}, {t1}, 1, {t0}\ns_lshl_b32 {sT1}, {sJ}, 7\nv_add_u32 v0, {sT1}, {t0}")
    a(f"s_lshl_b32 {sT1}, {sJ}, 3\ns_add_u32 {sT1}, {sT1}, {sW}\ns_lshl_b32 {sT1}, {sT1}, 16\ns_lshl_b32 {sT2}, {sH}, 8\ns_add_u32 {sT1}, {sT1}, {sT2}")
    a(f"s_lshl_b32 {sT2}, {sW}, 11\ns_mov_b32 m0, {sT2}")
    a("s_waitcnt lgkmcnt(0)")
    a(f"s_mov_b32 {sr(sWq,0)}, s10\ns_mov_b32 {sr(sWq,1)}, s11\ns_mov_b32 {sr(sX,0)}, s4\ns_mov_b32 {sr(sX,1)}, s5")
    a(f"buffer_load_dwordx4 {vWQO}, {sWq}, {sT1} offen nt lds")
    a(f"s_add_u32 m0, {sT2}, 1024\ns_add_u32 {sT1}, {sT1}, 32768")
    a(f"buffer_load_dwordx4 {vWQO}, {sWq}, {sT1} offen nt lds")
    a(f"buffer_load_ushort {vRES}, v0, {sX}, 0 offen")
    a(f"s_add_u32 {sr(sK,0)}, s6, {sT0}\ns_addc_u32 {sr(sK,1)}, s7, 0")
    a(f"s_add_u32 {sr(sV,0)}, s8, {sT0}\ns_addc_u32 {sr(sV,1)}, s9, 0")
    a(f"s_mov_b32 {sr(sWS,0)}, s26\ns_mov_b32 {sr(sWS,1)}, s27")
    a(f"s_load_dword {sEp}, s[26:27], {EPO}")
    def ldK(t):
        a(f"s_mov_b32 {sT3}, {t*16384}")
        for c in range(4): a(f"buffer_load_dwordx4 {aK(t,c)}, {vKO}, {sK}, {sT3} offen offset:{(c>>1)*512+(c&1)*128} nt")
    def ldV(t):
        a(f"s_mov_b32 {sT3}, {t*16384}")
        for c in range(4): a(f"buffer_load_dwordx4 {VR(vVld(t,c))}, {vVO}, {sV}, {sT3} offen offset:{c*1024} nt")
    a(f"s_cmp_ge_u32 {sW}, 4\ns_cbranch_scc1 L_late0")
    for t in range(nearly): ldK(t)
    a.label("L_late0")
    a(f"s_mul_i32 {sAr}, s2, {AST}\ns_add_u32 {sAr}, {sAr}, {WA}\ns_mul_i32 {sGa}, {sG}, {GST}\ns_add_u32 {sGa}, {sGa}, {GA}")
    a(f"s_lshr_b32 {sXp}, s2, 6\ns_lshl_b32 {sXp}, {sXp}, 14\ns_and_b32 {sT0}, s2, 63\ns_lshl_b32 {sT0}, {sT0}, 7\ns_add_u32 {sXp}, {sXp}, {sT0}")
    a(f"v_mov_b32 {t3}, {OOB}")
    a(f"s_cmp_lg_u32 {sW}, 7\ns_cbranch_scc1 L_common")
    for k in range(4): a(f"v_mov_b32 {W(8+k)}, -1")
    a(f"s_lshl_b32 {sT0}, {sI}, 8\ns_add_u32 {sT0}, {sT0}, {sGa}\nv_lshl_add_u32 {t0}, {vN}, 4, {sT0}")
    a(f"v_bfe_u32 {t1}, {vL}, 3, 1\nv_lshlrev_b32 {t1}, 13, {t1}\nv_lshl_add_u32 {t1}, {vLo3}, 4, {t1}\nv_lshl_add_u32 {t1}, {vGK}, 16, {t1}\nv_add_u32 {t1}, {sXp}, {t1}")
    sel(t0, t0, t1, f"v_cmp_gt_u32 vcc, 32, {vL}")
    a(f"s_add_u32 {sT0}, {sGa}, {G_LSE[0]}\nv_lshl_add_u32 {t1}, {vLo3}, 4, {sT0}")
    sel(t0, t1, t0, f"v_cmp_gt_u32 vcc, 48, {vL}")
    a(f"s_cmp_eq_u32 {sI}, 0\ns_cselect_b32 {sT0}, 56, 48")
    sel(t0, t3, t0, f"v_cmp_gt_u32 vcc, {sT0}, {vL}")
    a(f"buffer_store_dwordx4 {WR(8,4)}, {t0}, {sWS}, 0 offen sc1")
    a.label("L_common")
    a(f"v_lshlrev_b32 {vL4}, 2, {vL}")
    a(f"s_mov_b32 {sr(sWo,0)}, s12\ns_mov_b32 {sr(sWo,1)}, s13\ns_mov_b32 {sr(sWo,2)}, 0x400000")
    a(f"s_mov_b32 {sr(sWg,0)}, s16\ns_mov_b32 {sr(sWg,1)}, s17\ns_mov_b32 {sr(sWg,2)}, 1409024")
    a(f"s_mov_b32 {sr(sWu,0)}, s18\ns_mov_b32 {sr(sWu,1)}, s19\ns_mov_b32 {sr(sWu,2)}, 1409024")
    a(f"s_mul_i32 {sTB}, {sG}, 11\ns_cmp_eq_u32 {sG}, 7\ns_cselect_b32 {sTB}, 76, {sTB}\ns_cmp_lt_u32 {sG}, 6\ns_cselect_b32 {sNT}, 11, 10")
    a(f"s_add_u32 {sT0}, {sTB}, {sNT}\ns_lshl_b32 {sr(sWd,2)}, {sT0}, 14\ns_mov_b32 {sr(sWd,0)}, s20\ns_mov_b32 {sr(sWd,1)}, s21")
    a(f"s_mov_b32 {sr(sOut,0)}, s22\ns_mov_b32 {sr(sOut,1)}, s23\ns_mov_b32 {sr(sOut,2)}, 4096")
    if stamps: a("s_mov_b32 s98, s26\ns_mov_b32 s99, s27")
    a(f"s_mov_b32 {sCnt}, 0\ns_mov_b32 {sMode}, 0")
    a(f"s_getreg_b32 {sXcc}, hwreg(HW_REG_XCC_ID)\ns_and_b32 {sXcc}, {sXcc}, 15")
    a(f"s_xor_b32 {sFin}, {sG}, {sJ}\ns_or_b32 {sFin}, {sFin}, {sHL}")
    a(f"s_mov_b64 {sM1}, 2\ns_mov_b64 {sM2}, 4\ns_mov_b64 {sM3}, 8")
    a(f"s_mul_i32 {sGUo}, {sHL}, 3\ns_add_u32 {sGUo}, {sGUo}, {sTB}\ns_lshl_b32 {sGUo}, {sGUo}, 5\ns_mul_i32 {sT1}, {sJ}, {64*2752}\ns_add_u32 {sGUo}, {sGUo}, {sT1}")
    a(f"s_lshl_b32 {sWDo}, {sTB}, 14\ns_and_b32 {sT1}, {sW}, 1\ns_mul_i32 {sT1}, {sT1}, {96*1024}\ns_add_u32 {sWDo}, {sWDo}, {sT1}\ns_lshl_b32 {sT1}, {sI}, 5\ns_add_u32 {sWDo}, {sWDo}, {sT1}")
    if stamps: a(f"v_mov_b32 {vST}, 0\nv_writelane_b32 {vST}, s96, 0"); nst[0] = 1
    sA32 = sT3
    a(f"s_mov_b32 {sA32}, {32*AST}")
    a(f"s_and_b32 {sT0}, s2, 31\ns_mul_i32 {sT0}, {sT0}, {AST}\ns_lshl_b32 {sT1}, {sW}, 7\ns_add_u32 {sT1}, {sT1}, {sT0}\ns_add_u32 {sT1}, {sT1}, {WA}")
    a(f"v_mul_lo_u32 {W(7)}, {vHi3}, {sA32}\nv_lshl_add_u32 {t0}, {vLo3}, 4, {W(7)}\nv_add_u32 {vQG}, {sT1}, {t0}")
    a(f"s_lshl_b32 {sT0}, {sB}, 6\ns_add_u32 {sT0}, {sT0}, {sGa}\nv_lshl_add_u32 {vSG}, {vN}, 2, {sT0}")
    a(f"v_lshrrev_b32 {t0}, 3, {vN}\nv_lshl_add_u32 {t0}, {t0}, 2, {vGK}\nv_lshlrev_b32 {t0}, 7, {t0}\nv_lshl_add_u32 {t0}, {vLo3}, 4, {t0}")
    a(f"s_lshl_b32 {sT0}, {sW}, 10\ns_add_u32 {sT0}, {sT0}, {sGa}\nv_add_u32 {vOG}, {sT0}, {t0}")
    a(f"s_lshr_b32 {sT0}, {sW}, 1\ns_lshl_b32 {sT0}, {sT0}, 5\ns_add_u32 {sT0}, {sT0}, {sGa}\nv_lshl_add_u32 {t0}, {vLo3}, 2, {sT0}")
    sel(vLG, t3, t0, f"v_cmp_gt_u32 vcc, 8, {vN}")
    a(f"s_lshr_b32 {sT0}, {sJ}, 1\ns_lshl_b32 {sT0}, {sT0}, 14\ns_and_b32 {sT1}, {sW}, 1\ns_lshl_b32 {sT1}, {sT1}, 13\ns_add_u32 {sT0}, {sT0}, {sT1}")
    a(f"s_and_b32 {sT1}, {sJ}, 1\ns_lshl_b32 {sT1}, {sT1}, 12\ns_add_u32 {sT0}, {sT0}, {sT1}\ns_lshr_b32 {sT1}, {sW}, 1\ns_lshl_b32 {sT1}, {sT1}, 10\ns_add_u32 {sT0}, {sT0}, {sT1}")
    a(f"v_add_u32 {vXG}, {sT0}, {vVO}")
    a(f"v_lshlrev_b32 {t0}, 9, {vN}\nv_lshl_add_u32 {t0}, {vGK}, 4, {t0}")
    sel(W(39), t3, t0, f"v_cmp_gt_u32 vcc, 5, {vN}")
    sel(vQP, t3, t0, f"v_cmp_gt_u32 vcc, 4, {vN}")
    sel(vGP, t3, vVO, f"v_cmp_gt_u32 vcc, 16, {vL}")
    a(f"v_lshlrev_b32 {t0}, 3, {vN}")
    sel(vGCP, t3, t0, f"v_cmp_eq_u32 vcc, 1, {vGK}")
    a(f"s_lshr_b32 {sT1}, {sJ}, 2\ns_lshl_b32 {sT0}, {sB}, 1\ns_add_u32 {sT0}, {sT0}, {sT1}\ns_lshl_b32 {sT0}, {sT0}, 4\ns_lshl_b32 {sT1}, {sHL}, 11\ns_add_u32 {sT0}, {sT0}, {sT1}\ns_add_u32 {sT0}, {sT0}, {sGa}")
    a(f"v_lshrrev_b32 {t0}, 2, {vL}\nv_lshlrev_b32 {t0}, 7, {t0}\nv_and_b32 {t1}, 12, {vL4}\nv_add3_u32 {vOP}, {t0}, {t1}, {sT0}")
    a(f"v_lshrrev_b32 {t0}, 5, {vL}\nv_lshlrev_b32 {t0}, 13, {t0}\nv_and_b32 {t1}, 0x7c, {vL4}\nv_add3_u32 {vXP}, {t0}, {t1}, {sXp}")
    a(f"v_min_u32 {t0}, 4, {vN}\nv_mul_u32_u24 {t0}, {XSS}, {t0}\nv_lshl_add_u32 {t0}, {vGK}, 4, {t0}\nv_add_u32 {vXSR}, {LXS}, {t0}")
    a(f"v_and_b32 {t0}, 2, {vL}\nv_lshlrev_b32 {t0}, 4, {t0}\nv_and_b32 {t1}, 1, {vE}\nv_lshl_add_u32 {t0}, {t1}, 4, {t0}\nv_and_b32 {t1}, 4, {vL}\nv_lshl_add_u32 {t0}, {t1}, 1, {t0}")
    a(f"v_and_b32 {t1}, 1, {vL}\nv_lshl_add_u32 {t0}, {t1}, 2, {t0}\nv_and_b32 {t1}, 2, {vE}\ns_lshl_b32 {sT0}, {sW}, 6\ns_add_u32 {sT0}, {sT0}, {LQS}\nv_add3_u32 {t0}, {t0}, {t1}, {sT0}\nv_add_u32 {t2}, {LDUM}, {vVO}")
    sel(vQSW, t2, t0, f"v_cmp_gt_u32 vcc, 8, {vN}")
    a(f"v_and_b32 {t0}, 3, {vN}\nv_lshlrev_b32 {t0}, 4, {t0}\nv_lshl_add_u32 {t0}, {vGK}, 6, {t0}\nv_add_u32 {t0}, {LQS}, {t0}\nv_mov_b32 {t1}, {LZERO}\nv_lshrrev_b32 {W(8)}, 2, {vN}")
    for c, r in enumerate((vQR0, vQR1, vQR2, vQR3)): sel(r, t1, t0, f"v_cmp_eq_u32 vcc, {c}, {W(8)}")
    a(f"s_lshl_b32 {sT0}, {sW}, 9\ns_add_u32 {sT0}, {sT0}, {LOW}\nv_lshl_add_u32 {t0}, {vGK}, 2, {vN}\nv_and_b32 {t0}, 15, {t0}\nv_lshl_add_u32 {t0}, {vGK}, 4, {t0}\nv_lshl_add_u32 {vOWW}, {t0}, 3, {sT0}")
    a(f"v_and_b32 {t1}, 3, {vL}\nv_lshrrev_b32 {t0}, 2, {vL}\nv_lshl_add_u32 {t0}, {t1}, 2, {t0}\nv_and_b32 {t0}, 15, {t0}\nv_lshl_add_u32 {t0}, {t1}, 4, {t0}\nv_lshlrev_b32 {t0}, 3, {t0}\nv_add_u32 {vOWR}, {LOW}, {t0}")
    a(f"v_lshlrev_b32 {t0}, 3, {vLo3}\nv_add_u32 {vMLR}, {LML}, {t0}")
    a(f"v_lshlrev_b32 {t0}, 6, {vGK}\nv_lshl_add_u32 {t0}, {vN}, 3, {t0}\ns_lshl_b32 {sT0}, {sW}, 8\ns_add_u32 {sT0}, {sT0}, {LYW}\nv_add_u32 {t0}, {sT0}, {t0}\nv_and_b32 {t1}, 9, {vN}")
    sel(vYWW, t2, t0, f"v_cmp_eq_u32 vcc, 0, {t1}")
    a(f"v_and_b32 {t0}, 1, {vL}\nv_mul_u32_u24 {t0}, 0x5555, {t0}\nv_add_u32 {vIDX}, 0x8888, {t0}")
    vTRQ, vR1K = W(38), W(37)
    a(f"v_lshrrev_b32 {t0}, 2, {vN}\nv_lshl_add_u32 {t0}, {vGK}, 3, {t0}\nv_and_b32 {t1}, 3, {vN}\nv_lshlrev_b32 {t1}, 3, {t1}")
    a(f"v_lshl_add_u32 {t2}, {t0}, 8, {t1}\ns_lshl_b32 {sT0}, {sW}, 5\nv_add_u32 {vTRQ}, {sT0}, {t2}\nv_lshl_add_u32 {vTRW}, {t0}, 5, {t1}")
    a(f"v_lshrrev_b32 {t0}, 1, {vL}\nv_and_b32 {t1}, 1, {vL}\nv_lshlrev_b32 {t1}, 4, {t1}\nv_lshl_add_u32 {vR1K}, {t0}, 10, {t1}")
    a(f"s_lshl_b32 {sT0}, {sW}, 6\nv_add_u32 {t0}, {sT0}, {vL}\nv_mul_u32_u24 {t1}, 43691, {t0}\nv_lshrrev_b32 {t1}, 18, {t1}\nv_mul_u32_u24 {t2}, 6, {t1}\nv_sub_u32 {t0}, {t0}, {t2}")
    a(f"v_mul_u32_u24 {t1}, 2752, {t1}\nv_lshl_add_u32 {t1}, {t0}, 4, {t1}\ns_mul_i32 {sT0}, {sHL}, 3\ns_sub_u32 {sT0}, {sNT}, {sT0}\ns_lshl_b32 {sT0}, {sT0}, 1")
    sel(vDMA, t3, t1, f"v_cmp_gt_u32 vcc, {sT0}, {t0}")
    a(f"s_cmp_lt_u32 {sW}, 6\ns_cbranch_scc1 L_dma5\nv_mov_b32 {vDMA}, {vR1K}")
    a.label("L_dma5")
    a(f"s_cmp_eq_u32 {sW}, 0\ns_cbranch_scc1 L_role0\ns_cmp_eq_u32 {sW}, 1\ns_cbranch_scc1 L_role1")
    a(f"s_lshl_b32 {sT0}, {sJ}, 2\ns_add_u32 {sT0}, {sT0}, {sGa}\nv_lshlrev_b32 {t0}, 6, {vN}\nv_lshl_add_u32 {t0}, {vGK}, 5, {t0}\nv_add_u32 {t0}, {sT0}, {t0}")
    a(f"v_and_b32 {t1}, 0x2c, {vL}\nv_or_b32 {t1}, {sHL}, {t1}")
    sel(vA0, t3, t0, f"v_cmp_eq_u32 vcc, 0, {t1}")
    a(f"v_mov_b32 {vA1}, {t3}\nv_mov_b32 {vA2}, {t3}\nv_mov_b32 {vA3}, {t3}\ns_branch L_role2")
    a.label("L_role1")
    a(f"v_lshl_add_u32 {t1}, {vN}, 4, {sGa}\nv_lshl_add_u32 {t0}, {vGK}, 6, {t1}")
    sel(vA0, t3, t0, f"v_cmp_gt_u32 vcc, 4, {vN}")
    a(f"s_lshl_b32 {sT1}, {sNT}, 1\ns_sub_u32 {sT1}, {sT1}, 1\nv_add_u32 {t0}, 20, {vGK}\nv_min_u32 {t0}, {sT1}, {t0}\nv_lshl_add_u32 {t0}, {t0}, 6, {t1}\nv_cndmask_b32 {vA1}, {t3}, {t0}, vcc")
    a(f"v_lshrrev_b32 {t0}, 1, {vGK}\nv_lshlrev_b32 {t0}, 13, {t0}\nv_lshl_add_u32 {t0}, {vN}, 4, {t0}\nv_and_b32 {t1}, 1, {vGK}\nv_lshlrev_b32 {t1}, 6, {t1}\nv_add3_u32 {t0}, {t0}, {t1}, {sXp}")
    a(f"v_cndmask_b32 {vA2}, {t3}, {t0}, vcc\nv_mov_b32 {vA3}, {t3}\ns_branch L_role2")
    a.label("L_role0")
    a(f"s_lshr_b32 {sT0}, {sI}, 1\ns_mul_i32 {sT1}, {sT0}, 43\ns_lshr_b32 {sT1}, {sT1}, 7\ns_min_u32 {sT1}, {sT1}, 3\ns_mul_i32 {sOff}, {sT1}, 3\ns_sub_u32 {sT0}, {sT0}, {sOff}")
    a(f"s_lshl_b32 {sT1}, {sT1}, 3\ns_add_u32 {sT1}, {sT1}, {sG}\ns_mul_i32 {sT1}, {sT1}, {AST}\ns_add_u32 {sT1}, {sT1}, {WA}\nv_add_u32 {t0}, {sT1}, {W(7)}")
    a(f"s_and_b32 {sOff}, {sI}, 1\ns_lshl_b32 {sT1}, {sT0}, 2\ns_add_u32 {sT1}, {sT1}, {sOff}\ns_lshl_b32 {sT1}, {sT1}, 7\nv_lshl_add_u32 {t1}, {vLo3}, 4, {sT1}\nv_add_u32 {vA0}, {t0}, {t1}")
    a(f"s_lshl_b32 {sT1}, {sT0}, 1\ns_add_u32 {sT1}, {sT1}, {sOff}\ns_lshl_b32 {sT1}, {sT1}, 6\nv_lshl_add_u32 {t1}, {vLo3}, 3, {sT1}\nv_add_u32 {vA1}, {t0}, {t1}")
    a(f"v_lshl_add_u32 {t0}, {vN}, 2, {sGa}\nv_lshl_add_u32 {vA2}, {vE}, 6, {t0}")
    a(f"s_lshl_b32 {sT0}, {sI}, 6\ns_add_u32 {sT0}, {sT0}, {sGa}\nv_lshl_add_u32 {t0}, {vLo3}, 1, {sT0}\nv_lshl_add_u32 {t0}, {vE}, 4, {t0}\nv_and_b32 {t1}, 9, {vN}")
    sel(vA3, t3, t0, f"v_cmp_eq_u32 vcc, 0, {t1}")
    a.label("L_role2")
    a(f"s_cmp_lt_u32 {sW}, 4\ns_cbranch_scc1 L_early1")
    a(f"s_cmp_lg_u32 {sW}, 6\ns_cbranch_scc1 L_not6")
    a(f"v_mov_b32 {t0}, 0x3f803f80\nv_and_b32 {t1}, 0x7c, {vL4}\nds_write_b32 {t1}, {t0} offset:{LXS+4*XSS}")
    a(f"v_mov_b32 {t2}, 0\nv_and_b32 {t1}, 12, {vL4}\nds_write_b32 {t1}, {t2} offset:{LZERO}")
    a.label("L_not6")
    a(f"s_cmp_eq_u32 {sW}, 7\ns_cbranch_scc1 L_w7w\ns_waitcnt vmcnt(0)\ns_branch L_barA")
    a.label("L_w7w")
    a("s_waitcnt vmcnt(1)\ns_branch L_barA")
    a.label("L_early1")
    a(f"s_waitcnt vmcnt({4*nearly})")
    a.label("L_barA")
    a(f"ds_write_b16 {vXSW}, {vRES}\nv_lshlrev_b32 {vRES}, 16, {vRES}")
    a("s_waitcnt lgkmcnt(0)\ns_barrier")
    stamp("barA")
    a(f"ds_read_b128 {WR(0,4)}, {vXSR}\nds_read_b128 {WR(4,4)}, {vXSR} offset:64")
    for c in range(2): trread(aWQ + 4 * c, "a", vTRQ, LWQ + c * 8192, 1024)
    a(f"s_add_u32 {sEp}, {sEp}, 1\ns_lshl_b32 {sT1}, {sW}, 6\ns_add_u32 {sT1}, {sT1}, {sAr}\ns_movk_i32 {sT2}, 0xff\nv_mov_b32 {W(12)}, {sEp}")
    a("s_waitcnt lgkmcnt(0)")
    a(f"v_mfma_f32_16x16x32_bf16 {WR(8,4)}, {AR(aWQ)}, {WR(0,4)}, 0")
    a(f"v_mfma_f32_16x16x32_bf16 {WR(8,4)}, {AR(aWQ+4)}, {WR(4,4)}, {WR(8,4)}")
    for k in range(4): a(f"v_bfi_b32 {W(8+k)}, {sT2}, {W(12)}, {W(8+k)}")
    a(f"buffer_store_dwordx4 {WR(8,4)}, {W(39)}, {sWS}, {sT1} offen offset:{A_Q[0]} sc1")
    a(f"s_cmp_lt_u32 {sW}, 4\ns_cbranch_scc1 L_early2")
    a(f"s_cmp_lg_u32 {sW}, 7\ns_cbranch_scc1 L_not7")
    a(f"s_lshl_b32 {sT0}, {sG}, 5\ns_add_u32 {sT0}, {sT0}, {sI}\ns_lshl_b32 {sT0}, {sT0}, 2\ns_add_u32 {sT0}, {sT0}, {FLG}")
    a(f"s_and_b32 {sT1}, {sEp}, 0x0fffffff\ns_lshl_b32 {sT2}, {sXcc}, 28\ns_or_b32 {sT1}, {sT1}, {sT2}\nv_mov_b32 {t0}, {sT1}\nv_lshlrev_b32 {t1}, 24, {vL}")
    a("s_waitcnt vmcnt(1)")
    a(f"buffer_store_dword {t0}, {t1}, {sWS}, {sT0} offen sc1")
    a.label("L_not7")
    a("s_setprio 0")
    for t in range(nearly): ldK(t)
    a.label("L_early2")
    for t in range(nearly, 4): ldK(t)
    for t in range(4): ldV(t)
    a(f"s_lshl_b32 {sT0}, {sG}, 19\ns_lshl_b32 {sT1}, {sW}, 16\ns_add_u32 {sT0}, {sT0}, {sT1}\ns_lshl_b32 {sT1}, {sI}, 5\ns_add_u32 {sT0}, {sT0}, {sT1}")
    a(f"s_lshl_b32 {sT2}, {sW}, 11\ns_add_u32 m0, {sT2}, {LWO}")
    a(f"buffer_load_dwordx4 {vR1K}, {sWo}, {sT0} offen nt lds")
    a(f"s_add_u32 m0, {sT2}, {LWO+1024}\ns_add_u32 {sT0}, {sT0}, 32768")
    a(f"buffer_load_dwordx4 {vR1K}, {sWo}, {sT0} offen nt lds")
    stamp("issued")
    a(f"s_cmp_ge_u32 {sW}, 4\ns_cbranch_scc1 L_toC0")
    a(f"s_lshl_b32 {sT0}, {sB}, 10\nbuffer_load_dwordx4 {WR(12,4)}, {vVO}, {sX}, {sT0} offen")
    a(f"s_cmp_lg_u32 {sW}, 1\ns_cbranch_scc1 L_nowarm")
    a(f"s_add_u32 {sT0}, {sAr}, {A_G[0]}\ns_mul_i32 {sT1}, {sI}, 384\ns_add_u32 {sT1}, {sT1}, {sGa}\ns_add_u32 {sT1}, {sT1}, {G_LATE-15*128}")
    a(f"v_lshl_add_u32 {W(0)}, {vL}, 7, {sT0}\nv_lshl_add_u32 {W(1)}, {vL}, 7, {sT1}\nv_mov_b32 {W(2)}, {OOB}")
    sel(W(0), W(1), W(0), f"v_cmp_gt_u32 vcc, 15, {vL}")
    sel(W(0), W(2), W(0), f"v_cmp_gt_u32 vcc, 18, {vL}")
    a(f"buffer_load_dword {W(20)}, {W(0)}, {sWS}, 0 offen sc1")
    a.label("L_nowarm")
    a(f"s_lshl_b32 {sOff}, {sB}, 9\ns_mov_b32 {sOff2}, {FLG}")
    La = lab("arr")
    a(f"s_branch {La}b")
    a.label(La)
    a("s_sleep 16")
    a.label(La + "b")
    a(f"buffer_load_dwordx4 {WR(0,4)}, {vQG}, {sWS}, {sOff} offen sc1\nbuffer_load_dwordx4 {WR(4,4)}, {vQG}, {sWS}, 0 offen offset:2048 sc1")
    for k in range(4): a(f"v_mov_b32 {W(16+k)}, {sEp}")
    a(f"s_cmp_lg_u32 {sW}, 0\ns_cbranch_scc1 {La}c")
    a(f"buffer_load_dwordx4 {WR(16,4)}, {vVO}, {sWS}, {sOff2} offen sc1")
    a.label(La + "c")
    a(f"s_add_u32 {sCnt}, {sCnt}, 1\ns_cmp_gt_u32 {sCnt}, {limit}\ns_cbranch_scc1 L_end")
    a(f"s_waitcnt vmcnt(0)")
    a(f"v_xor_b32 {W(9)}, {sEp}, {W(0)}")
    for k in range(1, 8): a(f"v_xor_b32 {W(11)}, {sEp}, {W(k)}\nv_or_b32 {W(9)}, {W(9)}, {W(11)}")
    a(f"v_xor_b32 {W(10)}, {sEp}, {W(16)}")
    for k in range(1, 4): a(f"v_xor_b32 {W(11)}, {sEp}, {W(16+k)}\nv_or_b32 {W(10)}, {W(10)}, {W(11)}")
    a(f"v_and_b32 {W(9)}, 0xff, {W(9)}\nv_and_b32 {W(10)}, 0x0fffffff, {W(10)}\nv_or_b32 {W(9)}, {W(9)}, {W(10)}")
    a(f"v_cmp_ne_u32 vcc, 0, {W(9)}\ns_cbranch_vccnz {La}")
    stamp("q0 got")
    a(f"s_cmp_lg_u32 {sW}, 0\ns_cbranch_scc1 L_nomode")
    a(f"s_lshl_b32 {sT2}, {sXcc}, 28\nv_xor_b32 {W(10)}, {sT2}, {W(16)}")
    for k in range(1, 4): a(f"v_xor_b32 {W(11)}, {sT2}, {W(16+k)}\nv_or_b32 {W(10)}, {W(10)}, {W(11)}")
    a(f"v_lshrrev_b32 {W(10)}, 28, {W(10)}\nv_cmp_ne_u32 vcc, 0, {W(10)}\ns_lshl_b32 {sT0}, {sG}, 3\ns_nop 0\ns_lshr_b64 s[4:5], vcc, {sT0}\ns_and_b32 s4, s4, 0xff\ns_cselect_b32 {sT0}, 0, 1")
    a(f"v_mov_b32 {W(8)}, {sT0}\nv_mov_b32 {W(9)}, {LMODE}\nds_write_b32 {W(9)}, {W(8)}")
    a.label("L_nomode")
    for k in range(8): a(f"v_and_b32 {W(k)}, 0xffffff00, {W(k)}")
    red8(W(0), W(1), W(2), W(3))
    red8(W(4), W(5), W(6), W(7))
    a(f"v_mov_b32 {vCSQ}, {W(4)}")
    a(f"v_mov_b32 {W(4)}, 0\nv_mov_b32 {W(5)}, 0\nv_mov_b32 {W(6)}, 0x3f803f80")
    for k in range(4): a(f"v_dot2_f32_bf16 {W(4)}, {W(12+k)}, {W(12+k)}, {W(4)}\nv_dot2_f32_bf16 {W(5)}, {W(12+k)}, {W(6)}, {W(5)}")
    a("s_nop 3")
    lo8("v_add_f32", [W(4), W(5)])
    for r in (W(4), W(5)):
        a(f"v_add_f32_dpp {r}, {r}, {r} row_ror:8 {DPP}")
        a(f"v_mov_b32 {W(7)}, {r}\nv_permlane16_swap_b32 {r}, {W(7)}\nv_add_f32 {r}, {r}, {W(7)}")
        a(f"v_mov_b32 {W(7)}, {r}\nv_permlane32_swap_b32 {r}, {W(7)}\nv_add_f32 {r}, {r}, {W(7)}")
    a(f"v_mul_f32 {W(6)}, {f32(1/512)}, {W(5)}\nv_mul_f32 {W(7)}, {f32(1/512)}, {W(4)}")
    ln_fin(W(6), W(7))
    a(f"v_fma_f32 {W(0)}, -{W(6)}, {vCSQ}, {W(0)}\nv_mul_f32 {W(7)}, {f32(C2)}, {W(7)}\nv_mul_f32 {W(0)}, {W(0)}, {W(7)}")
    a(f"v_cvt_pk_bf16_f32 {W(0)}, {W(0)}, {W(0)}\nds_write_b16 {vQSW}, {W(0)}")

    def q_gather():
        a(f"s_lshl_b32 {sOff}, {sB}, 9\ns_add_u32 {sOff}, {sOff}, {A_Q[1]}\ns_movk_i32 {sOff2}, {G_ST['Q1']}")
        poll(f"buffer_load_dwordx4 {WR(0,4)}, {vQG}, {sWS}, {sOff} offen sc1\n"
             f"buffer_load_dword {W(4)}, {vSG}, {sWS}, {sOff2} offen sc1", [W(k) for k in range(5)])
        stamp("qgot1")
        s_, mu = W(4), W(5)
        a(f"v_mul_f32 {s_}, {f32(1/512)}, {s_}")
        a(f"v_permlane32_swap_b32 {W(0)}, {W(1)}\nv_permlane32_swap_b32 {W(2)}, {W(3)}")
        a(f"v_add_f32_dpp {s_}, {s_}, {s_} {LO8[0]} {DPP}")
        a(f"v_add_f32 {W(0)}, {W(0)}, {W(1)}\nv_add_f32 {W(2)}, {W(2)}, {W(3)}")
        a(f"v_add_f32_dpp {s_}, {s_}, {s_} {LO8[1]} {DPP}")
        a(f"v_permlane16_swap_b32 {W(0)}, {W(2)}")
        a(f"v_add_f32_dpp {s_}, {s_}, {s_} {LO8[2]} {DPP}")
        a(f"v_add_f32 {W(0)}, {W(0)}, {W(2)}")
        a(f"v_mov_b32_dpp {mu}, {s_} row_ror:8 {DPP}")
        a(f"v_add_f32_dpp {W(0)}, {W(0)}, {W(0)} row_ror:8 {DPP}")
        ln_fin(mu, s_)
        a(f"v_fma_f32 {W(0)}, -{mu}, {vCSQ}, {W(0)}\nv_mul_f32 {W(0)}, {f32(C2)}, {W(0)}\nv_mul_f32 {W(0)}, {W(0)}, {s_}")
        a(f"v_cvt_pk_bf16_f32 {W(0)}, {W(0)}, {W(0)}\nds_write_b16 {vQSW}, {W(0)}")

    SD, OA = 16, 24
    def attn_zero():
        for k in range(24): a(f"v_mov_b32 {W(SD+k)}, 0")
    def attention(L):
        for c, r in enumerate((vQR0, vQR1, vQR2, vQR3)): a(f"ds_read_b128 {WR(4*c,4)}, {r}")
        if L == 0:
            a(f"v_mov_b32 {W(40)}, {LMODE}\nds_read_b32 {W(40)}, {W(40)}")
            a("s_waitcnt vmcnt(18) lgkmcnt(0)")
            a(f"v_readfirstlane_b32 {sMode}, {W(40)}")
            a(f"s_cmp_ge_u32 {sW}, 4\ns_cbranch_scc1 L_noclr")
            a(f"v_mov_b32 {W(20)}, {OOB}\ns_cmp_eq_u32 {sW}, 3\ns_cbranch_scc1 L_clr3")
            for k in range(4): a(f"v_mov_b32 {W(16+k)}, -1")
            a(f"s_lshl_b32 {sT0}, {sW}, 10\ns_add_u32 {sT0}, {sT0}, {sAr}\ns_add_u32 {sT0}, {sT0}, {A_G[0]}")
            a(f"s_mul_i32 {sT1}, {sI}, 384\ns_add_u32 {sT1}, {sT1}, {sGa}\ns_add_u32 {sT1}, {sT1}, {G_LATE}")
            a(f"s_cmp_eq_u32 {sW}, 0\ns_cselect_b32 {sT2}, 64, 56\ns_cmp_eq_u32 {sW}, 2\ns_cselect_b32 {sT2}, 24, {sT2}\ns_cselect_b32 {sT0}, {sT1}, {sT0}")
            sel(W(21), W(20), W(41), f"v_cmp_gt_u32 vcc, {sT2}, {vL}")
            lstore([f"buffer_store_dwordx4 {WR(16,4)}, {W(21)}, {sWS}, {sT0} offen"])
            a("s_branch L_noclr")
            a.label("L_clr3")
            a(f"s_lshl_b32 {sT0}, {sI}, 8\nv_lshl_add_u32 {W(21)}, {vL}, 7, {sT0}\nv_mov_b32 {W(22)}, {G_LSE[0]}")
            sel(W(21), W(22), W(21), f"v_cmp_gt_u32 vcc, 2, {vL}")
            sel(W(21), W(20), W(21), f"v_cmp_gt_u32 vcc, 3, {vL}")
            a(f"buffer_load_dword {W(42)}, {W(21)}, {sWS}, {sGa} offen sc1")
            a.label("L_noclr")
            a("s_nop 1")
            attn_zero()
        elif prio:
            a(f"s_cmp_ge_u32 {sW}, 4\ns_cbranch_scc1 L_np\ns_setprio 1")
            a.label("L_np")
        for g_ in range(2):
            for t in range(4):
                if L == 1 and g_ == 0: a(f"s_waitcnt lgkmcnt({3-t})")
                a(f"v_smfmac_f32_16x16x64_bf16 {WR(SD+4*g_,4)}, {WR(4*t,4)}, a[{32*g_+8*t}:{32*g_+8*t+7}], {vIDX}")
        if fine and L == 1: stamp("qk done")
        s0, s1, m, mt, l, lt = W(16), W(20), W(8), W(9), W(10), W(11)
        a(f"s_lshl_b32 {sT0}, {sW}, 3\nv_mov_b32 {W(40)}, 64\nv_writelane_b32 {W(40)}, {sT0}, 0")
        a(f"v_add_f32 {W(18)}, {W(18)}, {W(19)}\nv_add_f32 {s0}, {W(16)}, {W(17)}")
        a(f"v_add_f32 {W(22)}, {W(22)}, {W(23)}\nv_add_f32 {s1}, {W(20)}, {W(21)}")
        a(f"v_add_f32_dpp {s0}, {W(18)}, {s0} quad_perm:[1,1,3,3] {DPP}\nv_add_f32_dpp {s1}, {W(22)}, {s1} quad_perm:[1,1,3,3] {DPP}")
        a(f"v_max_f32 {m}, {s0}, {s1}")
        for mm in ("quad_perm:[2,3,0,1]", "row_ror:4", "row_ror:8"): a(f"v_max_f32_dpp {m}, {m}, {m} {mm} {DPP}")
        a(f"v_mov_b32 {mt}, {m}\nv_permlane16_swap_b32 {m}, {mt}\nv_max_f32 {m}, {m}, {mt}")
        a(f"v_mov_b32 {mt}, {m}\nv_permlane32_swap_b32 {m}, {mt}\nv_max_f32 {m}, {m}, {mt}")
        a(f"v_sub_f32 {s0}, {s0}, {m}\nv_sub_f32 {s1}, {s1}, {m}\nv_exp_f32 {s0}, {s0}\nv_exp_f32 {s1}, {s1}")
        a(f"v_mov_b32_dpp {W(17)}, {s0} quad_perm:[2,2,2,2] {DPP}\nv_mov_b32_dpp {W(21)}, {s1} quad_perm:[2,2,2,2] {DPP}")
        a(f"v_cvt_pk_bf16_f32 {W(17)}, {s0}, {W(17)}\nv_cvt_pk_bf16_f32 {W(21)}, {s1}, {W(21)}\nv_add_f32 {l}, {s0}, {s1}")
        def pb(g_, i): return f"v_mov_b32_dpp {W(4*g_+i)}, {W(17+4*g_)} row_newbcast:{4*i} {DPP}"
        for i in range(4): a(pb(0, i))
        a(pb(1, 0)); a(pb(1, 1))
        if fine and L == 1: stamp("sm done")
        fill = [[pb(1, 2), pb(1, 3)], [f"v_add_f32_dpp {l}, {l}, {l} quad_perm:[2,3,0,1] {DPP}"], [f"v_add_f32_dpp {l}, {l}, {l} row_ror:4 {DPP}"], [f"v_add_f32_dpp {l}, {l}, {l} row_ror:8 {DPP}"],
                [f"v_mov_b32 {lt}, {l}"], [f"v_permlane16_swap_b32 {l}, {lt}"], [f"v_add_f32 {l}, {l}, {lt}", f"v_mov_b32 {lt}, {l}"], [f"v_permlane32_swap_b32 {l}, {lt}", f"v_add_f32 {mt}, {l}, {lt}",
                 f"ds_write_b64 {W(40)}, {WR(8,2)} offset:{LML}"]]
        for g_ in range(2):
            if L == 0:
                for hf in range(2):
                    t = 2 * g_ + hf
                    a(f"s_waitcnt vmcnt({2+4*(3-t)})")
                    for c in range(4):
                        for u in range(c + 1, 4): a(f"v_swap_b32 v{vVld(t,c)+u}, v{vVld(t,u)+c}")
            for u in range(4):
                b0 = 64 + 32 * g_ + 8 * u
                a(f"v_smfmac_f32_16x16x64_bf16 {WR(OA+4*u,4)}, {WR(4*g_,4)}, v[{b0}:{b0+7}], {vIDX}")
                for x in fill[4 * g_ + u]: a(x)
        if fine and L == 1: stamp("pv done")
        for u in range(1, 4):
            for e in range(2): a(f"v_mov_b32_dpp {W(OA+e)}, {W(OA+4*u+e)} quad_perm:[0,1,2,3] row_mask:{hex(1<<u)} bank_mask:0xf")
        a(f"ds_write_b64 {vOWW}, {WR(OA,2)}")
        if L == 1 and prio: a("s_setprio 0")
        if L == 0:
            a(f"s_cmp_ge_u32 {sW}, 4\ns_cbranch_scc1 L_noack\ns_waitcnt vmcnt(0)")
            a.label("L_noack")
        a("s_waitcnt lgkmcnt(0)\ns_barrier")
        stamp(f"barD{L}")
        Ls = lab("ocomb")
        a(f"s_cmp_lg_u32 {sW}, 0\ns_cbranch_scc1 {Ls}")
        a(f"ds_read_b64 {WR(16,2)}, {vMLR}")
        for k in range(4): a(f"ds_read2st64_b64 {WR(4*k,4)}, {vOWR} offset0:{2*k} offset1:{2*k+1}")
        a(f"s_movk_i32 {sT0}, {G_OD[L]}\ns_lshr_b32 {sT1}, {sJ}, 2\ns_lshl_b32 {sT2}, {sB}, 1\ns_add_u32 {sT1}, {sT1}, {sT2}\ns_lshl_b32 {sT2}, {sHL}, 3\ns_add_u32 {sT1}, {sT1}, {sT2}")
        a(f"s_lshl_b32 {sT1}, {sT1}, 2\ns_add_u32 {sT1}, {sT1}, {sGa}\ns_add_u32 {sT1}, {sT1}, {G_LSE[L]}\nv_lshlrev_b32 {W(24)}, 24, {vL}")
        a("s_waitcnt lgkmcnt(4)")
        M, F, FL = W(18), W(19), W(20)
        a(f"v_max_f32_dpp {M}, {W(16)}, {W(16)} {LO8[0]} {DPP}")
        for mm in LO8[1:]: a(f"v_max_f32_dpp {M}, {M}, {M} {mm} {DPP}")
        a(f"v_sub_f32 {F}, {W(16)}, {M}\nv_exp_f32 {F}, {F}\nv_mul_f32 {FL}, {F}, {W(17)}")
        a("s_waitcnt lgkmcnt(0)")
        ex = {0: f"v_add_f32_dpp {FL}, {FL}, {FL} {LO8[0]} {DPP}", 1: f"v_add_f32_dpp {FL}, {FL}, {FL} {LO8[1]} {DPP}", 2: f"v_add_f32_dpp {FL}, {FL}, {FL} {LO8[2]} {DPP}",
              3: f"v_rcp_f32 {W(21)}, {FL}", 4: f"v_log_f32 {FL}, {FL}", 5: f"v_add_f32 {M}, {M}, {FL}"}
        for w in range(8):
            op = "v_mul_f32_dpp" if w == 0 else "v_fmac_f32_dpp"
            a(f"{op} {W(22)}, {F}, {W(2*w)} row_newbcast:{w} {DPP}\n{op} {W(23)}, {F}, {W(2*w+1)} row_newbcast:{w} {DPP}")
            if w in ex: a(ex[w])
        a(f"v_mul_f32 {W(22)}, {W(22)}, {W(21)}\nv_mul_f32 {W(23)}, {W(23)}, {W(21)}")
        a(f"v_cvt_pk_bf16_f32 {W(22)}, {W(22)}, {W(23)}\nv_min_u32 {W(22)}, -2, {W(22)}")
        lstore([f"buffer_store_dword {W(22)}, {vOP}, {sWS}, {sT0} offen", f"buffer_store_dword {M}, {W(24)}, {sWS}, {sT1} offen"])
        stamp(f"opub{L}")
        a.label(Ls)

    def wo_stage(L):
        if L == 0:
            a(f"s_lshl_b32 {sT0}, {sW}, 11\nv_add_u32 {W(5)}, {sT0}, {vTRW}")
            a(f"s_cmp_lt_u32 {sW}, 4\ns_cbranch_scc1 L_wook\ns_waitcnt vmcnt(0)")
            a.label("L_wook")
            for c in range(2): trread(aWO + 4 * c, "a", W(5), LWO + c * 1024, 128)
        a(f"s_movk_i32 {sOff}, {G_OD[L]}\ns_movk_i32 {sOff2}, {G_LSE[L]}")
        poll(f"buffer_load_dwordx4 {WR(0,4)}, {vOG}, {sWS}, {sOff} offen sc1\n"
             f"buffer_load_dword {W(4)}, {vLG}, {sWS}, {sOff2} offen sc1", [W(k) for k in range(5)])
        stamp(f"ogot{L}")
        if L == 0: a("s_waitcnt lgkmcnt(0)")
        a(f"v_mfma_f32_16x16x32_bf16 {WR(8,4)}, {AR(aWO)}, {WR(0,4)}, 0")
        a(f"v_mfma_f32_16x16x32_bf16 {WR(12,4)}, {AR(aWO+4)}, {WR(0,4)}, 0")
        a(f"v_sub_f32_dpp {W(5)}, {W(4)}, {W(4)} quad_perm:[1,0,3,2] {DPP}\nv_exp_f32 {W(5)}, {W(5)}\nv_add_f32 {W(5)}, 1.0, {W(5)}\nv_rcp_f32 {W(5)}, {W(5)}")
        for r in range(4): a(f"v_add_f32_dpp {W(8+r)}, {W(12+r)}, {W(8+r)} row_ror:8 {DPP}")
        for r in range(4): a(f"v_mul_f32 {W(8+r)}, {W(8+r)}, {W(5)}")
        for r in range(4): a(f"v_add_f32_dpp {W(8+r)}, {W(8+r)}, {W(8+r)} quad_perm:[1,0,3,2] {DPP}")
        a(f"ds_write_b128 {vYWW}, {WR(8,4)}")
        a("s_waitcnt lgkmcnt(0)\ns_barrier")
        Ls = lab("ysum")
        a(f"s_cmp_lg_u32 {sW}, 7\ns_cbranch_scc1 {Ls}")
        a(f"v_add_u32 {W(8)}, {LYW}, {vL4}")
        for k in range(4): a(f"ds_read2st64_b32 {WR(2*k,2)}, {W(8)} offset0:{2*k} offset1:{2*k+1}")
        a(f"s_mov_b32 {sT0}, {XB[2*L]}")
        a("s_waitcnt lgkmcnt(2)")
        a(f"v_add_f32 {W(0)}, {W(0)}, {W(1)}\nv_add_f32 {W(2)}, {W(2)}, {W(3)}")
        a("s_waitcnt lgkmcnt(0)")
        a(f"v_add_f32 {W(4)}, {W(4)}, {W(5)}\nv_add_f32 {W(6)}, {W(6)}, {W(7)}\nv_add_f32 {W(0)}, {W(0)}, {W(2)}\nv_add_f32 {W(4)}, {W(4)}, {W(6)}\nv_add_f32 {W(0)}, {W(0)}, {W(4)}")
        a(f"buffer_store_dword {W(0)}, {vXP}, {sWS}, {sT0} offen sc1")
        if L == 1 and ackbar: a("s_waitcnt vmcnt(0)")
        a.label(Ls)
        if L == 0:
            a("s_barrier")
            stamp(f"ypub{L}")
            Lg, Lg2 = lab("gudma"), lab("gudmb")
            a(f"s_cmp_ge_u32 {sW}, 6\ns_cbranch_scc1 {Lg}")
            a(f"s_lshl_b32 {sT2}, {sW}, 10\ns_add_u32 m0, {sT2}, {LGU}")
            a(f"buffer_load_dwordx4 {vDMA}, {sWg}, {sGUo} offen nt lds")
            a(f"s_add_u32 m0, {sT2}, {LGU+6144}")
            a(f"buffer_load_dwordx4 {vDMA}, {sWu}, {sGUo} offen nt lds")
            a(f"s_branch {Lg2}")
            a.label(Lg)
            a(f"s_cmp_eq_u32 {sW}, 7\ns_cbranch_scc1 {Lg}k")
            for k in range(4): a(f"v_mov_b32 {W(8+k)}, -1")
            a(f"v_lshlrev_b32 {W(12)}, 4, {vL}")
            lstore([f"buffer_store_dwordx4 {WR(8,4)}, {W(12)}, {sWS}, {sAr} offen offset:{A_Q[1]}", f"buffer_store_dwordx4 {WR(8,4)}, {W(12)}, {sWS}, {sAr} offen offset:{A_Q[1]+1024}"])
            a(f"s_mov_b32 {sT0}, {XB[2]}\ns_mov_b32 {sT1}, {XB[3]}")
            a(f"buffer_store_dword {W(8)}, {vXP}, {sWS}, {sT0} offen sc1\nbuffer_store_dword {W(8)}, {vXP}, {sWS}, {sT1} offen sc1")
            a(f"s_branch {Lg2}")
            a.label(Lg + "k")
            if ackbar: a("s_waitcnt vmcnt(0)")
            a.label(Lg2)
        if ackbar: a("s_barrier")
        stamp(f"yack{L}")

    def x_gather(off, once="", nonce=0):
        a(f"s_mov_b32 {sOff}, {off}")
        if xdelay: a(f"s_sleep {xdelay}")
        poll(f"buffer_load_dwordx4 {WR(0,4)}, {vXG}, {sWS}, {sOff} offen sc1", [W(k) for k in range(4)], once, nonce)
        red8(W(0), W(1), W(2), W(3))
        a(f"v_add_f32 {W(0)}, {W(0)}, {vRES}\nv_cvt_pk_bf16_f32 {W(0)}, {W(0)}, {W(0)}")

    def xs_publish():
        a(f"ds_write_b16 {vXSW}, {W(0)}\nv_and_b32 {vRES}, 0xffff0000, {W(0)}")
        a("s_waitcnt lgkmcnt(0)\ns_barrier")
        a(f"ds_read_b128 {WR(0,4)}, {vXSR}\nds_read_b128 {WR(4,4)}, {vXSR} offset:64")

    def gram_store(key):
        a(f"v_mfma_f32_16x16x32_bf16 {WR(12,4)}, {WR(0,4)}, {WR(0,4)}, 0")
        a(f"v_mfma_f32_16x16x32_bf16 {WR(12,4)}, {WR(4,4)}, {WR(4,4)}, {WR(12,4)}")
        a(f"s_movk_i32 {sT0}, {G_ST[key]}")
        a(f"v_cndmask_b32 {W(12)}, {W(12)}, {W(13)}, {sM1}\nv_cndmask_b32 {W(12)}, {W(12)}, {W(14)}, {sM2}\nv_cndmask_b32 {W(12)}, {W(12)}, {W(15)}, {sM3}")
        lstore([f"buffer_store_dword {W(12)}, {vA0}, {sWS}, {sT0} offen"])

    def gu_stage(L):
        if L == 0:
            Lx, Ly = lab("xg"), lab("xh")
            a(f"s_cmp_ge_u32 {sW}, 6\ns_cbranch_scc1 {Lx}")
            x_gather(XB[0])
            a(f"s_branch {Ly}")
            a.label(Lx)
            a(f"s_and_b32 {sT2}, {sW}, 1\ns_mul_i32 {sT2}, {sT2}, 3072")
            once = ""
            for k in range(3):
                once += f"s_add_u32 m0, {sT2}, {LWD+k*1024}\n"
                if k: once += f"s_add_u32 {sWDo}, {sWDo}, 32768\n"
                once += f"buffer_load_dwordx4 {vDMA}, {sWd}, {sWDo} offen nt lds\n"
            x_gather(XB[0], once, 3)
            a.label(Ly)
        else:
            x_gather(XB[2])
        stamp(f"ygot{L}")
        if L == 0:
            a(f"v_and_b32 {W(9)}, 24, {vTRW}\nv_sub_u32 {W(8)}, {vTRW}, {W(9)}\nv_mul_u32_u24 {W(8)}, 3, {W(8)}")
            a(f"s_lshr_b32 {sT0}, {sW}, 1\ns_lshl_b32 {sT0}, {sT0}, 5\ns_and_b32 {sT1}, {sW}, 1\ns_mul_i32 {sT1}, {sT1}, 6144\ns_add_u32 {sT0}, {sT0}, {sT1}\nv_add3_u32 {W(8)}, {W(8)}, {W(9)}, {sT0}")
        xs_publish()
        L6, Ld = lab("gu6"), lab("gud")
        a(f"s_cmp_ge_u32 {sW}, 6\ns_cbranch_scc1 {L6}")
        if L == 0:
            for c in range(2): trread(aGU + 4 * c, "a", W(8), LGU + c * 3072, 384)
        a(f"s_add_u32 {sT0}, {sAr}, {A_G[L]}\ns_lshl_b32 {sT1}, {sW}, 8\ns_add_u32 {sT1}, {sT1}, {sT0}")
        a(f"s_lshr_b32 {sT2}, {sW}, 1\ns_lshl_b32 {sT2}, {sT2}, 7\ns_add_u32 {sT0}, {sT0}, {sT2}\ns_and_b32 {sT2}, {sW}, 1\ns_lshl_b32 {sT2}, {sT2}, 2\ns_add_u32 {sT2}, {sT2}, {sT0}")
        a("s_waitcnt lgkmcnt(1)" if L == 1 else "s_waitcnt lgkmcnt(2)")
        a(f"v_mfma_f32_16x16x32_bf16 {WR(8,4)}, {WR(0,4)}, {AR(aGU)}, 0")
        a("s_waitcnt lgkmcnt(0)")
        a(f"v_mfma_f32_16x16x32_bf16 {WR(8,4)}, {WR(4,4)}, {AR(aGU+4)}, {WR(8,4)}")
        lstore([f"buffer_store_dwordx4 {WR(8,4)}, {vGP}, {sWS}, {sT1} offen", f"buffer_store_dword {W(8)}, {vGCP}, {sWS}, {sT2} offen offset:{GCS}"])
        a(f"s_branch {Ld}")
        a.label(L6)
        a(f"s_waitcnt lgkmcnt(0)\ns_cmp_lg_u32 {sW}, 7\ns_cbranch_scc1 {Ld}")
        gram_store(f"G{L}")
        a.label(Ld)
        stamp(f"gupub{L}")

    def ffn_tail(L):
        Lw1, Lh = lab("w1"), lab("barH")
        if L == 0:
            Lq = lab("wdw")
            a(f"s_cmp_lt_u32 {sW}, 6\ns_cbranch_scc1 {Lq}\ns_waitcnt vmcnt(0)")
            a.label(Lq)
        a(f"s_cmp_lg_u32 {sW}, 0\ns_cbranch_scc1 {Lw1}")
        if L == 0: a("s_barrier")
        a(f"s_lshl_b32 {sT0}, {sNT}, 1\ns_cmp_ge_u32 {sI}, {sT0}\ns_cbranch_scc1 {Lh}")
        a(f"s_movk_i32 {sOff}, {A_G[L]}\ns_movk_i32 {sOff2}, {G_ST['G%d'%L]}\ns_movk_i32 {sT0}, {G_H[L]}")
        poll(f"buffer_load_dwordx4 {WR(0,4)}, {vA0}, {sWS}, {sOff} offen sc1\n"
             f"buffer_load_dwordx4 {WR(4,4)}, {vA0}, {sWS}, {sOff} offen offset:256 sc1\n"
             f"buffer_load_dwordx2 {WR(10,2)}, {vA1}, {sWS}, {sOff} offen offset:{GCS} sc1\n"
             f"buffer_load_dword {W(8)}, {vA2}, {sWS}, {sOff2} offen sc1", [W(k) for k in (0, 1, 2, 3, 4, 5, 6, 7, 8, 10, 11)])
        stamp(f"gugot{L}")
        s_, mu, cg, cu = W(8), W(9), W(10), W(11)
        a(f"v_mul_f32 {s_}, {f32(1/512)}, {s_}")
        a(f"v_permlane32_swap_b32 {cg}, {cu}\nv_permlane32_swap_b32 {W(0)}, {W(1)}")
        a(f"v_add_f32_dpp {s_}, {s_}, {s_} {LO8[0]} {DPP}")
        a(f"v_add_f32 {cg}, {cg}, {cu}\nv_permlane32_swap_b32 {W(2)}, {W(3)}")
        a(f"v_add_f32_dpp {s_}, {s_}, {s_} {LO8[1]} {DPP}")
        a(f"v_mov_b32 {cu}, {cg}\nv_permlane32_swap_b32 {W(4)}, {W(5)}")
        a(f"v_add_f32_dpp {s_}, {s_}, {s_} {LO8[2]} {DPP}")
        a(f"v_permlane16_swap_b32 {cg}, {cu}\nv_permlane32_swap_b32 {W(6)}, {W(7)}")
        a(f"v_mov_b32_dpp {mu}, {s_} row_ror:8 {DPP}")
        a(f"v_add_f32 {cg}, {cg}, {cu}\nv_add_f32 {W(0)}, {W(0)}, {W(1)}\nv_add_f32 {W(2)}, {W(2)}, {W(3)}")
        a(f"v_add_f32_dpp {cg}, {cg}, {cg} row_ror:8 {DPP}")
        a(f"v_add_f32 {W(4)}, {W(4)}, {W(5)}\nv_add_f32 {W(6)}, {W(6)}, {W(7)}")
        a(f"v_mov_b32 {cu}, {cg}\nv_permlane16_swap_b32 {W(0)}, {W(2)}")
        a(f"v_fma_f32 {s_}, -{mu}, {mu}, {s_}\nv_permlane16_swap_b32 {W(4)}, {W(6)}\nv_permlane32_swap_b32 {cg}, {cu}")
        a(f"v_max_f32 {s_}, 0, {s_}\nv_add_f32 {W(0)}, {W(0)}, {W(2)}\nv_add_f32 {W(4)}, {W(4)}, {W(6)}\nv_add_f32 {s_}, {f32(1e-5)}, {s_}")
        a(f"v_add_f32_dpp {W(0)}, {W(0)}, {W(0)} row_ror:8 {DPP}\nv_rsq_f32 {s_}, {s_}\nv_add_f32_dpp {W(4)}, {W(4)}, {W(4)} row_ror:8 {DPP}")
        g, u = W(0), W(4)
        k1 = -2.0 * math.sqrt(2.0 / math.pi) * math.log2(math.e); k2 = k1 * 0.044715
        a(f"v_fma_f32 {g}, -{mu}, {cg}, {g}\nv_mov_b32 {W(2)}, {f32(k1)}\nv_mul_f32 {g}, {g}, {s_}\nv_mul_f32 {W(1)}, {g}, {g}")
        a(f"v_fmac_f32 {W(2)}, {f32(k2)}, {W(1)}\nv_mul_f32 {W(2)}, {W(2)}, {g}\nv_exp_f32 {W(2)}, {W(2)}\nv_fma_f32 {u}, -{mu}, {cu}, {u}")
        a(f"v_add_f32 {W(2)}, 1.0, {W(2)}\nv_rcp_f32 {W(2)}, {W(2)}\nv_mul_f32 {u}, {u}, {s_}\nv_mul_f32 {g}, {g}, {W(2)}\nv_mul_f32 {u}, {u}, {g}")
        a(f"v_mov_b32_dpp {W(5)}, {u} quad_perm:[1,0,3,2] {DPP}\nv_cvt_pk_bf16_f32 {u}, {u}, {W(5)}\nv_min_u32 {u}, -2, {u}")
        lstore([f"buffer_store_dword {u}, {vA3}, {sWS}, {sT0} offen"])
        stamp(f"hpub{L}")
        a(f"s_branch {Lh}")
        a.label(Lw1)
        if L == 0: a("s_barrier")
        a(f"s_cmp_lg_u32 {sW}, 1\ns_cbranch_scc1 {Lh}")
        if L == 0:
            for c in range(6): trread(aWD + 4 * c, "a", vTRW, LWD + c * 1024, 128)
        a(f"s_movk_i32 {sOff}, {G_H[L]}\ns_mov_b32 {sT0}, {XB[2*L+1]}")
        ld = ""
        for c in range(5): ld += f"buffer_load_dwordx4 {WR(4*c,4)}, {vA0}, {sWS}, {sOff} offen offset:{c*256} sc1\n"
        ld += f"buffer_load_dwordx4 {WR(20,4)}, {vA1}, {sWS}, {sOff} offen sc1"
        poll(ld, [W(k) for k in range(24)])
        if L == 0: a("s_waitcnt lgkmcnt(0)")
        for c in range(6):
            a(f"v_mfma_f32_16x16x32_bf16 {WR(24,4)}, {AR(aWD+4*c)}, {WR(4*c,4)}, {'0' if c == 0 else WR(24,4)}")
        a(f"buffer_store_dwordx4 {WR(24,4)}, {vA2}, {sWS}, {sT0} offen sc1")
        if ackbar: a("s_waitcnt vmcnt(0)")
        a.label(Lh)
        a("s_barrier")
        stamp(f"zack{L}")

    def q_stage():
        Lc = lab("gclr")
        a(f"s_cmp_lg_u32 {sW}, 6\ns_cbranch_scc1 {Lc}")
        for k in range(4): a(f"v_mov_b32 {W(8+k)}, -1")
        a(f"v_lshlrev_b32 {W(12)}, 4, {vL}")
        lstore([f"buffer_store_dwordx4 {WR(8,4)}, {W(12)}, {sWS}, {sAr} offen offset:{A_G[1]}", f"buffer_store_dwordx4 {WR(8,4)}, {W(12)}, {sWS}, {sAr} offen offset:{A_G[1]+896}"])
        a.label(Lc)
        x_gather(XB[1])
        stamp("zgot0")
        xs_publish()
        a(f"s_lshl_b32 {sT1}, {sW}, 6\ns_add_u32 {sT1}, {sT1}, {sAr}")
        a("s_waitcnt lgkmcnt(1)")
        a(f"v_mfma_f32_16x16x32_bf16 {WR(8,4)}, {AR(aWQ)}, {WR(0,4)}, 0")
        a("s_waitcnt lgkmcnt(0)")
        a(f"v_mfma_f32_16x16x32_bf16 {WR(8,4)}, {AR(aWQ+4)}, {WR(4,4)}, {WR(8,4)}")
        Ls = lab("qst")
        a(f"s_cmp_lg_u32 {sW}, 7\ns_cbranch_scc1 {Ls}")
        gram_store("Q1")
        a.label(Ls)
        a("s_nop 3")
        lstore([f"buffer_store_dwordx4 {WR(8,4)}, {vQP}, {sWS}, {sT1} offen offset:{A_Q[1]}"])
        stamp("qpub1")

    a.label("L_toC0")
    a("s_waitcnt lgkmcnt(0)\ns_barrier")
    stamp("barC0")
    attention(0); wo_stage(0); gu_stage(0); ffn_tail(0); q_stage()
    attn_zero()
    a(f"s_cmp_ge_u32 {sW}, 4\ns_cbranch_scc1 L_hiC1")
    q_gather()
    a("s_branch L_toC1")
    a.label("L_hiC1")
    a(f"s_xor_b32 {sT0}, {sW}, 4\ns_or_b32 {sT0}, {sT0}, s2\ns_cbranch_scc1 L_toC1")
    a(f"v_mov_b32 {W(0)}, {sEp}\nv_lshlrev_b32 {W(1)}, 24, {vL}\ns_mov_b32 {sT0}, {EPO}\nbuffer_store_dword {W(0)}, {W(1)}, {sWS}, {sT0} offen")
    a.label("L_toC1")
    a("s_waitcnt lgkmcnt(0)\ns_barrier")
    stamp("barC1")
    attention(1); wo_stage(1); gu_stage(1); ffn_tail(1)
    a(f"s_cmp_lg_u32 {sFin}, 0\ns_cbranch_scc1 L_fin")
    x_gather(XB[3])
    a(f"buffer_store_short {W(0)}, v0, {sOut}, 0 offen")
    a.label("L_fin")
    if stamps:
        stamp("end")
        a(f"s_cmp_lg_u32 {sW}, {stw}\ns_cbranch_scc1 L_end")
        a(f"s_lshl_b32 {sT0}, s2, 8\ns_add_u32 {sT0}, {sT0}, 0x10000000\ns_add_u32 s98, s98, {sT0}\ns_addc_u32 s99, s99, 0")
        a(f"v_lshlrev_b32 {W(0)}, 1, {vL4}\nv_mov_b32 {W(2)}, {vST}\nv_mov_b32 {W(3)}, 0\nv_cmp_gt_u32 vcc, 32, {vL}\ns_and_saveexec_b64 s[6:7], vcc")
        a(f"global_store_dwordx2 {W(0)}, {WR(2,2)}, s[98:99]")
    a.label("L_end")
    a("s_endpgm")
    for L, stores in slow:
        a.label(L)
        a("s_nop 7")
        for s_ in stores: a(s_ + " sc1")
        a(f"s_nop 1\ns_branch {L}r")
    return wrap(a.text(), 256, 512, LDS_SIZE, 256, 144), nst[0]

if __name__ == "__main__":
    t, _ = gen(); open("k.s", "w").write(t)
    t, n = gen(stamps=True); open("ks.s", "w").write(t)
    for arg in sys.argv[1:]:
        name, kw = arg.split("=", 1)
        t, n2 = gen(**eval("dict(" + kw + ")")); open(name + ".s", "w").write(t)
    print("stamps", n)
```

```python
import sys, math, struct
from asmlib import *

XB = [0, 65536, 131072, 196608]
FLG = 262144
EPO = FLG + 1024
GA = FLG + 2048
G_OD = [0, 8320]; G_LSE = [8192, 16512]
G_ST = {"G0": 16640, "Q1": 16896, "G1": 17152}
G_H = [17408, 18944]
G_LATE = 8320
GST = 8320 + 12288 + 128
WA = GA + 8 * GST + 128 * 6
A_Q = [0, 0]; A_G = [2560, 2560]; GCS = 1536
AST = 4480
WSN = WA + 256 * AST
OOB = 0x7FFF0000
LWQ = 0; LWO = 16384; LGU = 32768; LWD = 49152
LXS = 55296; XSS = 144
LQS = 56064; LZERO = 56320; LMODE = 56336; LDUM = 56352
LOW = 57856; LML = 61952; LYW = 62080
LDS_SIZE = 65536
C2 = math.log2(math.e) / math.sqrt(128.0)
DPP = "row_mask:0xf bank_mask:0xf"
def f32(x): return "0x%08x" % struct.unpack("<I", struct.pack("<f", x))[0]

sK, sV, sWq, sWo, sWg, sWu, sWd, sWS, sX, sOut = [f"s[{28+4*k}:{31+4*k}]" for k in range(10)]
def sr(srd, k): return "s%d" % (int(srd[2:srd.index(":")]) + k)
(sG, sI, sHL, sJ, sW, sB, sH, sAr, sGa, sT0, sT1, sT2, sT3, sCnt, sOff, sOff2, sNT, sTB, sXcc, sFin,
 sEp, sMode, sXp, sGUo, sWDo) = [f"s{68+k}" for k in range(25)]
sM1, sM2, sM3 = "s[12:13]", "s[14:15]", "s[16:17]"
vL, vN, vGK = "v1", "v2", "v3"
W = lambda k: f"v{4+k}"
def WR(k, n): return f"v[{4+k}:{4+k+n-1}]"
P = ["v%d" % k for k in list(range(48, 64)) + list(range(128, 144))]
(vQG, vSG, vOG, vLG, vXG, vA0, vA1, vA2, vA3, vQP, vOP, vGP, vGCP, vRES, vXP, vDMA,
 vXSW, vXSR, vQSW, vQR0, vQR1, vQR2, vQR3, vOWW, vOWR, vMLR, vYWW, vL4, vCSQ, vIDX, vTRW, vST) = P
def vVld(t, c): return 64 + 32 * (t >> 1) + 8 * c + 4 * (t & 1)
def aK(t, c): return f"a[{16*t+4*c}:{16*t+4*c+3}]"
aWQ, aWO, aGU, aWD = 64, 72, 80, 88
def AR(b, n=4): return f"a[{b}:{b+n-1}]"
def VR(b, n=4): return f"v[{b}:{b+n-1}]"

def gen(stamps=False, limit=4000000, stw=0, ackbar=True, xdelay=0, prio=True, fine=False, cyc=False, nearly=4, pad=0):
    a = Asm()
    nst = [0]; slow = []
    def stamp(name):
        if not stamps: return
        k = nst[0]; nst[0] += 1
        a(f"{'s_memtime' if cyc else 's_memrealtime'} s[4:5]\ns_waitcnt lgkmcnt(0)\nv_writelane_b32 {vST}, s4, {k}")
    uid = [0]
    def lab(p):
        uid[0] += 1; return f"L_{p}{uid[0]}"
    def poll(loads, regs, once="", nonce=0):
        L = lab("poll")
        if once:
            a(loads); a(once); a(f"s_waitcnt vmcnt({nonce})\ns_branch {L}c")
        a.label(L)
        a(loads)
        a(f"s_add_u32 {sCnt}, {sCnt}, 1\ns_cmp_gt_u32 {sCnt}, {limit}\ns_cbranch_scc1 L_end")
        a("s_waitcnt vmcnt(0)")
        if once: a.label(L + "c")
        t = W(43); r = list(regs)
        a(f"v_max3_u32 {t}, {r[0]}, {r[1]}, {r[2]}"); r = r[3:]
        while len(r) >= 2: a(f"v_max3_u32 {t}, {t}, {r[0]}, {r[1]}"); r = r[2:]
        if r: a(f"v_max_u32 {t}, {t}, {r[0]}")
        a(f"v_cmp_eq_u32 vcc, -1, {t}\ns_cbranch_vccnz {L}")
    def lstore(stores):
        L = lab("slow")
        a(f"s_cmp_eq_u32 {sMode}, 0\ns_cbranch_scc1 {L}")
        for s_ in stores: a(s_)
        a.label(L + "r")
        slow.append((L, stores))
    def red8(r0, r1, r2, r3):
        a(f"v_permlane32_swap_b32 {r0}, {r1}\nv_permlane32_swap_b32 {r2}, {r3}")
        a(f"v_add_f32 {r0}, {r0}, {r1}\nv_add_f32 {r2}, {r2}, {r3}")
        a(f"v_permlane16_swap_b32 {r0}, {r2}\nv_add_f32 {r0}, {r0}, {r2}")
        a(f"v_add_f32_dpp {r0}, {r0}, {r0} row_ror:8 {DPP}")
    LO8 = ("quad_perm:[1,0,3,2]", "quad_perm:[2,3,0,1]", "row_half_mirror")
    def lo8(op, regs):
        for m in LO8:
            for r in regs: a(f"{op}_dpp {r}, {r}, {r} {m} {DPP}")
    def ln_fin(vmu, vrs):
        a(f"v_fma_f32 {vrs}, -{vmu}, {vmu}, {vrs}\nv_max_f32 {vrs}, 0, {vrs}\nv_add_f32 {vrs}, {f32(1e-5)}, {vrs}\nv_rsq_f32 {vrs}, {vrs}")
    def trread(dst, kind, vbase, off, qstride):
        a(f"ds_read_b64_tr_b16 {kind}[{dst}:{dst+1}], {vbase} offset:{off}")
        a(f"ds_read_b64_tr_b16 {kind}[{dst+2}:{dst+3}], {vbase} offset:{off+qstride}")
    def sel(dst, vfalse, vtrue, cmp):
        a(f"{cmp}\nv_cndmask_b32 {dst}, {vfalse}, {vtrue}, vcc")

    a("s_cmp_ge_u32 s2, 256\ns_cbranch_scc1 L_end")
    a("s_load_dwordx16 s[4:19], s[0:1], 0\ns_load_dwordx8 s[20:27], s[0:1], 64")
    if stamps or pad: a(f"{'s_memtime' if cyc else 's_memrealtime'} s[96:97]")
    a(f"v_lshrrev_b32 v4, 6, v0\nv_and_b32 {vL}, 63, v0\nv_readfirstlane_b32 {sW}, v4")
    a(f"v_and_b32 {vN}, 15, v0\nv_lshrrev_b32 {vGK}, 4, {vL}")
    a(f"s_and_b32 {sG}, s2, 7\ns_lshr_b32 {sI}, s2, 3\ns_and_b32 {sHL}, {sI}, 3\ns_lshr_b32 {sJ}, {sI}, 2")
    a(f"s_and_b32 {sB}, {sJ}, 3\ns_lshl_b32 {sH}, {sG}, 2\ns_add_u32 {sH}, {sH}, {sHL}")
    a(f"s_lshl_b32 {sT0}, {sB}, 5\ns_add_u32 {sT0}, {sT0}, {sH}\ns_lshl_b32 {sT0}, {sT0}, 20\ns_add_u32 {sT0}, {sT0}, 0xC0000")
    a(f"s_lshr_b32 {sT1}, {sJ}, 2\ns_lshl_b32 {sT1}, {sT1}, 17\ns_add_u32 {sT0}, {sT0}, {sT1}")
    a(f"s_lshr_b32 {sT1}, {sW}, 2\ns_lshl_b32 {sT1}, {sT1}, 16\ns_add_u32 {sT0}, {sT0}, {sT1}")
    a(f"s_and_b32 {sT1}, {sW}, 3\ns_lshl_b32 {sT1}, {sT1}, 12\ns_add_u32 {sT0}, {sT0}, {sT1}")
    vKO, vVO, vWQO = W(40), W(41), W(42)
    t0, t1, t2, t3, vE, vHi3, vLo3 = W(0), W(1), W(2), W(3), W(4), W(5), W(6)
    a(f"s_cmp_lt_u32 {sW}, 4\ns_cbranch_scc1 L_prio\ns_setprio 3")
    a.label("L_prio")
    a(f"v_and_b32 v4, 6, {vN}\nv_lshlrev_b32 v4, 9, v4\nv_lshl_add_u32 v4, {vGK}, 5, v4\nv_and_b32 v5, 8, {vN}\nv_lshl_add_u32 v4, v5, 5, v4\nv_and_b32 v5, 1, {vN}\nv_lshl_add_u32 {vKO}, v5, 4, v4")
    a(f"v_lshlrev_b32 {vVO}, 4, {vL}")
    for srd in (sK, sV, sWq, sWo, sWg, sWu, sWd, sWS, sX, sOut): a(f"s_mov_b32 {sr(srd,3)}, 0x20000")
    a(f"s_mov_b32 {sr(sK,2)}, 0xD000\ns_mov_b32 {sr(sV,2)}, 0xD000\ns_mov_b32 {sr(sWq,2)}, 0x400000\ns_mov_b32 {sr(sX,2)}, 4096\ns_mov_b32 {sr(sWS,2)}, {WSN}")
    a(f"v_lshlrev_b32 v4, 13, {vGK}\nv_lshl_add_u32 {vWQO}, {vN}, 4, v4")
    a(f"v_lshrrev_b32 {vHi3}, 3, {vL}\nv_and_b32 {vLo3}, 7, {vL}")
    a(f"v_lshrrev_b32 {t0}, 1, {vGK}\nv_and_b32 {t1}, 1, {vGK}\nv_lshl_add_u32 {vE}, {t1}, 1, {t0}")
    a(f"v_and_b32 {t0}, 3, {vL}\nv_and_b32 {t1}, 4, {vL}\ns_lshl_b32 {sT1}, {sW}, 3\nv_add3_u32 {t1}, {t1}, {vE}, {sT1}")
    a(f"v_mul_u32_u24 {t2}, {XSS}, {t0}\nv_lshl_add_u32 {t2}, {t1}, 1, {t2}\nv_add_u32 {vXSW}, {LXS}, {t2}")
    a(f"v_lshlrev_b32 {t0}, 10, {t0}\nv_lshl_add_u32 {t0}, {t1}, 1, {t0}\ns_lshl_b32 {sT1}, {sJ}, 7\nv_add_u32 v0, {sT1}, {t0}")
    a(f"s_lshl_b32 {sT1}, {sJ}, 3\ns_add_u32 {sT1}, {sT1}, {sW}\ns_lshl_b32 {sT1}, {sT1}, 16\ns_lshl_b32 {sT2}, {sH}, 8\ns_add_u32 {sT1}, {sT1}, {sT2}")
    a(f"s_lshl_b32 {sT2}, {sW}, 11\ns_mov_b32 m0, {sT2}")
    a("s_waitcnt lgkmcnt(0)")
    a(f"s_mov_b32 {sr(sWq,0)}, s10\ns_mov_b32 {sr(sWq,1)}, s11\ns_mov_b32 {sr(sX,0)}, s4\ns_mov_b32 {sr(sX,1)}, s5")
    a(f"buffer_load_dwordx4 {vWQO}, {sWq}, {sT1} offen nt lds")
    a(f"s_add_u32 m0, {sT2}, 1024\ns_add_u32 {sT1}, {sT1}, 32768")
    a(f"buffer_load_dwordx4 {vWQO}, {sWq}, {sT1} offen nt lds")
    a(f"buffer_load_ushort {vRES}, v0, {sX}, 0 offen")
    a(f"s_add_u32 {sr(sK,0)}, s6, {sT0}\ns_addc_u32 {sr(sK,1)}, s7, 0")
    a(f"s_add_u32 {sr(sV,0)}, s8, {sT0}\ns_addc_u32 {sr(sV,1)}, s9, 0")
    a(f"s_mov_b32 {sr(sWS,0)}, s26\ns_mov_b32 {sr(sWS,1)}, s27")
    a(f"s_load_dword {sEp}, s[26:27], {EPO}")
    def ldK(t):
        a(f"s_mov_b32 {sT3}, {t*16384}")
        for c in range(4): a(f"buffer_load_dwordx4 {aK(t,c)}, {vKO}, {sK}, {sT3} offen offset:{(c>>1)*512+(c&1)*128} nt")
    def ldV(t):
        a(f"s_mov_b32 {sT3}, {t*16384}")
        for c in range(4): a(f"buffer_load_dwordx4 {VR(vVld(t,c))}, {vVO}, {sV}, {sT3} offen offset:{c*1024} nt")
    a(f"s_cmp_ge_u32 {sW}, 4\ns_cbranch_scc1 L_late0")
    for t in range(nearly): ldK(t)
    a.label("L_late0")
    a(f"s_mul_i32 {sAr}, s2, {AST}\ns_add_u32 {sAr}, {sAr}, {WA}\ns_mul_i32 {sGa}, {sG}, {GST}\ns_add_u32 {sGa}, {sGa}, {GA}")
    a(f"s_lshr_b32 {sXp}, s2, 6\ns_lshl_b32 {sXp}, {sXp}, 14\ns_and_b32 {sT0}, s2, 63\ns_lshl_b32 {sT0}, {sT0}, 7\ns_add_u32 {sXp}, {sXp}, {sT0}")
    a(f"v_mov_b32 {t3}, {OOB}")
    a(f"s_cmp_lg_u32 {sW}, 7\ns_cbranch_scc1 L_common")
    for k in range(4): a(f"v_mov_b32 {W(8+k)}, -1")
    a(f"s_lshl_b32 {sT0}, {sI}, 8\ns_add_u32 {sT0}, {sT0}, {sGa}\nv_lshl_add_u32 {t0}, {vN}, 4, {sT0}")
    a(f"v_bfe_u32 {t1}, {vL}, 3, 1\nv_lshlrev_b32 {t1}, 13, {t1}\nv_lshl_add_u32 {t1}, {vLo3}, 4, {t1}\nv_lshl_add_u32 {t1}, {vGK}, 16, {t1}\nv_add_u32 {t1}, {sXp}, {t1}")
    sel(t0, t0, t1, f"v_cmp_gt_u32 vcc, 32, {vL}")
    a(f"s_add_u32 {sT0}, {sGa}, {G_LSE[0]}\nv_lshl_add_u32 {t1}, {vLo3}, 4, {sT0}")
    sel(t0, t1, t0, f"v_cmp_gt_u32 vcc, 48, {vL}")
    a(f"s_cmp_eq_u32 {sI}, 0\ns_cselect_b32 {sT0}, 56, 48")
    sel(t0, t3, t0, f"v_cmp_gt_u32 vcc, {sT0}, {vL}")
    a(f"buffer_store_dwordx4 {WR(8,4)}, {t0}, {sWS}, 0 offen sc1")
    a.label("L_common")
    a(f"v_lshlrev_b32 {vL4}, 2, {vL}")
    a(f"s_mov_b32 {sr(sWo,0)}, s12\ns_mov_b32 {sr(sWo,1)}, s13\ns_mov_b32 {sr(sWo,2)}, 0x400000")
    a(f"s_mov_b32 {sr(sWg,0)}, s16\ns_mov_b32 {sr(sWg,1)}, s17\ns_mov_b32 {sr(sWg,2)}, 1409024")
    a(f"s_mov_b32 {sr(sWu,0)}, s18\ns_mov_b32 {sr(sWu,1)}, s19\ns_mov_b32 {sr(sWu,2)}, 1409024")
    a(f"s_mul_i32 {sTB}, {sG}, 11\ns_cmp_eq_u32 {sG}, 7\ns_cselect_b32 {sTB}, 76, {sTB}\ns_cmp_lt_u32 {sG}, 6\ns_cselect_b32 {sNT}, 11, 10")
    a(f"s_add_u32 {sT0}, {sTB}, {sNT}\ns_lshl_b32 {sr(sWd,2)}, {sT0}, 14\ns_mov_b32 {sr(sWd,0)}, s20\ns_mov_b32 {sr(sWd,1)}, s21")
    a(f"s_mov_b32 {sr(sOut,0)}, s22\ns_mov_b32 {sr(sOut,1)}, s23\ns_mov_b32 {sr(sOut,2)}, 4096")
    if stamps: a("s_mov_b32 s98, s26\ns_mov_b32 s99, s27")
    a(f"s_mov_b32 {sCnt}, 0\ns_mov_b32 {sMode}, 0")
    a(f"s_getreg_b32 {sXcc}, hwreg(HW_REG_XCC_ID)\ns_and_b32 {sXcc}, {sXcc}, 15")
    a(f"s_xor_b32 {sFin}, {sG}, {sJ}\ns_or_b32 {sFin}, {sFin}, {sHL}")
    a(f"s_mov_b64 {sM1}, 2\ns_mov_b64 {sM2}, 4\ns_mov_b64 {sM3}, 8")
    a(f"s_mul_i32 {sGUo}, {sHL}, 3\ns_add_u32 {sGUo}, {sGUo}, {sTB}\ns_lshl_b32 {sGUo}, {sGUo}, 5\ns_mul_i32 {sT1}, {sJ}, {64*2752}\ns_add_u32 {sGUo}, {sGUo}, {sT1}")
    a(f"s_lshl_b32 {sWDo}, {sTB}, 14\ns_and_b32 {sT1}, {sW}, 1\ns_mul_i32 {sT1}, {sT1}, {96*1024}\ns_add_u32 {sWDo}, {sWDo}, {sT1}\ns_lshl_b32 {sT1}, {sI}, 5\ns_add_u32 {sWDo}, {sWDo}, {sT1}")
    if stamps: a(f"v_mov_b32 {vST}, 0\nv_writelane_b32 {vST}, s96, 0"); nst[0] = 1
    sA32 = sT3
    a(f"s_mov_b32 {sA32}, {32*AST}")
    a(f"s_and_b32 {sT0}, s2, 31\ns_mul_i32 {sT0}, {sT0}, {AST}\ns_lshl_b32 {sT1}, {sW}, 7\ns_add_u32 {sT1}, {sT1}, {sT0}\ns_add_u32 {sT1}, {sT1}, {WA}")
    a(f"v_mul_lo_u32 {W(7)}, {vHi3}, {sA32}\nv_lshl_add_u32 {t0}, {vLo3}, 4, {W(7)}\nv_add_u32 {vQG}, {sT1}, {t0}")
    a(f"s_lshl_b32 {sT0}, {sB}, 6\ns_add_u32 {sT0}, {sT0}, {sGa}\nv_lshl_add_u32 {vSG}, {vN}, 2, {sT0}")
    a(f"v_lshrrev_b32 {t0}, 3, {vN}\nv_lshl_add_u32 {t0}, {t0}, 2, {vGK}\nv_lshlrev_b32 {t0}, 7, {t0}\nv_lshl_add_u32 {t0}, {vLo3}, 4, {t0}")
    a(f"s_lshl_b32 {sT0}, {sW}, 10\ns_add_u32 {sT0}, {sT0}, {sGa}\nv_add_u32 {vOG}, {sT0}, {t0}")
    a(f"s_lshr_b32 {sT0}, {sW}, 1\ns_lshl_b32 {sT0}, {sT0}, 5\ns_add_u32 {sT0}, {sT0}, {sGa}\nv_lshl_add_u32 {t0}, {vLo3}, 2, {sT0}")
    sel(vLG, t3, t0, f"v_cmp_gt_u32 vcc, 8, {vN}")
    a(f"s_lshr_b32 {sT0}, {sJ}, 1\ns_lshl_b32 {sT0}, {sT0}, 14\ns_and_b32 {sT1}, {sW}, 1\ns_lshl_b32 {sT1}, {sT1}, 13\ns_add_u32 {sT0}, {sT0}, {sT1}")
    a(f"s_and_b32 {sT1}, {sJ}, 1\ns_lshl_b32 {sT1}, {sT1}, 12\ns_add_u32 {sT0}, {sT0}, {sT1}\ns_lshr_b32 {sT1}, {sW}, 1\ns_lshl_b32 {sT1}, {sT1}, 10\ns_add_u32 {sT0}, {sT0}, {sT1}")
    a(f"v_add_u32 {vXG}, {sT0}, {vVO}")
    a(f"v_lshlrev_b32 {t0}, 9, {vN}\nv_lshl_add_u32 {t0}, {vGK}, 4, {t0}")
    sel(W(39), t3, t0, f"v_cmp_gt_u32 vcc, 5, {vN}")
    sel(vQP, t3, t0, f"v_cmp_gt_u32 vcc, 4, {vN}")
    sel(vGP, t3, vVO, f"v_cmp_gt_u32 vcc, 16, {vL}")
    a(f"v_lshlrev_b32 {t0}, 3, {vN}")
    sel(vGCP, t3, t0, f"v_cmp_eq_u32 vcc, 1, {vGK}")
    a(f"s_lshr_b32 {sT1}, {sJ}, 2\ns_lshl_b32 {sT0}, {sB}, 1\ns_add_u32 {sT0}, {sT0}, {sT1}\ns_lshl_b32 {sT0}, {sT0}, 4\ns_lshl_b32 {sT1}, {sHL}, 11\ns_add_u32 {sT0}, {sT0}, {sT1}\ns_add_u32 {sT0}, {sT0}, {sGa}")
    a(f"v_lshrrev_b32 {t0}, 2, {vL}\nv_lshlrev_b32 {t0}, 7, {t0}\nv_and_b32 {t1}, 12, {vL4}\nv_add3_u32 {vOP}, {t0}, {t1}, {sT0}")
    a(f"v_lshrrev_b32 {t0}, 5, {vL}\nv_lshlrev_b32 {t0}, 13, {t0}\nv_and_b32 {t1}, 0x7c, {vL4}\nv_add3_u32 {vXP}, {t0}, {t1}, {sXp}")
    a(f"v_min_u32 {t0}, 4, {vN}\nv_mul_u32_u24 {t0}, {XSS}, {t0}\nv_lshl_add_u32 {t0}, {vGK}, 4, {t0}\nv_add_u32 {vXSR}, {LXS}, {t0}")
    a(f"v_and_b32 {t0}, 2, {vL}\nv_lshlrev_b32 {t0}, 4, {t0}\nv_and_b32 {t1}, 1, {vE}\nv_lshl_add_u32 {t0}, {t1}, 4, {t0}\nv_and_b32 {t1}, 4, {vL}\nv_lshl_add_u32 {t0}, {t1}, 1, {t0}")
    a(f"v_and_b32 {t1}, 1, {vL}\nv_lshl_add_u32 {t0}, {t1}, 2, {t0}\nv_and_b32 {t1}, 2, {vE}\ns_lshl_b32 {sT0}, {sW}, 6\ns_add_u32 {sT0}, {sT0}, {LQS}\nv_add3_u32 {t0}, {t0}, {t1}, {sT0}\nv_add_u32 {t2}, {LDUM}, {vVO}")
    sel(vQSW, t2, t0, f"v_cmp_gt_u32 vcc, 8, {vN}")
    a(f"v_and_b32 {t0}, 3, {vN}\nv_lshlrev_b32 {t0}, 4, {t0}\nv_lshl_add_u32 {t0}, {vGK}, 6, {t0}\nv_add_u32 {t0}, {LQS}, {t0}\nv_mov_b32 {t1}, {LZERO}\nv_lshrrev_b32 {W(8)}, 2, {vN}")
    for c, r in enumerate((vQR0, vQR1, vQR2, vQR3)): sel(r, t1, t0, f"v_cmp_eq_u32 vcc, {c}, {W(8)}")
    a(f"s_lshl_b32 {sT0}, {sW}, 9\ns_add_u32 {sT0}, {sT0}, {LOW}\nv_lshl_add_u32 {t0}, {vGK}, 2, {vN}\nv_and_b32 {t0}, 15, {t0}\nv_lshl_add_u32 {t0}, {vGK}, 4, {t0}\nv_lshl_add_u32 {vOWW}, {t0}, 3, {sT0}")
    a(f"v_and_b32 {t1}, 3, {vL}\nv_lshrrev_b32 {t0}, 2, {vL}\nv_lshl_add_u32 {t0}, {t1}, 2, {t0}\nv_and_b32 {t0}, 15, {t0}\nv_lshl_add_u32 {t0}, {t1}, 4, {t0}\nv_lshlrev_b32 {t0}, 3, {t0}\nv_add_u32 {vOWR}, {LOW}, {t0}")
    a(f"v_lshlrev_b32 {t0}, 3, {vLo3}\nv_add_u32 {vMLR}, {LML}, {t0}")
    a(f"v_lshlrev_b32 {t0}, 6, {vGK}\nv_lshl_add_u32 {t0}, {vN}, 3, {t0}\ns_lshl_b32 {sT0}, {sW}, 8\ns_add_u32 {sT0}, {sT0}, {LYW}\nv_add_u32 {t0}, {sT0}, {t0}\nv_and_b32 {t1}, 9, {vN}")
    sel(vYWW, t2, t0, f"v_cmp_eq_u32 vcc, 0, {t1}")
    a(f"v_and_b32 {t0}, 1, {vL}\nv_mul_u32_u24 {t0}, 0x5555, {t0}\nv_add_u32 {vIDX}, 0x8888, {t0}")
    vTRQ, vR1K = W(38), W(37)
    a(f"v_lshrrev_b32 {t0}, 2, {vN}\nv_lshl_add_u32 {t0}, {vGK}, 3, {t0}\nv_and_b32 {t1}, 3, {vN}\nv_lshlrev_b32 {t1}, 3, {t1}")
    a(f"v_lshl_add_u32 {t2}, {t0}, 8, {t1}\ns_lshl_b32 {sT0}, {sW}, 5\nv_add_u32 {vTRQ}, {sT0}, {t2}\nv_lshl_add_u32 {vTRW}, {t0}, 5, {t1}")
    a(f"v_lshrrev_b32 {t0}, 1, {vL}\nv_and_b32 {t1}, 1, {vL}\nv_lshlrev_b32 {t1}, 4, {t1}\nv_lshl_add_u32 {vR1K}, {t0}, 10, {t1}")
    a(f"s_lshl_b32 {sT0}, {sW}, 6\nv_add_u32 {t0}, {sT0}, {vL}\nv_mul_u32_u24 {t1}, 43691, {t0}\nv_lshrrev_b32 {t1}, 18, {t1}\nv_mul_u32_u24 {t2}, 6, {t1}\nv_sub_u32 {t0}, {t0}, {t2}")
    a(f"v_mul_u32_u24 {t1}, 2752, {t1}\nv_lshl_add_u32 {t1}, {t0}, 4, {t1}\ns_mul_i32 {sT0}, {sHL}, 3\ns_sub_u32 {sT0}, {sNT}, {sT0}\ns_lshl_b32 {sT0}, {sT0}, 1")
    sel(vDMA, t3, t1, f"v_cmp_gt_u32 vcc, {sT0}, {t0}")
    a(f"s_cmp_lt_u32 {sW}, 6\ns_cbranch_scc1 L_dma5\nv_mov_b32 {vDMA}, {vR1K}")
    a.label("L_dma5")
    a(f"s_cmp_eq_u32 {sW}, 0\ns_cbranch_scc1 L_role0\ns_cmp_eq_u32 {sW}, 1\ns_cbranch_scc1 L_role1")
    a(f"s_lshl_b32 {sT0}, {sJ}, 2\ns_add_u32 {sT0}, {sT0}, {sGa}\nv_lshlrev_b32 {t0}, 6, {vN}\nv_lshl_add_u32 {t0}, {vGK}, 5, {t0}\nv_add_u32 {t0}, {sT0}, {t0}")
    a(f"v_and_b32 {t1}, 0x2c, {vL}\nv_or_b32 {t1}, {sHL}, {t1}")
    sel(vA0, t3, t0, f"v_cmp_eq_u32 vcc, 0, {t1}")
    a(f"v_mov_b32 {vA1}, {t3}\nv_mov_b32 {vA2}, {t3}\nv_mov_b32 {vA3}, {t3}\ns_branch L_role2")
    a.label("L_role1")
    a(f"v_lshl_add_u32 {t1}, {vN}, 4, {sGa}\nv_lshl_add_u32 {t0}, {vGK}, 6, {t1}")
    sel(vA0, t3, t0, f"v_cmp_gt_u32 vcc, 4, {vN}")
    a(f"s_lshl_b32 {sT1}, {sNT}, 1\ns_sub_u32 {sT1}, {sT1}, 1\nv_add_u32 {t0}, 20, {vGK}\nv_min_u32 {t0}, {sT1}, {t0}\nv_lshl_add_u32 {t0}, {t0}, 6, {t1}\nv_cndmask_b32 {vA1}, {t3}, {t0}, vcc")
    a(f"v_lshrrev_b32 {t0}, 1, {vGK}\nv_lshlrev_b32 {t0}, 13, {t0}\nv_lshl_add_u32 {t0}, {vN}, 4, {t0}\nv_and_b32 {t1}, 1, {vGK}\nv_lshlrev_b32 {t1}, 6, {t1}\nv_add3_u32 {t0}, {t0}, {t1}, {sXp}")
    a(f"v_cndmask_b32 {vA2}, {t3}, {t0}, vcc\nv_mov_b32 {vA3}, {t3}\ns_branch L_role2")
    a.label("L_role0")
    a(f"s_lshr_b32 {sT0}, {sI}, 1\ns_mul_i32 {sT1}, {sT0}, 43\ns_lshr_b32 {sT1}, {sT1}, 7\ns_min_u32 {sT1}, {sT1}, 3\ns_mul_i32 {sOff}, {sT1}, 3\ns_sub_u32 {sT0}, {sT0}, {sOff}")
    a(f"s_lshl_b32 {sT1}, {sT1}, 3\ns_add_u32 {sT1}, {sT1}, {sG}\ns_mul_i32 {sT1}, {sT1}, {AST}\ns_add_u32 {sT1}, {sT1}, {WA}\nv_add_u32 {t0}, {sT1}, {W(7)}")
    a(f"s_and_b32 {sOff}, {sI}, 1\ns_lshl_b32 {sT1}, {sT0}, 2\ns_add_u32 {sT1}, {sT1}, {sOff}\ns_lshl_b32 {sT1}, {sT1}, 7\nv_lshl_add_u32 {t1}, {vLo3}, 4, {sT1}\nv_add_u32 {vA0}, {t0}, {t1}")
    a(f"s_lshl_b32 {sT1}, {sT0}, 1\ns_add_u32 {sT1}, {sT1}, {sOff}\ns_lshl_b32 {sT1}, {sT1}, 6\nv_lshl_add_u32 {t1}, {vLo3}, 3, {sT1}\nv_add_u32 {vA1}, {t0}, {t1}")
    a(f"v_lshl_add_u32 {t0}, {vN}, 2, {sGa}\nv_lshl_add_u32 {vA2}, {vE}, 6, {t0}")
    a(f"s_lshl_b32 {sT0}, {sI}, 6\ns_add_u32 {sT0}, {sT0}, {sGa}\nv_lshl_add_u32 {t0}, {vLo3}, 1, {sT0}\nv_lshl_add_u32 {t0}, {vE}, 4, {t0}\nv_and_b32 {t1}, 9, {vN}")
    sel(vA3, t3, t0, f"v_cmp_eq_u32 vcc, 0, {t1}")
    a.label("L_role2")
    a(f"s_cmp_lt_u32 {sW}, 4\ns_cbranch_scc1 L_early1")
    a(f"s_cmp_lg_u32 {sW}, 6\ns_cbranch_scc1 L_not6")
    a(f"v_mov_b32 {t0}, 0x3f803f80\nv_and_b32 {t1}, 0x7c, {vL4}\nds_write_b32 {t1}, {t0} offset:{LXS+4*XSS}")
    a(f"v_mov_b32 {t2}, 0\nv_and_b32 {t1}, 12, {vL4}\nds_write_b32 {t1}, {t2} offset:{LZERO}")
    a.label("L_not6")
    a(f"s_cmp_eq_u32 {sW}, 7\ns_cbranch_scc1 L_w7w\ns_waitcnt vmcnt(0)\ns_branch L_barA")
    a.label("L_w7w")
    a("s_waitcnt vmcnt(1)\ns_branch L_barA")
    a.label("L_early1")
    a(f"s_waitcnt vmcnt({4*nearly})")
    a.label("L_barA")
    a(f"ds_write_b16 {vXSW}, {vRES}\nv_lshlrev_b32 {vRES}, 16, {vRES}")
    a("s_waitcnt lgkmcnt(0)\ns_barrier")
    stamp("barA")
    a(f"ds_read_b128 {WR(0,4)}, {vXSR}\nds_read_b128 {WR(4,4)}, {vXSR} offset:64")
    for c in range(2): trread(aWQ + 4 * c, "a", vTRQ, LWQ + c * 8192, 1024)
    a(f"s_add_u32 {sEp}, {sEp}, 1\ns_lshl_b32 {sT1}, {sW}, 6\ns_add_u32 {sT1}, {sT1}, {sAr}\ns_movk_i32 {sT2}, 0xff\nv_mov_b32 {W(12)}, {sEp}")
    a("s_waitcnt lgkmcnt(0)")
    a(f"v_mfma_f32_16x16x32_bf16 {WR(8,4)}, {AR(aWQ)}, {WR(0,4)}, 0")
    a(f"v_mfma_f32_16x16x32_bf16 {WR(8,4)}, {AR(aWQ+4)}, {WR(4,4)}, {WR(8,4)}")
    for k in range(4): a(f"v_bfi_b32 {W(8+k)}, {sT2}, {W(12)}, {W(8+k)}")
    a(f"buffer_store_dwordx4 {WR(8,4)}, {W(39)}, {sWS}, {sT1} offen offset:{A_Q[0]} sc1")
    a(f"s_cmp_lt_u32 {sW}, 4\ns_cbranch_scc1 L_early2")
    a(f"s_cmp_lg_u32 {sW}, 7\ns_cbranch_scc1 L_not7")
    a(f"s_lshl_b32 {sT0}, {sG}, 5\ns_add_u32 {sT0}, {sT0}, {sI}\ns_lshl_b32 {sT0}, {sT0}, 2\ns_add_u32 {sT0}, {sT0}, {FLG}")
    a(f"s_and_b32 {sT1}, {sEp}, 0x0fffffff\ns_lshl_b32 {sT2}, {sXcc}, 28\ns_or_b32 {sT1}, {sT1}, {sT2}\nv_mov_b32 {t0}, {sT1}\nv_lshlrev_b32 {t1}, 24, {vL}")
    a("s_waitcnt vmcnt(1)")
    a(f"buffer_store_dword {t0}, {t1}, {sWS}, {sT0} offen sc1")
    a.label("L_not7")
    a("s_setprio 0")
    for t in range(nearly): ldK(t)
    a.label("L_early2")
    for t in range(nearly, 4): ldK(t)
    for t in range(4): ldV(t)
    a(f"s_lshl_b32 {sT0}, {sG}, 19\ns_lshl_b32 {sT1}, {sW}, 16\ns_add_u32 {sT0}, {sT0}, {sT1}\ns_lshl_b32 {sT1}, {sI}, 5\ns_add_u32 {sT0}, {sT0}, {sT1}")
    a(f"s_lshl_b32 {sT2}, {sW}, 11\ns_add_u32 m0, {sT2}, {LWO}")
    a(f"buffer_load_dwordx4 {vR1K}, {sWo}, {sT0} offen nt lds")
    a(f"s_add_u32 m0, {sT2}, {LWO+1024}\ns_add_u32 {sT0}, {sT0}, 32768")
    a(f"buffer_load_dwordx4 {vR1K}, {sWo}, {sT0} offen nt lds")
    stamp("issued")
    a(f"s_cmp_ge_u32 {sW}, 4\ns_cbranch_scc1 L_toC0")
    a(f"s_lshl_b32 {sT0}, {sB}, 10\nbuffer_load_dwordx4 {WR(12,4)}, {vVO}, {sX}, {sT0} offen")
    a(f"s_cmp_lg_u32 {sW}, 1\ns_cbranch_scc1 L_nowarm")
    a(f"s_add_u32 {sT0}, {sAr}, {A_G[0]}\ns_mul_i32 {sT1}, {sI}, 384\ns_add_u32 {sT1}, {sT1}, {sGa}\ns_add_u32 {sT1}, {sT1}, {G_LATE-15*128}")
    a(f"v_lshl_add_u32 {W(0)}, {vL}, 7, {sT0}\nv_lshl_add_u32 {W(1)}, {vL}, 7, {sT1}\nv_mov_b32 {W(2)}, {OOB}")
    sel(W(0), W(1), W(0), f"v_cmp_gt_u32 vcc, 15, {vL}")
    sel(W(0), W(2), W(0), f"v_cmp_gt_u32 vcc, 18, {vL}")
    a(f"buffer_load_dword {W(20)}, {W(0)}, {sWS}, 0 offen sc1")
    a.label("L_nowarm")
    a(f"s_lshl_b32 {sOff}, {sB}, 9\ns_mov_b32 {sOff2}, {FLG}")
    La = lab("arr")
    a(f"s_branch {La}b")
    a.label(La)
    a("s_sleep 16")
    a.label(La + "b")
    a(f"buffer_load_dwordx4 {WR(0,4)}, {vQG}, {sWS}, {sOff} offen sc1\nbuffer_load_dwordx4 {WR(4,4)}, {vQG}, {sWS}, 0 offen offset:2048 sc1")
    for k in range(4): a(f"v_mov_b32 {W(16+k)}, {sEp}")
    a(f"s_cmp_lg_u32 {sW}, 0\ns_cbranch_scc1 {La}c")
    a(f"buffer_load_dwordx4 {WR(16,4)}, {vVO}, {sWS}, {sOff2} offen sc1")
    a.label(La + "c")
    a(f"s_add_u32 {sCnt}, {sCnt}, 1\ns_cmp_gt_u32 {sCnt}, {limit}\ns_cbranch_scc1 L_end")
    a(f"s_waitcnt vmcnt(0)")
    a(f"v_xor_b32 {W(9)}, {sEp}, {W(0)}")
    for k in range(1, 8): a(f"v_xor_b32 {W(11)}, {sEp}, {W(k)}\nv_or_b32 {W(9)}, {W(9)}, {W(11)}")
    a(f"v_xor_b32 {W(10)}, {sEp}, {W(16)}")
    for k in range(1, 4): a(f"v_xor_b32 {W(11)}, {sEp}, {W(16+k)}\nv_or_b32 {W(10)}, {W(10)}, {W(11)}")
    a(f"v_and_b32 {W(9)}, 0xff, {W(9)}\nv_and_b32 {W(10)}, 0x0fffffff, {W(10)}\nv_or_b32 {W(9)}, {W(9)}, {W(10)}")
    a(f"v_cmp_ne_u32 vcc, 0, {W(9)}\ns_cbranch_vccnz {La}")
    stamp("q0 got")
    a(f"s_cmp_lg_u32 {sW}, 0\ns_cbranch_scc1 L_nomode")
    a(f"s_lshl_b32 {sT2}, {sXcc}, 28\nv_xor_b32 {W(10)}, {sT2}, {W(16)}")
    for k in range(1, 4): a(f"v_xor_b32 {W(11)}, {sT2}, {W(16+k)}\nv_or_b32 {W(10)}, {W(10)}, {W(11)}")
    a(f"v_lshrrev_b32 {W(10)}, 28, {W(10)}\nv_cmp_ne_u32 vcc, 0, {W(10)}\ns_lshl_b32 {sT0}, {sG}, 3\ns_nop 0\ns_lshr_b64 s[4:5], vcc, {sT0}\ns_and_b32 s4, s4, 0xff\ns_cselect_b32 {sT0}, 0, 1")
    a(f"v_mov_b32 {W(8)}, {sT0}\nv_mov_b32 {W(9)}, {LMODE}\nds_write_b32 {W(9)}, {W(8)}")
    a.label("L_nomode")
    for k in range(8): a(f"v_and_b32 {W(k)}, 0xffffff00, {W(k)}")
    red8(W(0), W(1), W(2), W(3))
    red8(W(4), W(5), W(6), W(7))
    a(f"v_mov_b32 {vCSQ}, {W(4)}")
    a(f"v_mov_b32 {W(4)}, 0\nv_mov_b32 {W(5)}, 0\nv_mov_b32 {W(6)}, 0x3f803f80")
    for k in range(4): a(f"v_dot2_f32_bf16 {W(4)}, {W(12+k)}, {W(12+k)}, {W(4)}\nv_dot2_f32_bf16 {W(5)}, {W(12+k)}, {W(6)}, {W(5)}")
    a("s_nop 3")
    lo8("v_add_f32", [W(4), W(5)])
    for r in (W(4), W(5)):
        a(f"v_add_f32_dpp {r}, {r}, {r} row_ror:8 {DPP}")
        a(f"v_mov_b32 {W(7)}, {r}\nv_permlane16_swap_b32 {r}, {W(7)}\nv_add_f32 {r}, {r}, {W(7)}")
        a(f"v_mov_b32 {W(7)}, {r}\nv_permlane32_swap_b32 {r}, {W(7)}\nv_add_f32 {r}, {r}, {W(7)}")
    a(f"v_mul_f32 {W(6)}, {f32(1/512)}, {W(5)}\nv_mul_f32 {W(7)}, {f32(1/512)}, {W(4)}")
    ln_fin(W(6), W(7))
    a(f"v_fma_f32 {W(0)}, -{W(6)}, {vCSQ}, {W(0)}\nv_mul_f32 {W(7)}, {f32(C2)}, {W(7)}\nv_mul_f32 {W(0)}, {W(0)}, {W(7)}")
    a(f"v_cvt_pk_bf16_f32 {W(0)}, {W(0)}, {W(0)}\nds_write_b16 {vQSW}, {W(0)}")

    def q_gather():
        a(f"s_lshl_b32 {sOff}, {sB}, 9\ns_add_u32 {sOff}, {sOff}, {A_Q[1]}\ns_movk_i32 {sOff2}, {G_ST['Q1']}")
        poll(f"buffer_load_dwordx4 {WR(0,4)}, {vQG}, {sWS}, {sOff} offen sc1\n"
             f"buffer_load_dword {W(4)}, {vSG}, {sWS}, {sOff2} offen sc1", [W(k) for k in range(5)])
        stamp("qgot1")
        s_, mu = W(4), W(5)
        a(f"v_mul_f32 {s_}, {f32(1/512)}, {s_}")
        a(f"v_permlane32_swap_b32 {W(0)}, {W(1)}\nv_permlane32_swap_b32 {W(2)}, {W(3)}")
        a(f"v_add_f32_dpp {s_}, {s_}, {s_} {LO8[0]} {DPP}")
        a(f"v_add_f32 {W(0)}, {W(0)}, {W(1)}\nv_add_f32 {W(2)}, {W(2)}, {W(3)}")
        a(f"v_add_f32_dpp {s_}, {s_}, {s_} {LO8[1]} {DPP}")
        a(f"v_permlane16_swap_b32 {W(0)}, {W(2)}")
        a(f"v_add_f32_dpp {s_}, {s_}, {s_} {LO8[2]} {DPP}")
        a(f"v_add_f32 {W(0)}, {W(0)}, {W(2)}")
        a(f"v_mov_b32_dpp {mu}, {s_} row_ror:8 {DPP}")
        a(f"v_add_f32_dpp {W(0)}, {W(0)}, {W(0)} row_ror:8 {DPP}")
        ln_fin(mu, s_)
        a(f"v_fma_f32 {W(0)}, -{mu}, {vCSQ}, {W(0)}\nv_mul_f32 {W(0)}, {f32(C2)}, {W(0)}\nv_mul_f32 {W(0)}, {W(0)}, {s_}")
        a(f"v_cvt_pk_bf16_f32 {W(0)}, {W(0)}, {W(0)}\nds_write_b16 {vQSW}, {W(0)}")

    SD, OA = 16, 24
    def attn_zero():
        for k in range(24): a(f"v_mov_b32 {W(SD+k)}, 0")
    def attention(L):
        for c, r in enumerate((vQR0, vQR1, vQR2, vQR3)): a(f"ds_read_b128 {WR(4*c,4)}, {r}")
        if L == 0:
            a(f"v_mov_b32 {W(40)}, {LMODE}\nds_read_b32 {W(40)}, {W(40)}")
            a("s_waitcnt vmcnt(18) lgkmcnt(0)")
            a(f"v_readfirstlane_b32 {sMode}, {W(40)}")
            a(f"s_cmp_ge_u32 {sW}, 4\ns_cbranch_scc1 L_noclr")
            a(f"v_mov_b32 {W(20)}, {OOB}\ns_cmp_eq_u32 {sW}, 3\ns_cbranch_scc1 L_clr3")
            for k in range(4): a(f"v_mov_b32 {W(16+k)}, -1")
            a(f"s_lshl_b32 {sT0}, {sW}, 10\ns_add_u32 {sT0}, {sT0}, {sAr}\ns_add_u32 {sT0}, {sT0}, {A_G[0]}")
            a(f"s_mul_i32 {sT1}, {sI}, 384\ns_add_u32 {sT1}, {sT1}, {sGa}\ns_add_u32 {sT1}, {sT1}, {G_LATE}")
            a(f"s_cmp_eq_u32 {sW}, 0\ns_cselect_b32 {sT2}, 64, 56\ns_cmp_eq_u32 {sW}, 2\ns_cselect_b32 {sT2}, 24, {sT2}\ns_cselect_b32 {sT0}, {sT1}, {sT0}")
            sel(W(21), W(20), W(41), f"v_cmp_gt_u32 vcc, {sT2}, {vL}")
            lstore([f"buffer_store_dwordx4 {WR(16,4)}, {W(21)}, {sWS}, {sT0} offen"])
            a("s_branch L_noclr")
            a.label("L_clr3")
            a(f"s_lshl_b32 {sT0}, {sI}, 8\nv_lshl_add_u32 {W(21)}, {vL}, 7, {sT0}\nv_mov_b32 {W(22)}, {G_LSE[0]}")
            sel(W(21), W(22), W(21), f"v_cmp_gt_u32 vcc, 2, {vL}")
            sel(W(21), W(20), W(21), f"v_cmp_gt_u32 vcc, 3, {vL}")
            a(f"buffer_load_dword {W(42)}, {W(21)}, {sWS}, {sGa} offen sc1")
            a.label("L_noclr")
            a("s_nop 1")
            attn_zero()
        elif prio:
            a(f"s_cmp_ge_u32 {sW}, 4\ns_cbranch_scc1 L_np\ns_setprio 1")
            a.label("L_np")
        for g_ in range(2):
            for t in range(4):
                if L == 1 and g_ == 0: a(f"s_waitcnt lgkmcnt({3-t})")
                a(f"v_smfmac_f32_16x16x64_bf16 {WR(SD+4*g_,4)}, {WR(4*t,4)}, a[{32*g_+8*t}:{32*g_+8*t+7}], {vIDX}")
        if fine and L == 1: stamp("qk done")
        s0, s1, m, mt, l, lt = W(16), W(20), W(8), W(9), W(10), W(11)
        a(f"s_lshl_b32 {sT0}, {sW}, 3\nv_mov_b32 {W(40)}, 64\nv_writelane_b32 {W(40)}, {sT0}, 0")
        a(f"v_add_f32 {W(18)}, {W(18)}, {W(19)}\nv_add_f32 {s0}, {W(16)}, {W(17)}")
        a(f"v_add_f32 {W(22)}, {W(22)}, {W(23)}\nv_add_f32 {s1}, {W(20)}, {W(21)}")
        a(f"v_add_f32_dpp {s0}, {W(18)}, {s0} quad_perm:[1,1,3,3] {DPP}\nv_add_f32_dpp {s1}, {W(22)}, {s1} quad_perm:[1,1,3,3] {DPP}")
        a(f"v_max_f32 {m}, {s0}, {s1}")
        for mm in ("quad_perm:[2,3,0,1]", "row_ror:4", "row_ror:8"): a(f"v_max_f32_dpp {m}, {m}, {m} {mm} {DPP}")
        a(f"v_mov_b32 {mt}, {m}\nv_permlane16_swap_b32 {m}, {mt}\nv_max_f32 {m}, {m}, {mt}")
        a(f"v_mov_b32 {mt}, {m}\nv_permlane32_swap_b32 {m}, {mt}\nv_max_f32 {m}, {m}, {mt}")
        a(f"v_sub_f32 {s0}, {s0}, {m}\nv_sub_f32 {s1}, {s1}, {m}\nv_exp_f32 {s0}, {s0}\nv_exp_f32 {s1}, {s1}")
        a(f"v_mov_b32_dpp {W(17)}, {s0} quad_perm:[2,2,2,2] {DPP}\nv_mov_b32_dpp {W(21)}, {s1} quad_perm:[2,2,2,2] {DPP}")
        a(f"v_cvt_pk_bf16_f32 {W(17)}, {s0}, {W(17)}\nv_cvt_pk_bf16_f32 {W(21)}, {s1}, {W(21)}\nv_add_f32 {l}, {s0}, {s1}")
        def pb(g_, i): return f"v_mov_b32_dpp {W(4*g_+i)}, {W(17+4*g_)} row_newbcast:{4*i} {DPP}"
        for i in range(4): a(pb(0, i))
        a(pb(1, 0)); a(pb(1, 1))
        if fine and L == 1: stamp("sm done")
        fill = [[pb(1, 2), pb(1, 3)], [f"v_add_f32_dpp {l}, {l}, {l} quad_perm:[2,3,0,1] {DPP}"], [f"v_add_f32_dpp {l}, {l}, {l} row_ror:4 {DPP}"], [f"v_add_f32_dpp {l}, {l}, {l} row_ror:8 {DPP}"],
                [f"v_mov_b32 {lt}, {l}"], [f"v_permlane16_swap_b32 {l}, {lt}"], [f"v_add_f32 {l}, {l}, {lt}", f"v_mov_b32 {lt}, {l}"], [f"v_permlane32_swap_b32 {l}, {lt}", f"v_add_f32 {mt}, {l}, {lt}",
                 f"ds_write_b64 {W(40)}, {WR(8,2)} offset:{LML}"]]
        for g_ in range(2):
            if L == 0:
                for hf in range(2):
                    t = 2 * g_ + hf
                    a(f"s_waitcnt vmcnt({2+4*(3-t)})")
                    for c in range(4):
                        for u in range(c + 1, 4): a(f"v_swap_b32 v{vVld(t,c)+u}, v{vVld(t,u)+c}")
            for u in range(4):
                b0 = 64 + 32 * g_ + 8 * u
                a(f"v_smfmac_f32_16x16x64_bf16 {WR(OA+4*u,4)}, {WR(4*g_,4)}, v[{b0}:{b0+7}], {vIDX}")
                for x in fill[4 * g_ + u]: a(x)
        if fine and L == 1: stamp("pv done")
        for u in range(1, 4):
            for e in range(2): a(f"v_mov_b32_dpp {W(OA+e)}, {W(OA+4*u+e)} quad_perm:[0,1,2,3] row_mask:{hex(1<<u)} bank_mask:0xf")
        a(f"ds_write_b64 {vOWW}, {WR(OA,2)}")
        if L == 1 and prio: a("s_setprio 0")
        if L == 0:
            a(f"s_cmp_ge_u32 {sW}, 4\ns_cbranch_scc1 L_noack\ns_waitcnt vmcnt(0)")
            a.label("L_noack")
        a("s_waitcnt lgkmcnt(0)\ns_barrier")
        stamp(f"barD{L}")
        Ls = lab("ocomb")
        a(f"s_cmp_lg_u32 {sW}, 0\ns_cbranch_scc1 {Ls}")
        a(f"ds_read_b64 {WR(16,2)}, {vMLR}")
        for k in range(4): a(f"ds_read2st64_b64 {WR(4*k,4)}, {vOWR} offset0:{2*k} offset1:{2*k+1}")
        a(f"s_movk_i32 {sT0}, {G_OD[L]}\ns_lshr_b32 {sT1}, {sJ}, 2\ns_lshl_b32 {sT2}, {sB}, 1\ns_add_u32 {sT1}, {sT1}, {sT2}\ns_lshl_b32 {sT2}, {sHL}, 3\ns_add_u32 {sT1}, {sT1}, {sT2}")
        a(f"s_lshl_b32 {sT1}, {sT1}, 2\ns_add_u32 {sT1}, {sT1}, {sGa}\ns_add_u32 {sT1}, {sT1}, {G_LSE[L]}\nv_lshlrev_b32 {W(24)}, 24, {vL}")
        a("s_waitcnt lgkmcnt(4)")
        M, F, FL = W(18), W(19), W(20)
        a(f"v_max_f32_dpp {M}, {W(16)}, {W(16)} {LO8[0]} {DPP}")
        for mm in LO8[1:]: a(f"v_max_f32_dpp {M}, {M}, {M} {mm} {DPP}")
        a(f"v_sub_f32 {F}, {W(16)}, {M}\nv_exp_f32 {F}, {F}\nv_mul_f32 {FL}, {F}, {W(17)}")
        a("s_waitcnt lgkmcnt(0)")
        ex = {0: f"v_add_f32_dpp {FL}, {FL}, {FL} {LO8[0]} {DPP}", 1: f"v_add_f32_dpp {FL}, {FL}, {FL} {LO8[1]} {DPP}", 2: f"v_add_f32_dpp {FL}, {FL}, {FL} {LO8[2]} {DPP}",
              3: f"v_rcp_f32 {W(21)}, {FL}", 4: f"v_log_f32 {FL}, {FL}", 5: f"v_add_f32 {M}, {M}, {FL}"}
        for w in range(8):
            op = "v_mul_f32_dpp" if w == 0 else "v_fmac_f32_dpp"
            a(f"{op} {W(22)}, {F}, {W(2*w)} row_newbcast:{w} {DPP}\n{op} {W(23)}, {F}, {W(2*w+1)} row_newbcast:{w} {DPP}")
            if w in ex: a(ex[w])
        a(f"v_mul_f32 {W(22)}, {W(22)}, {W(21)}\nv_mul_f32 {W(23)}, {W(23)}, {W(21)}")
        a(f"v_cvt_pk_bf16_f32 {W(22)}, {W(22)}, {W(23)}\nv_min_u32 {W(22)}, -2, {W(22)}")
        lstore([f"buffer_store_dword {W(22)}, {vOP}, {sWS}, {sT0} offen", f"buffer_store_dword {M}, {W(24)}, {sWS}, {sT1} offen"])
        stamp(f"opub{L}")
        a.label(Ls)

    def wo_stage(L):
        if L == 0:
            a(f"s_lshl_b32 {sT0}, {sW}, 11\nv_add_u32 {W(5)}, {sT0}, {vTRW}")
            a(f"s_cmp_lt_u32 {sW}, 4\ns_cbranch_scc1 L_wook\ns_waitcnt vmcnt(0)")
            a.label("L_wook")
            for c in range(2): trread(aWO + 4 * c, "a", W(5), LWO + c * 1024, 128)
        a(f"s_movk_i32 {sOff}, {G_OD[L]}\ns_movk_i32 {sOff2}, {G_LSE[L]}")
        poll(f"buffer_load_dwordx4 {WR(0,4)}, {vOG}, {sWS}, {sOff} offen sc1\n"
             f"buffer_load_dword {W(4)}, {vLG}, {sWS}, {sOff2} offen sc1", [W(k) for k in range(5)])
        stamp(f"ogot{L}")
        if L == 0: a("s_waitcnt lgkmcnt(0)")
        a(f"v_mfma_f32_16x16x32_bf16 {WR(8,4)}, {AR(aWO)}, {WR(0,4)}, 0")
        a(f"v_mfma_f32_16x16x32_bf16 {WR(12,4)}, {AR(aWO+4)}, {WR(0,4)}, 0")
        a(f"v_sub_f32_dpp {W(5)}, {W(4)}, {W(4)} quad_perm:[1,0,3,2] {DPP}\nv_exp_f32 {W(5)}, {W(5)}\nv_add_f32 {W(5)}, 1.0, {W(5)}\nv_rcp_f32 {W(5)}, {W(5)}")
        for r in range(4): a(f"v_add_f32_dpp {W(8+r)}, {W(12+r)}, {W(8+r)} row_ror:8 {DPP}")
        for r in range(4): a(f"v_mul_f32 {W(8+r)}, {W(8+r)}, {W(5)}")
        for r in range(4): a(f"v_add_f32_dpp {W(8+r)}, {W(8+r)}, {W(8+r)} quad_perm:[1,0,3,2] {DPP}")
        a(f"ds_write_b128 {vYWW}, {WR(8,4)}")
        a("s_waitcnt lgkmcnt(0)\ns_barrier")
        Ls = lab("ysum")
        a(f"s_cmp_lg_u32 {sW}, 7\ns_cbranch_scc1 {Ls}")
        a(f"v_add_u32 {W(8)}, {LYW}, {vL4}")
        for k in range(4): a(f"ds_read2st64_b32 {WR(2*k,2)}, {W(8)} offset0:{2*k} offset1:{2*k+1}")
        a(f"s_mov_b32 {sT0}, {XB[2*L]}")
        a("s_waitcnt lgkmcnt(2)")
        a(f"v_add_f32 {W(0)}, {W(0)}, {W(1)}\nv_add_f32 {W(2)}, {W(2)}, {W(3)}")
        a("s_waitcnt lgkmcnt(0)")
        a(f"v_add_f32 {W(4)}, {W(4)}, {W(5)}\nv_add_f32 {W(6)}, {W(6)}, {W(7)}\nv_add_f32 {W(0)}, {W(0)}, {W(2)}\nv_add_f32 {W(4)}, {W(4)}, {W(6)}\nv_add_f32 {W(0)}, {W(0)}, {W(4)}")
        a(f"buffer_store_dword {W(0)}, {vXP}, {sWS}, {sT0} offen sc1")
        if L == 1 and ackbar: a("s_waitcnt vmcnt(0)")
        a.label(Ls)
        if L == 0:
            a("s_barrier")
            stamp(f"ypub{L}")
            Lg, Lg2 = lab("gudma"), lab("gudmb")
            a(f"s_cmp_ge_u32 {sW}, 6\ns_cbranch_scc1 {Lg}")
            a(f"s_lshl_b32 {sT2}, {sW}, 10\ns_add_u32 m0, {sT2}, {LGU}")
            a(f"buffer_load_dwordx4 {vDMA}, {sWg}, {sGUo} offen nt lds")
            a(f"s_add_u32 m0, {sT2}, {LGU+6144}")
            a(f"buffer_load_dwordx4 {vDMA}, {sWu}, {sGUo} offen nt lds")
            a(f"s_branch {Lg2}")
            a.label(Lg)
            a(f"s_cmp_eq_u32 {sW}, 7\ns_cbranch_scc1 {Lg}k")
            for k in range(4): a(f"v_mov_b32 {W(8+k)}, -1")
            a(f"v_lshlrev_b32 {W(12)}, 4, {vL}")
            lstore([f"buffer_store_dwordx4 {WR(8,4)}, {W(12)}, {sWS}, {sAr} offen offset:{A_Q[1]}", f"buffer_store_dwordx4 {WR(8,4)}, {W(12)}, {sWS}, {sAr} offen offset:{A_Q[1]+1024}"])
            a(f"s_mov_b32 {sT0}, {XB[2]}\ns_mov_b32 {sT1}, {XB[3]}")
            a(f"buffer_store_dword {W(8)}, {vXP}, {sWS}, {sT0} offen sc1\nbuffer_store_dword {W(8)}, {vXP}, {sWS}, {sT1} offen sc1")
            a(f"s_branch {Lg2}")
            a.label(Lg + "k")
            if ackbar: a("s_waitcnt vmcnt(0)")
            a.label(Lg2)
        if ackbar: a("s_barrier")
        stamp(f"yack{L}")

    def x_gather(off, once="", nonce=0):
        a(f"s_mov_b32 {sOff}, {off}")
        if xdelay: a(f"s_sleep {xdelay}")
        poll(f"buffer_load_dwordx4 {WR(0,4)}, {vXG}, {sWS}, {sOff} offen sc1", [W(k) for k in range(4)], once, nonce)
        red8(W(0), W(1), W(2), W(3))
        a(f"v_add_f32 {W(0)}, {W(0)}, {vRES}\nv_cvt_pk_bf16_f32 {W(0)}, {W(0)}, {W(0)}")

    def xs_publish():
        a(f"ds_write_b16 {vXSW}, {W(0)}\nv_and_b32 {vRES}, 0xffff0000, {W(0)}")
        a("s_waitcnt lgkmcnt(0)\ns_barrier")
        a(f"ds_read_b128 {WR(0,4)}, {vXSR}\nds_read_b128 {WR(4,4)}, {vXSR} offset:64")

    def gram_store(key):
        a(f"v_mfma_f32_16x16x32_bf16 {WR(12,4)}, {WR(0,4)}, {WR(0,4)}, 0")
        a(f"v_mfma_f32_16x16x32_bf16 {WR(12,4)}, {WR(4,4)}, {WR(4,4)}, {WR(12,4)}")
        a(f"s_movk_i32 {sT0}, {G_ST[key]}")
        a(f"v_cndmask_b32 {W(12)}, {W(12)}, {W(13)}, {sM1}\nv_cndmask_b32 {W(12)}, {W(12)}, {W(14)}, {sM2}\nv_cndmask_b32 {W(12)}, {W(12)}, {W(15)}, {sM3}")
        lstore([f"buffer_store_dword {W(12)}, {vA0}, {sWS}, {sT0} offen"])

    def gu_stage(L):
        if L == 0:
            Lx, Ly = lab("xg"), lab("xh")
            a(f"s_cmp_ge_u32 {sW}, 6\ns_cbranch_scc1 {Lx}")
            x_gather(XB[0])
            a(f"s_branch {Ly}")
            a.label(Lx)
            a(f"s_and_b32 {sT2}, {sW}, 1\ns_mul_i32 {sT2}, {sT2}, 3072")
            once = ""
            for k in range(3):
                once += f"s_add_u32 m0, {sT2}, {LWD+k*1024}\n"
                if k: once += f"s_add_u32 {sWDo}, {sWDo}, 32768\n"
                once += f"buffer_load_dwordx4 {vDMA}, {sWd}, {sWDo} offen nt lds\n"
            x_gather(XB[0], once, 3)
            a.label(Ly)
        else:
            x_gather(XB[2])
        stamp(f"ygot{L}")
        if L == 0:
            a(f"v_and_b32 {W(9)}, 24, {vTRW}\nv_sub_u32 {W(8)}, {vTRW}, {W(9)}\nv_mul_u32_u24 {W(8)}, 3, {W(8)}")
            a(f"s_lshr_b32 {sT0}, {sW}, 1\ns_lshl_b32 {sT0}, {sT0}, 5\ns_and_b32 {sT1}, {sW}, 1\ns_mul_i32 {sT1}, {sT1}, 6144\ns_add_u32 {sT0}, {sT0}, {sT1}\nv_add3_u32 {W(8)}, {W(8)}, {W(9)}, {sT0}")
        xs_publish()
        L6, Ld = lab("gu6"), lab("gud")
        a(f"s_cmp_ge_u32 {sW}, 6\ns_cbranch_scc1 {L6}")
        if L == 0:
            for c in range(2): trread(aGU + 4 * c, "a", W(8), LGU + c * 3072, 384)
        a(f"s_add_u32 {sT0}, {sAr}, {A_G[L]}\ns_lshl_b32 {sT1}, {sW}, 8\ns_add_u32 {sT1}, {sT1}, {sT0}")
        a(f"s_lshr_b32 {sT2}, {sW}, 1\ns_lshl_b32 {sT2}, {sT2}, 7\ns_add_u32 {sT0}, {sT0}, {sT2}\ns_and_b32 {sT2}, {sW}, 1\ns_lshl_b32 {sT2}, {sT2}, 2\ns_add_u32 {sT2}, {sT2}, {sT0}")
        a("s_waitcnt lgkmcnt(1)" if L == 1 else "s_waitcnt lgkmcnt(2)")
        a(f"v_mfma_f32_16x16x32_bf16 {WR(8,4)}, {WR(0,4)}, {AR(aGU)}, 0")
        a("s_waitcnt lgkmcnt(0)")
        a(f"v_mfma_f32_16x16x32_bf16 {WR(8,4)}, {WR(4,4)}, {AR(aGU+4)}, {WR(8,4)}")
        lstore([f"buffer_store_dwordx4 {WR(8,4)}, {vGP}, {sWS}, {sT1} offen", f"buffer_store_dword {W(8)}, {vGCP}, {sWS}, {sT2} offen offset:{GCS}"])
        a(f"s_branch {Ld}")
        a.label(L6)
        a(f"s_waitcnt lgkmcnt(0)\ns_cmp_lg_u32 {sW}, 7\ns_cbranch_scc1 {Ld}")
        gram_store(f"G{L}")
        a.label(Ld)
        stamp(f"gupub{L}")

    def ffn_tail(L):
        Lw1, Lh = lab("w1"), lab("barH")
        if L == 0:
            Lq = lab("wdw")
            a(f"s_cmp_lt_u32 {sW}, 6\ns_cbranch_scc1 {Lq}\ns_waitcnt vmcnt(0)")
            a.label(Lq)
        a(f"s_cmp_lg_u32 {sW}, 0\ns_cbranch_scc1 {Lw1}")
        if L == 0: a("s_barrier")
        a(f"s_lshl_b32 {sT0}, {sNT}, 1\ns_cmp_ge_u32 {sI}, {sT0}\ns_cbranch_scc1 {Lh}")
        a(f"s_movk_i32 {sOff}, {A_G[L]}\ns_movk_i32 {sOff2}, {G_ST['G%d'%L]}\ns_movk_i32 {sT0}, {G_H[L]}")
        poll(f"buffer_load_dwordx4 {WR(0,4)}, {vA0}, {sWS}, {sOff} offen sc1\n"
             f"buffer_load_dwordx4 {WR(4,4)}, {vA0}, {sWS}, {sOff} offen offset:256 sc1\n"
             f"buffer_load_dwordx2 {WR(10,2)}, {vA1}, {sWS}, {sOff} offen offset:{GCS} sc1\n"
             f"buffer_load_dword {W(8)}, {vA2}, {sWS}, {sOff2} offen sc1", [W(k) for k in (0, 1, 2, 3, 4, 5, 6, 7, 8, 10, 11)])
        stamp(f"gugot{L}")
        s_, mu, cg, cu = W(8), W(9), W(10), W(11)
        a(f"v_mul_f32 {s_}, {f32(1/512)}, {s_}")
        a(f"v_permlane32_swap_b32 {cg}, {cu}\nv_permlane32_swap_b32 {W(0)}, {W(1)}")
        a(f"v_add_f32_dpp {s_}, {s_}, {s_} {LO8[0]} {DPP}")
        a(f"v_add_f32 {cg}, {cg}, {cu}\nv_permlane32_swap_b32 {W(2)}, {W(3)}")
        a(f"v_add_f32_dpp {s_}, {s_}, {s_} {LO8[1]} {DPP}")
        a(f"v_mov_b32 {cu}, {cg}\nv_permlane32_swap_b32 {W(4)}, {W(5)}")
        a(f"v_add_f32_dpp {s_}, {s_}, {s_} {LO8[2]} {DPP}")
        a(f"v_permlane16_swap_b32 {cg}, {cu}\nv_permlane32_swap_b32 {W(6)}, {W(7)}")
        a(f"v_mov_b32_dpp {mu}, {s_} row_ror:8 {DPP}")
        a(f"v_add_f32 {cg}, {cg}, {cu}\nv_add_f32 {W(0)}, {W(0)}, {W(1)}\nv_add_f32 {W(2)}, {W(2)}, {W(3)}")
        a(f"v_add_f32_dpp {cg}, {cg}, {cg} row_ror:8 {DPP}")
        a(f"v_add_f32 {W(4)}, {W(4)}, {W(5)}\nv_add_f32 {W(6)}, {W(6)}, {W(7)}")
        a(f"v_mov_b32 {cu}, {cg}\nv_permlane16_swap_b32 {W(0)}, {W(2)}")
        a(f"v_fma_f32 {s_}, -{mu}, {mu}, {s_}\nv_permlane16_swap_b32 {W(4)}, {W(6)}\nv_permlane32_swap_b32 {cg}, {cu}")
        a(f"v_max_f32 {s_}, 0, {s_}\nv_add_f32 {W(0)}, {W(0)}, {W(2)}\nv_add_f32 {W(4)}, {W(4)}, {W(6)}\nv_add_f32 {s_}, {f32(1e-5)}, {s_}")
        a(f"v_add_f32_dpp {W(0)}, {W(0)}, {W(0)} row_ror:8 {DPP}\nv_rsq_f32 {s_}, {s_}\nv_add_f32_dpp {W(4)}, {W(4)}, {W(4)} row_ror:8 {DPP}")
        g, u = W(0), W(4)
        k1 = -2.0 * math.sqrt(2.0 / math.pi) * math.log2(math.e); k2 = k1 * 0.044715
        a(f"v_fma_f32 {g}, -{mu}, {cg}, {g}\nv_mov_b32 {W(2)}, {f32(k1)}\nv_mul_f32 {g}, {g}, {s_}\nv_mul_f32 {W(1)}, {g}, {g}")
        a(f"v_fmac_f32 {W(2)}, {f32(k2)}, {W(1)}\nv_mul_f32 {W(2)}, {W(2)}, {g}\nv_exp_f32 {W(2)}, {W(2)}\nv_fma_f32 {u}, -{mu}, {cu}, {u}")
        a(f"v_add_f32 {W(2)}, 1.0, {W(2)}\nv_rcp_f32 {W(2)}, {W(2)}\nv_mul_f32 {u}, {u}, {s_}\nv_mul_f32 {g}, {g}, {W(2)}\nv_mul_f32 {u}, {u}, {g}")
        a(f"v_mov_b32_dpp {W(5)}, {u} quad_perm:[1,0,3,2] {DPP}\nv_cvt_pk_bf16_f32 {u}, {u}, {W(5)}\nv_min_u32 {u}, -2, {u}")
        lstore([f"buffer_store_dword {u}, {vA3}, {sWS}, {sT0} offen"])
        stamp(f"hpub{L}")
        a(f"s_branch {Lh}")
        a.label(Lw1)
        if L == 0: a("s_barrier")
        a(f"s_cmp_lg_u32 {sW}, 1\ns_cbranch_scc1 {Lh}")
        if L == 0:
            for c in range(6): trread(aWD + 4 * c, "a", vTRW, LWD + c * 1024, 128)
        a(f"s_movk_i32 {sOff}, {G_H[L]}\ns_mov_b32 {sT0}, {XB[2*L+1]}")
        ld = ""
        for c in range(5): ld += f"buffer_load_dwordx4 {WR(4*c,4)}, {vA0}, {sWS}, {sOff} offen offset:{c*256} sc1\n"
        ld += f"buffer_load_dwordx4 {WR(20,4)}, {vA1}, {sWS}, {sOff} offen sc1"
        poll(ld, [W(k) for k in range(24)])
        if L == 0: a("s_waitcnt lgkmcnt(0)")
        for c in range(6):
            a(f"v_mfma_f32_16x16x32_bf16 {WR(24,4)}, {AR(aWD+4*c)}, {WR(4*c,4)}, {'0' if c == 0 else WR(24,4)}")
        a(f"buffer_store_dwordx4 {WR(24,4)}, {vA2}, {sWS}, {sT0} offen sc1")
        if ackbar: a("s_waitcnt vmcnt(0)")
        a.label(Lh)
        a("s_barrier")
        stamp(f"zack{L}")

    def q_stage():
        Lc = lab("gclr")
        a(f"s_cmp_lg_u32 {sW}, 6\ns_cbranch_scc1 {Lc}")
        for k in range(4): a(f"v_mov_b32 {W(8+k)}, -1")
        a(f"v_lshlrev_b32 {W(12)}, 4, {vL}")
        lstore([f"buffer_store_dwordx4 {WR(8,4)}, {W(12)}, {sWS}, {sAr} offen offset:{A_G[1]}", f"buffer_store_dwordx4 {WR(8,4)}, {W(12)}, {sWS}, {sAr} offen offset:{A_G[1]+896}"])
        a.label(Lc)
        x_gather(XB[1])
        stamp("zgot0")
        xs_publish()
        a(f"s_lshl_b32 {sT1}, {sW}, 6\ns_add_u32 {sT1}, {sT1}, {sAr}")
        a("s_waitcnt lgkmcnt(1)")
        a(f"v_mfma_f32_16x16x32_bf16 {WR(8,4)}, {AR(aWQ)}, {WR(0,4)}, 0")
        a("s_waitcnt lgkmcnt(0)")
        a(f"v_mfma_f32_16x16x32_bf16 {WR(8,4)}, {AR(aWQ+4)}, {WR(4,4)}, {WR(8,4)}")
        Ls = lab("qst")
        a(f"s_cmp_lg_u32 {sW}, 7\ns_cbranch_scc1 {Ls}")
        gram_store("Q1")
        a.label(Ls)
        a("s_nop 3")
        lstore([f"buffer_store_dwordx4 {WR(8,4)}, {vQP}, {sWS}, {sT1} offen offset:{A_Q[1]}"])
        stamp("qpub1")

    a.label("L_toC0")
    a("s_waitcnt lgkmcnt(0)\ns_barrier")
    stamp("barC0")
    attention(0); wo_stage(0); gu_stage(0); ffn_tail(0); q_stage()
    attn_zero()
    a(f"s_cmp_ge_u32 {sW}, 4\ns_cbranch_scc1 L_hiC1")
    q_gather()
    a("s_branch L_toC1")
    a.label("L_hiC1")
    a(f"s_xor_b32 {sT0}, {sW}, 4\ns_or_b32 {sT0}, {sT0}, s2\ns_cbranch_scc1 L_toC1")
    a(f"v_mov_b32 {W(0)}, {sEp}\nv_lshlrev_b32 {W(1)}, 24, {vL}\ns_mov_b32 {sT0}, {EPO}\nbuffer_store_dword {W(0)}, {W(1)}, {sWS}, {sT0} offen")
    a.label("L_toC1")
    a("s_waitcnt lgkmcnt(0)\ns_barrier")
    stamp("barC1")
    attention(1); wo_stage(1); gu_stage(1); ffn_tail(1)
    a(f"s_cmp_lg_u32 {sFin}, 0\ns_cbranch_scc1 L_fin")
    x_gather(XB[3])
    a(f"buffer_store_short {W(0)}, v0, {sOut}, 0 offen")
    a.label("L_fin")
    if pad:
        a.label("L_pad")
        a(f"s_memrealtime s[4:5]\ns_waitcnt lgkmcnt(0)\ns_sub_u32 s4, s4, s96\ns_cmp_lt_u32 s4, {pad*100}\ns_cbranch_scc1 L_pad")
    if stamps:
        stamp("end")
        a(f"s_cmp_lg_u32 {sW}, {stw}\ns_cbranch_scc1 L_end")
        a(f"s_lshl_b32 {sT0}, s2, 8\ns_add_u32 {sT0}, {sT0}, 0x10000000\ns_add_u32 s98, s98, {sT0}\ns_addc_u32 s99, s99, 0")
        a(f"v_lshlrev_b32 {W(0)}, 1, {vL4}\nv_mov_b32 {W(2)}, {vST}\nv_mov_b32 {W(3)}, 0\nv_cmp_gt_u32 vcc, 32, {vL}\ns_and_saveexec_b64 s[6:7], vcc")
        a(f"global_store_dwordx2 {W(0)}, {WR(2,2)}, s[98:99]")
    a.label("L_end")
    a("s_endpgm")
    for L, stores in slow:
        a.label(L)
        a("s_nop 7")
        for s_ in stores: a(s_ + " sc1")
        a(f"s_nop 1\ns_branch {L}r")
    return wrap(a.text(), 256, 512, LDS_SIZE, 256, 144), nst[0]

if __name__ == "__main__":
    t, _ = gen(); open("k.s", "w").write(t)
    t, n = gen(stamps=True); open("ks.s", "w").write(t)
    for arg in sys.argv[1:]:
        name, kw = arg.split("=", 1)
        t, n2 = gen(**eval("dict(" + kw + ")")); open(name + ".s", "w").write(t)
    print("stamps", n)
```

```python
import sys, math, struct
from asmlib import *

XB = [0, 131072, 262144, 393216]
FLG = 524288
EPO = FLG + 1024
HA = FLG + 2048
H_OD = 0; H_LSE = 2048; H_ST = {"G0": 2176, "Q1": 2432, "G1": 2688}; H_MF = 2944
HST = 3200
WA = HA + 32 * HST
A_Q = 0; A_G = 2560; GCS = 1536
AST = 4480
WSN = WA + 256 * AST
OOB = 0x7FFF0000
LWQ = 0; LWO = 16384; LGU = 32768; LWD = 45056
LXS = 53248; XSS = 144
LXR = 54016
LHS = 54656
LQS = 55296; LZERO = 55552; LDUM = 55584; LFLG = 56704
LOW = 56832; LML = 60928
LDS_SIZE = 61440
C2 = math.log2(math.e) / math.sqrt(128.0)
DPP = "row_mask:0xf bank_mask:0xf"
def f32(x): return "0x%08x" % struct.unpack("<I", struct.pack("<f", x))[0]

sK, sV, sWq, sWo, sWg, sWu, sWd, sWS, sX, sOut = [f"s[{28+4*k}:{31+4*k}]" for k in range(10)]
def sr(srd, k): return "s%d" % (int(srd[2:srd.index(":")]) + k)
(sG, sI, sHL, sJ, sW, sB, sH, sAr, sHa, sT0, sT1, sT2, sT3, sCnt, sOff, sOff2, sNT, sTB, sXcc, sFin,
 sEp, sMode, sXp, sGUo, sWDo, sLse, sGp, sGc) = [f"s{68+k}" for k in range(28)]
sKV = "s3"; sFlag = sOff2
sM1, sM2, sM3 = "s[12:13]", "s[14:15]", "s[16:17]"
vL, vN, vGK = "v1", "v2", "v3"
W = lambda k: f"v{4+k}"
def WR(k, n): return f"v[{4+k}:{4+k+n-1}]"
P = ["v%d" % k for k in list(range(48, 64)) + list(range(128, 148))]
(vQG, vSG, vOG, vLG, vXG, vGG, vGC, vGS, vQP, vOP, vGP, vGCP, vYP, vZP, vRES, vDMA,
 vDW, vXSW, vXSR, vQSW, vQR0, vQR1, vQR2, vQR3, vOWW, vOWR, vMLR, vHW, vHR, vCSQ, vIDX, vTR, vL16, vL0, vMLW, vST) = P
vSP = vGG
def vVld(t, c): return 64 + 32 * (t >> 1) + 8 * c + 4 * (t & 1)
def aK(t, c): return f"a[{16*t+4*c}:{16*t+4*c+3}]"
aWQ, aWO, aGU, aWD, aSEL = 64, 72, 88, 96, 104
def AR(b, n=4): return f"a[{b}:{b+n-1}]"
def VR(b, n=4): return f"v[{b}:{b+n-1}]"
MF = "v_mfma_f32_16x16x32_bf16"

def gen(stamps=False, limit=4000000, stw=0, xdelay=0, prio=True, cyc=False, pad=0, padat=None, amp=None,
        codepf=True, wnt="nt", map1=False, abl=(), cap=5, extra=4):
    a = Asm()
    nst = [0]; slow = []
    def stamp(name):
        if amp and name == amp[0]: a("s_memrealtime s[4:5]\ns_waitcnt lgkmcnt(0)\ns_mov_b32 s100, s4")
        if amp and name == amp[1]: a("s_memrealtime s[4:5]\ns_waitcnt lgkmcnt(0)\ns_mov_b32 s101, s4")
        if padat == name:
            a.label("L_pad")
            a(f"s_memrealtime s[4:5]\ns_waitcnt lgkmcnt(0)\ns_sub_u32 s4, s4, s96\ns_cmp_lt_u32 s4, {pad*100}\ns_cbranch_scc1 L_pad")
        if not stamps: return
        k = nst[0]; nst[0] += 1
        a(f"{'s_memtime' if cyc else 's_memrealtime'} s[100:101]\ns_waitcnt lgkmcnt(0)\nv_writelane_b32 {vST}, s100, {k}")
    uid = [0]
    def lab(p):
        uid[0] += 1; return f"L_{p}{uid[0]}"
    def poll(loads, regs):
        L = lab("poll")
        a.label(L)
        a(loads)
        a(f"s_add_u32 {sCnt}, {sCnt}, 1\ns_cmp_gt_u32 {sCnt}, {limit}\ns_cbranch_scc1 L_end")
        a("s_waitcnt vmcnt(0)")
        t = W(43); r = list(regs)
        a(f"v_max3_u32 {t}, {r[0]}, {r[1]}, {r[2]}"); r = r[3:]
        while len(r) >= 2: a(f"v_max3_u32 {t}, {t}, {r[0]}, {r[1]}"); r = r[2:]
        if r: a(f"v_max_u32 {t}, {t}, {r[0]}")
        a(f"v_cmp_eq_u32 vcc, -1, {t}\ns_cbranch_vccnz {L}")
    def lstore(stores):
        L = lab("slow")
        a(f"s_cmp_eq_u32 {sMode}, 0\ns_cbranch_scc1 {L}")
        for s_ in stores: a(s_)
        a.label(L + "r")
        slow.append((L, stores))
    def red4(r0, r1, r2, r3):
        a(f"v_permlane32_swap_b32 {r0}, {r1}\nv_permlane32_swap_b32 {r2}, {r3}")
        a(f"v_add_f32 {r0}, {r0}, {r1}\nv_add_f32 {r2}, {r2}, {r3}")
        a(f"v_permlane16_swap_b32 {r0}, {r2}\nv_add_f32 {r0}, {r0}, {r2}")
    def red8(r0, r1, r2, r3):
        red4(r0, r1, r2, r3)
        a(f"v_add_f32_dpp {r0}, {r0}, {r0} row_ror:8 {DPP}")
    LO8 = ("quad_perm:[1,0,3,2]", "quad_perm:[2,3,0,1]", "row_half_mirror")
    def ln_fin(vmu, vrs):
        a(f"v_fma_f32 {vrs}, -{vmu}, {vmu}, {vrs}\nv_max_f32 {vrs}, 0, {vrs}\nv_add_f32 {vrs}, {f32(1e-5)}, {vrs}\nv_rsq_f32 {vrs}, {vrs}")
    def trread(dst, kind, vbase, off, qstride):
        a(f"ds_read_b64_tr_b16 {kind}[{dst}:{dst+1}], {vbase} offset:{off}")
        a(f"ds_read_b64_tr_b16 {kind}[{dst+2}:{dst+3}], {vbase} offset:{off+qstride}")
    def sel(dst, vfalse, vtrue, cmp):
        a(f"{cmp}\nv_cndmask_b32 {dst}, {vfalse}, {vtrue}, vcc")
    def only(cond, name):
        L = lab(name); a(f"{cond}\ns_cbranch_scc0 {L}"); return L
    def ones4(k):
        for q in range(4): a(f"v_mov_b32 {W(k+q)}, -1")

    def off(tag):
        if tag in abl: a(f"s_mov_b32 {sr(sWS,2)}, 0")
    def on(tag):
        if tag in abl: a(f"s_mov_b32 {sr(sWS,2)}, {WSN}")
    def signal(grp, val="1"):
        a(f"s_and_b32 {sT0}, {sW}, 3\ns_lshl_b32 {sT0}, {sT0}, 2\nv_mov_b32 {W(34)}, {sT0}\nv_mov_b32 {W(35)}, {val}\nds_write_b32 {W(34)}, {W(35)} offset:{LFLG+16*grp}")
    def await4(grp, r):
        L = lab("lw")
        a(f"v_mov_b32 {W(34)}, 0")
        a.label(L)
        a(f"ds_read_b128 {WR(r,4)}, {W(34)} offset:{LFLG+16*grp}")
        a(f"s_add_u32 {sCnt}, {sCnt}, 1\ns_cmp_gt_u32 {sCnt}, {limit}\ns_cbranch_scc1 L_end\ns_waitcnt lgkmcnt(0)")
        a(f"v_min3_u32 {W(35)}, {W(r)}, {W(r+1)}, {W(r+2)}\nv_min_u32 {W(35)}, {W(35)}, {W(r+3)}\nv_cmp_eq_u32 vcc, 0, {W(35)}\ns_cbranch_vccnz {L}")
    a("s_cmp_ge_u32 s2, 256\ns_cbranch_scc1 L_end")
    a("s_load_dwordx16 s[4:19], s[0:1], 0\ns_load_dwordx8 s[20:27], s[0:1], 64")
    if stamps or pad: a(f"{'s_memtime' if cyc else 's_memrealtime'} s[96:97]")
    if codepf:
        a("s_getpc_b64 s[28:29]")
        a.label("L_pcref")
        a(f"s_lshr_b32 s30, s2, 3\ns_mul_i32 s30, s30, 384\nv_lshl_add_u32 v4, v0, 7, s30\nv_min_u32 v4, L_codeend-L_pcref-4, v4")
        a(f"v_cmp_gt_u32 vcc, 3, v0\ns_and_saveexec_b64 s[30:31], vcc\ns_cbranch_execz L_nopf\nglobal_load_dword {W(36)}, v4, s[28:29]")
        a.label("L_nopf")
        a("s_mov_b64 exec, -1")
    a(f"v_lshrrev_b32 v4, 6, v0\nv_and_b32 {vL}, 63, v0\nv_readfirstlane_b32 {sW}, v4")
    a(f"v_and_b32 {vN}, 15, v0\nv_lshrrev_b32 {vGK}, 4, {vL}")
    a(f"v_lshlrev_b32 v4, 2, {vN}\nv_mov_b32 v5, 0\nds_write_b32 v4, v5 offset:{LFLG}")
    a(f"s_and_b32 {sG}, s2, 7\ns_lshr_b32 {sI}, s2, 3\ns_and_b32 {sHL}, {sI}, 3\ns_lshr_b32 {sJ}, {sI}, 2")
    a(f"s_and_b32 {sB}, {sJ}, 3\ns_lshl_b32 {sH}, {sG}, 2\ns_add_u32 {sH}, {sH}, {sHL}")
    a(f"s_lshl_b32 {sT0}, {sB}, 5\ns_add_u32 {sT0}, {sT0}, {sH}\ns_lshl_b32 {sT0}, {sT0}, 20\ns_add_u32 {sT0}, {sT0}, 0xC0000")
    a(f"s_lshr_b32 {sT1}, {sJ}, 2\ns_lshl_b32 {sT1}, {sT1}, 17\ns_add_u32 {sT0}, {sT0}, {sT1}")
    a(f"s_lshr_b32 {sT1}, {sW}, 2\ns_lshl_b32 {sT1}, {sT1}, 16\ns_add_u32 {sT0}, {sT0}, {sT1}")
    a(f"s_and_b32 {sT3}, {sW}, 3\ns_lshl_b32 {sT1}, {sT3}, 12\ns_add_u32 {sT0}, {sT0}, {sT1}")
    vKO, vWQO = W(40), W(42)
    t0, t1, t2, t3, vE, vHi3, vLo3 = W(0), W(1), W(2), W(3), W(4), W(5), W(6)
    a(f"v_and_b32 v4, 6, {vN}\nv_lshlrev_b32 v4, 9, v4\nv_lshl_add_u32 v4, {vGK}, 5, v4\nv_and_b32 v5, 8, {vN}\nv_lshl_add_u32 v4, v5, 5, v4\nv_and_b32 v5, 1, {vN}\nv_lshl_add_u32 {vKO}, v5, 4, v4")
    a(f"v_lshlrev_b32 {vL16}, 4, {vL}")
    for srd in (sK, sV, sWq, sX): a(f"s_mov_b32 {sr(srd,3)}, 0x20000")
    a(f"s_mov_b32 {sr(sK,2)}, 0xD000\ns_mov_b32 {sr(sV,2)}, 0xD000\ns_mov_b32 {sr(sWq,2)}, {0 if 'nowq' in abl else 0x400000}\ns_mov_b32 {sr(sX,2)}, {0 if 'nox' in abl else 4096}")
    a(f"v_lshlrev_b32 v4, 13, {vGK}\nv_lshl_add_u32 {vWQO}, {vN}, 4, v4")
    a(f"s_lshl_b32 {sT1}, {sJ}, 2\ns_add_u32 {sT1}, {sT1}, {sT3}\ns_lshl_b32 {sT1}, {sT1}, 17\ns_lshl_b32 {sT2}, {sH}, 8\ns_add_u32 {sT1}, {sT1}, {sT2}")
    a(f"s_lshl_b32 {sT2}, {sT3}, 12\ns_mov_b32 m0, {sT2}\ns_lshl_b32 {sT3}, {sT3}, 10")
    a("s_waitcnt lgkmcnt(0)\ns_barrier")
    XR = 12
    if stamps: a(f"v_mov_b32 {vST}, 0\nv_writelane_b32 {vST}, s96, 0"); nst[0] = 1
    stamp("kernarg")
    a(f"s_load_dword {sEp}, s[26:27], {EPO}")
    a(f"s_add_u32 {sr(sK,0)}, s6, {sT0}\ns_addc_u32 {sr(sK,1)}, s7, 0")
    a(f"s_add_u32 {sr(sV,0)}, s8, {sT0}\ns_addc_u32 {sr(sV,1)}, s9, 0")
    a(f"s_mov_b32 {sr(sX,0)}, s4\ns_mov_b32 {sr(sX,1)}, s5\ns_mov_b32 {sr(sWq,0)}, s10\ns_mov_b32 {sr(sWq,1)}, s11")
    def ldKV(k, capped=True):
        t, c = (k & 15) >> 2, k & 3
        if c == 0: a(f"s_mov_b32 {sKV}, {t*16384}")
        if capped and k > cap: a(f"s_waitcnt vmcnt({cap})")
        if k < 16: a(f"buffer_load_dwordx4 {aK(t,c)}, {vKO}, {sK}, {sKV} offen offset:{(c>>1)*512+(c&1)*128} nt")
        else: a(f"buffer_load_dwordx4 {VR(vVld(t,c))}, {vL16}, {sV}, {sKV} offen offset:{c*1024} nt")
    a(f"s_cmp_lt_u32 {sW}, 4\ns_cbranch_scc1 L_early0")
    a(f"buffer_load_dwordx4 {WR(XR,4)}, {vL16}, {sX}, {sT3} offen")
    for k in range(4):
        if k: a(f"s_add_u32 m0, {sT2}, {k*1024}\ns_add_u32 {sT1}, {sT1}, 32768")
        a(f"buffer_load_dwordx4 {vWQO}, {sWq}, {sT1} offen nt lds")
    a("s_branch L_common")
    a.label("L_early0")
    for k in range(32):
        ldKV(k)
        if k == cap + 1: stamp("E first")
    signal(1)
    stamp("E done")
    a.label("L_common")
    for srd in (sWo, sWg, sWu, sWd, sWS, sOut): a(f"s_mov_b32 {sr(srd,3)}, 0x20000")
    a(f"s_mov_b32 {sr(sWS,0)}, s26\ns_mov_b32 {sr(sWS,1)}, s27\ns_mov_b32 {sr(sWS,2)}, {0 if 'nows' in abl else WSN}")
    a(f"s_mul_i32 {sAr}, s2, {AST}\ns_add_u32 {sAr}, {sAr}, {WA}\ns_and_b32 {sT0}, s2, 31\ns_mul_i32 {sHa}, {sT0}, {HST}\ns_add_u32 {sHa}, {sHa}, {HA}")
    a(f"s_lshl_b32 {sXp}, {sJ}, 14\ns_lshl_b32 {sT0}, {sT0}, 7\ns_add_u32 {sXp}, {sXp}, {sT0}")
    a(f"v_mov_b32 {t3}, {OOB}\nv_lshrrev_b32 {vHi3}, 3, {vL}\nv_and_b32 {vLo3}, 7, {vL}\nv_lshlrev_b32 {vL0}, 24, {vL}")
    vXC = W(41)
    a(f"v_and_b32 {t0}, 32, {vL}\nv_lshlrev_b32 {t0}, 12, {t0}\nv_and_b32 {t1}, 8, {vL}\nv_lshl_add_u32 {t0}, {t1}, 10, {t0}\nv_and_b32 {t1}, 16, {vL}\nv_lshl_add_u32 {t0}, {t1}, 8, {t0}\nv_lshl_add_u32 {vXC}, {vLo3}, 4, {t0}")
    a(f"s_mov_b32 {sCnt}, 0\ns_mov_b32 {sMode}, 0")
    a(f"s_getreg_b32 {sXcc}, hwreg(HW_REG_XCC_ID)\ns_and_b32 {sXcc}, {sXcc}, 15")
    a(f"v_lshlrev_b32 {t0}, 9, {vN}\nv_lshl_add_u32 {t0}, {vGK}, 4, {t0}\ns_lshl_b32 {sT1}, {sW}, 6\ns_add_u32 {sT1}, {sT1}, {sAr}\nv_add_u32 {t0}, {sT1}, {t0}")
    sel(W(39), t3, t0, f"v_cmp_gt_u32 vcc, 5, {vN}")
    sel(vQP, t3, t0, f"v_cmp_gt_u32 vcc, 4, {vN}")
    a(f"v_min_u32 {t0}, 4, {vN}\nv_mul_u32_u24 {t0}, {XSS}, {t0}\nv_lshl_add_u32 {t0}, {vGK}, 4, {t0}\nv_add_u32 {vXSR}, {LXS}, {t0}")
    vTRQ, vTRG = W(38), W(37)
    a(f"v_lshrrev_b32 {t0}, 2, {vN}\nv_lshl_add_u32 {t0}, {vGK}, 3, {t0}\nv_and_b32 {t1}, 3, {vN}\ns_lshl_b32 {sT0}, {sW}, 5\nv_lshl_add_u32 {t1}, {t1}, 3, {sT0}")
    a(f"v_lshl_add_u32 {vTRQ}, {t0}, 8, {t1}\nv_lshl_add_u32 {vTR}, {t0}, 7, {t1}")
    a(f"s_cmp_lt_u32 {sW}, 4\ns_cbranch_scc1 L_part2")
    a(f"s_and_b32 {sT0}, {sW}, 3\ns_mul_i32 {sT0}, {sT0}, 640\ns_add_u32 {sT0}, {sT0}, {sAr}\ns_add_u32 s6, s26, {sT0}\ns_addc_u32 s7, s27, 0")
    Lx = only(f"s_cmp_eq_u32 {sW}, 7", "w7")
    a(f"s_waitcnt lgkmcnt(0)\ns_add_u32 {sT1}, {sEp}, 1\ns_and_b32 {sT1}, {sT1}, 0x0fffffff\ns_lshl_b32 {sT2}, {sXcc}, 28\ns_or_b32 {sFlag}, {sT1}, {sT2}\nv_mov_b32 {W(30)}, {sFlag}")
    a(f"s_lshl_b32 {sT0}, {sJ}, 2\ns_add_u32 {sT0}, {sT0}, {sHa}\nbuffer_store_dword {W(30)}, {vL0}, {sWS}, {sT0} offen offset:{H_MF} sc1")
    ones4(24)
    sel(t0, t3, vXC, f"v_cmp_gt_u32 vcc, 32, {vL}")
    a(f"buffer_store_dwordx4 {WR(24,4)}, {t0}, {sWS}, {sXp} offen sc1")
    a(f"s_lshl_b32 {sT0}, {sJ}, 8\ns_mul_i32 {sT1}, {sJ}, 112\ns_add_u32 {sT1}, {sT1}, {H_LSE-256}")
    a(f"s_add_u32 {sT0}, {sT0}, {sHa}\ns_add_u32 {sT1}, {sT1}, {sHa}\ns_add_u32 s8, s26, {sT0}\ns_addc_u32 s9, s27, 0\ns_add_u32 s10, s26, {sT1}\ns_addc_u32 s11, s27, 0")
    a(f"s_load_dword s4, s[8:9], 0\ns_load_dword s4, s[8:9], 128\ns_load_dword s4, s[10:11], 256\ns_load_dword s4, s[10:11], 364")
    a.label(Lx)
    for k in range(5): a(f"s_load_dword s5, s[6:7], {128*k}")
    a.label("L_part2")
    a(f"s_mov_b32 {sr(sWo,0)}, s12\ns_mov_b32 {sr(sWo,1)}, s13\ns_mov_b32 {sr(sWo,2)}, {0 if 'nowo' in abl else 0x400000}")
    a(f"s_mov_b32 {sr(sWg,0)}, s16\ns_mov_b32 {sr(sWg,1)}, s17\ns_mov_b32 {sr(sWg,2)}, 1409024")
    a(f"s_mov_b32 {sr(sWu,0)}, s18\ns_mov_b32 {sr(sWu,1)}, s19\ns_mov_b32 {sr(sWu,2)}, 1409024")
    a(f"s_mul_i32 {sTB}, {sG}, 11\ns_cmp_eq_u32 {sG}, 7\ns_cselect_b32 {sTB}, 76, {sTB}\ns_cmp_lt_u32 {sG}, 6\ns_cselect_b32 {sNT}, 11, 10")
    a(f"s_mul_i32 {sT0}, {sHL}, 3\ns_add_u32 {sTB}, {sTB}, {sT0}\ns_sub_u32 {sNT}, {sNT}, {sT0}\ns_min_u32 {sNT}, {sNT}, 3")
    a(f"s_add_u32 {sT0}, {sTB}, {sNT}\ns_lshl_b32 {sr(sWd,2)}, {sT0}, 14\ns_mov_b32 {sr(sWd,0)}, s20\ns_mov_b32 {sr(sWd,1)}, s21")
    a(f"s_mov_b32 {sr(sOut,0)}, s22\ns_mov_b32 {sr(sOut,1)}, s23\ns_mov_b32 {sr(sOut,2)}, 4096")
    if stamps: a("s_mov_b32 s98, s26\ns_mov_b32 s99, s27")
    a(f"s_xor_b32 {sFin}, {sG}, {sJ}\ns_or_b32 {sFin}, {sFin}, {sHL}")
    a(f"s_mov_b64 {sM1}, 2\ns_mov_b64 {sM2}, 4\ns_mov_b64 {sM3}, 8")
    a(f"s_lshl_b32 {sGUo}, {sTB}, 5\ns_mul_i32 {sT1}, {sJ}, {64*2752}\ns_add_u32 {sGUo}, {sGUo}, {sT1}")
    a(f"s_lshl_b32 {sWDo}, {sTB}, 14\ns_lshl_b32 {sT1}, {sW}, 13\ns_add_u32 {sWDo}, {sWDo}, {sT1}\ns_lshl_b32 {sT1}, {sJ}, 7\ns_add_u32 {sWDo}, {sWDo}, {sT1}")
    a(f"s_add_u32 {sT0}, {sAr}, {A_G}\ns_lshl_b32 {sGp}, {sW}, 8\ns_add_u32 {sGp}, {sGp}, {sT0}")
    a(f"s_lshr_b32 {sT2}, {sW}, 1\ns_lshl_b32 {sT2}, {sT2}, 7\ns_add_u32 {sT0}, {sT0}, {sT2}\ns_and_b32 {sGc}, {sW}, 1\ns_lshl_b32 {sGc}, {sGc}, 2\ns_add_u32 {sGc}, {sGc}, {sT0}")
    a(f"v_lshrrev_b32 {t0}, 1, {vGK}\nv_and_b32 {t1}, 1, {vGK}\nv_lshl_add_u32 {vE}, {t1}, 1, {t0}")
    vXB = vGK if map1 else vE
    a(f"s_lshl_b32 {sT1}, {sW}, 4\nv_lshl_add_u32 {t1}, {vLo3}, 1, {sT1}\nv_mul_u32_u24 {t2}, {XSS}, {vXB}\nv_add_u32 {t2}, {t1}, {t2}\nv_add_u32 {vXSW}, {LXS}, {t2}")
    a(f"v_lshl_add_u32 {t0}, {vXB}, 10, {t1}\ns_lshl_b32 {sT1}, {sJ}, 7\nv_add_u32 v0, {sT1}, {t0}")
    a(f"v_mul_u32_u24 {t2}, {XSS}, {vE}\nv_add_u32 {t2}, {t1}, {t2}\nv_add_u32 {t0}, {LHS}, {t2}\nv_add_u32 {t2}, {LDUM}, {vL16}")
    sel(vHW, t2, t0, f"v_cmp_gt_u32 vcc, 8, {vN}")
    a(f"s_and_b32 {sT0}, s2, 31\ns_mul_i32 {sT0}, {sT0}, {AST}\ns_add_u32 {sT0}, {sT0}, {WA}\ns_mov_b32 {sT3}, {32*AST}\nv_mul_lo_u32 {t0}, {vHi3}, {sT3}\nv_add_u32 {W(7)}, {sT0}, {t0}")
    a(f"s_lshl_b32 {sT1}, {sW}, 7\nv_lshl_add_u32 {t0}, {vLo3}, 4, {W(7)}\nv_add_u32 {vQG}, {sT1}, {t0}")
    a(f"s_lshr_b32 {sT1}, {sW}, 1\ns_lshl_b32 {sT1}, {sT1}, 9\ns_and_b32 {sT2}, {sW}, 1\ns_lshl_b32 {sT2}, {sT2}, 7\ns_add_u32 {sT1}, {sT1}, {sT2}\nv_add_u32 {vGG}, {sT1}, {t0}")
    a(f"s_lshl_b32 {sT1}, {sW}, 6\nv_lshl_add_u32 {t0}, {vLo3}, 3, {W(7)}\nv_add_u32 {vGC}, {sT1}, {t0}")
    a(f"v_lshl_add_u32 {t0}, {vN}, 2, {sHa}\nv_lshl_add_u32 {vGS}, {vE}, 6, {t0}\ns_lshl_b32 {sT0}, {sB}, 6\nv_add_u32 {vSG}, {sT0}, {t0}")
    a(f"v_lshrrev_b32 {t0}, 3, {vN}\nv_lshl_add_u32 {t0}, {t0}, 2, {vGK}\nv_lshlrev_b32 {t0}, 7, {t0}\nv_lshl_add_u32 {t0}, {vLo3}, 4, {t0}\nv_add_u32 {vOG}, {sHa}, {t0}")
    a(f"v_lshl_add_u32 {t0}, {vLo3}, 2, {sHa}")
    sel(vLG, t3, t0, f"v_cmp_gt_u32 vcc, 8, {vN}")
    a(f"s_lshl_b32 {sT0}, {sJ}, 14\ns_and_b32 {sT1}, {sW}, 2\ns_lshl_b32 {sT1}, {sT1}, 12\ns_add_u32 {sT0}, {sT0}, {sT1}\ns_and_b32 {sT1}, {sW}, 4\ns_lshl_b32 {sT1}, {sT1}, 10\ns_add_u32 {sT0}, {sT0}, {sT1}")
    a(f"s_and_b32 {sT1}, {sW}, 1\ns_lshl_b32 {sT1}, {sT1}, 6\ns_add_u32 {sT0}, {sT0}, {sT1}")
    if map1: a(f"v_and_b32 {t0}, 3, {vL}\nv_lshl_add_u32 {t0}, {vGK}, 2, {t0}\nv_lshlrev_b32 {t0}, 7, {t0}\nv_and_b32 {t1}, 12, {vL}\nv_lshl_add_u32 {t0}, {t1}, 2, {t0}\nv_add_u32 {vXG}, {sT0}, {t0}")
    else: a(f"v_lshrrev_b32 {t0}, 2, {vL}\nv_lshlrev_b32 {t0}, 7, {t0}\nv_and_b32 {t1}, 48, {vL16}\nv_add3_u32 {vXG}, {t0}, {t1}, {sT0}")
    a(f"s_and_b32 {sT0}, {sW}, 1\ns_lshl_b32 {sT0}, {sT0}, 13\ns_and_b32 {sT1}, {sW}, 2\ns_lshl_b32 {sT1}, {sT1}, 11\ns_add_u32 {sT0}, {sT0}, {sT1}\ns_add_u32 {sT0}, {sT0}, {sXp}")
    a(f"v_and_b32 {t0}, 2, {vGK}\nv_lshlrev_b32 {t0}, 5, {t0}\nv_and_b32 {t1}, 1, {vGK}\nv_lshl_add_u32 {t0}, {t1}, 3, {t0}\nv_add_u32 {t0}, {sT0}, {t0}\nv_lshl_add_u32 {t1}, {vN}, 4, {t0}")
    a(f"v_cmp_gt_u32 vcc, 4, {vN}\nv_cndmask_b32 {vZP}, {t3}, {t1}, vcc\nv_lshl_add_u32 {t1}, {vN}, 3, {t0}\nv_and_b32 {t0}, 9, {vN}")
    sel(vYP, t3, t1, f"v_cmp_eq_u32 vcc, 0, {t0}")
    sel(vGP, t3, vL16, f"v_cmp_gt_u32 vcc, 16, {vL}")
    a(f"v_lshlrev_b32 {t0}, 3, {vN}")
    sel(vGCP, t3, t0, f"v_cmp_eq_u32 vcc, 1, {vGK}")
    a(f"s_lshr_b32 {sT1}, {sJ}, 2\ns_lshl_b32 {sT0}, {sB}, 1\ns_add_u32 {sT0}, {sT0}, {sT1}\ns_lshl_b32 {sLse}, {sT0}, 2\ns_add_u32 {sLse}, {sLse}, {sHa}\ns_lshl_b32 {sT0}, {sT0}, 4\ns_add_u32 {sT0}, {sT0}, {sHa}")
    a(f"v_lshrrev_b32 {t0}, 2, {vL}\nv_lshlrev_b32 {t0}, 7, {t0}\nv_and_b32 {t1}, 3, {vL}\nv_lshl_add_u32 {t0}, {t1}, 2, {t0}\nv_add_u32 {vOP}, {sT0}, {t0}")
    a(f"v_and_b32 {t0}, 3, {vN}\nv_mul_u32_u24 {t0}, {XSS}, {t0}\nv_lshl_add_u32 {t0}, {vGK}, 4, {t0}\nv_add_u32 {vHR}, {LHS}, {t0}")
    a(f"v_and_b32 {t0}, 2, {vL}\nv_lshlrev_b32 {t0}, 4, {t0}\nv_and_b32 {t1}, 1, {vE}\nv_lshl_add_u32 {t0}, {t1}, 4, {t0}\nv_and_b32 {t1}, 4, {vL}\nv_lshl_add_u32 {t0}, {t1}, 1, {t0}")
    a(f"v_and_b32 {t1}, 1, {vL}\nv_lshl_add_u32 {t0}, {t1}, 2, {t0}\nv_and_b32 {t1}, 2, {vE}\ns_lshl_b32 {sT0}, {sW}, 6\ns_add_u32 {sT0}, {sT0}, {LQS}\nv_add3_u32 {t0}, {t0}, {t1}, {sT0}")
    sel(vQSW, t2, t0, f"v_cmp_gt_u32 vcc, 8, {vN}")
    a(f"v_and_b32 {t0}, 3, {vN}\nv_lshlrev_b32 {t0}, 4, {t0}\nv_lshl_add_u32 {t0}, {vGK}, 6, {t0}\nv_add_u32 {t0}, {LQS}, {t0}\nv_mov_b32 {t1}, {LZERO}\nv_lshrrev_b32 {W(7)}, 2, {vN}")
    for c, r in enumerate((vQR0, vQR1, vQR2, vQR3)): sel(r, t1, t0, f"v_cmp_eq_u32 vcc, {c}, {W(7)}")
    a(f"s_lshl_b32 {sT0}, {sW}, 9\ns_add_u32 {sT0}, {sT0}, {LOW}\nv_lshl_add_u32 {t0}, {vGK}, 2, {vN}\nv_and_b32 {t0}, 15, {t0}\nv_lshl_add_u32 {t0}, {vGK}, 4, {t0}\nv_lshl_add_u32 {vOWW}, {t0}, 3, {sT0}")
    a(f"v_and_b32 {t1}, 3, {vL}\nv_lshrrev_b32 {t0}, 2, {vL}\nv_lshl_add_u32 {t0}, {t1}, 2, {t0}\nv_and_b32 {t0}, 15, {t0}\nv_lshl_add_u32 {t0}, {t1}, 4, {t0}\nv_lshlrev_b32 {t0}, 3, {t0}\nv_add_u32 {vOWR}, {LOW}, {t0}")
    a(f"v_lshlrev_b32 {t0}, 3, {vLo3}\nv_add_u32 {vMLR}, {LML}, {t0}")
    a(f"s_lshl_b32 {sT0}, {sW}, 3\ns_add_u32 {sT0}, {sT0}, {LML}\nv_lshlrev_b32 {t0}, 3, {vL}\nv_add_u32 {vMLW}, {LDUM}, {t0}\nv_writelane_b32 {vMLW}, {sT0}, 0")
    a(f"v_and_b32 {t0}, 1, {vL}\nv_mul_u32_u24 {t1}, 0x5555, {t0}\nv_add_u32 {vIDX}, 0x8888, {t1}")
    a(f"v_lshlrev_b32 {t0}, 4, {t0}\nv_mov_b32 {t1}, 0x3f80\nv_lshlrev_b32 {t0}, {t0}, {t1}\nv_lshrrev_b32 {t1}, 1, {vLo3}")
    for q in range(4): a(f"v_cmp_eq_u32 vcc, {q}, {t1}\nv_cndmask_b32 {W(7)}, 0, {t0}, vcc\nv_accvgpr_write_b32 a{aSEL+q}, {W(7)}")
    a(f"v_lshlrev_b32 {t0}, 10, {vHi3}\nv_lshl_add_u32 {vDW}, {vLo3}, 4, {t0}")
    a(f"s_lshl_b32 {sT0}, {sW}, 6\nv_add_u32 {t0}, {sT0}, {vL}\nv_mul_u32_u24 {t1}, 43691, {t0}\nv_lshrrev_b32 {t1}, 18, {t1}\nv_mul_u32_u24 {t2}, 6, {t1}\nv_sub_u32 {t0}, {t0}, {t2}")
    a(f"v_mul_u32_u24 {t1}, 2752, {t1}\nv_lshl_add_u32 {t1}, {t0}, 4, {t1}\ns_lshl_b32 {sT0}, {sNT}, 1")
    sel(vDMA, t3, t1, f"v_cmp_gt_u32 vcc, {sT0}, {t0}")
    a(f"s_cmp_lt_u32 {sW}, 4\ns_cbranch_scc1 L_early1")
    Lx = only(f"s_cmp_eq_u32 {sW}, 7", "w7b")
    a(f"s_lshl_b32 {sT0}, {sJ}, 2\ns_add_u32 {sT0}, {sT0}, {sHa}\nv_lshlrev_b32 {t0}, 6, {vN}\nv_lshl_add_u32 {t0}, {vGK}, 5, {t0}\nv_add_u32 {t0}, {sT0}, {t0}\nv_and_b32 {t1}, 0x2c, {vL}")
    sel(vSP, t3, t0, f"v_cmp_eq_u32 vcc, 0, {t1}")
    a.label(Lx)
    Lx = only(f"s_cmp_eq_u32 {sW}, 6", "w6")
    a(f"v_mov_b32 {t0}, 0x3f803f80\nv_and_b32 {t1}, 31, {vL}\nv_lshlrev_b32 {t1}, 2, {t1}\nds_write_b32 {t1}, {t0} offset:{LXS+4*XSS}")
    a(f"v_mov_b32 {t2}, 0\nv_and_b32 {t0}, 12, {t1}\nds_write_b32 {t0}, {t2} offset:{LZERO}")
    a(f"v_mul_u32_u24 {t0}, {XSS}, {vGK}\nv_lshl_add_u32 {t0}, {vLo3}, 2, {t0}\nds_write_b32 {t0}, {t2} offset:{LHS+96}")
    a.label(Lx)
    a(f"v_mov_b32 {W(8)}, 0\nv_mov_b32 {W(9)}, 0\nv_mov_b32 {W(10)}, 0x3f803f80")
    a(f"s_and_b32 {sT0}, {sW}, 3\ns_mul_i32 {sT0}, {sT0}, {XSS}\ns_add_u32 {sT0}, {sT0}, {LXS}\nv_lshl_add_u32 {t0}, {vLo3}, 4, {sT0}\nv_mov_b32 {t2}, {LDUM}")
    sel(W(11), t2, t0, f"v_cmp_eq_u32 vcc, {sJ}, {vHi3}")
    stamp("L addr")
    a(f"s_cmp_lt_u32 {sW}, 7\ns_cbranch_scc1 L_w0a\ns_add_u32 s24, s26, {sHa}\ns_addc_u32 s25, s27, 0\ns_waitcnt vmcnt(6) lgkmcnt(0)\ns_load_dwordx8 s[4:11], s[24:25], {H_MF}\ns_branch L_w0b")
    a.label("L_w0a")
    a("s_waitcnt vmcnt(4)")
    a.label("L_w0b")
    stamp("L wq")
    for k in range(4): a(f"v_dot2_f32_bf16 {W(8)}, {W(XR+k)}, {W(XR+k)}, {W(8)}\nv_dot2_f32_bf16 {W(9)}, {W(XR+k)}, {W(10)}, {W(9)}")
    a(f"ds_write_b128 {W(11)}, {WR(XR,4)} offset:{LXR-LXS}\ns_nop 1")
    for m in LO8 + ("row_ror:8",):
        for r in (W(8), W(9)): a(f"v_add_f32_dpp {r}, {r}, {r} {m} {DPP}")
    for r in (W(8), W(9)):
        a(f"v_mov_b32 {W(7)}, {r}\nv_permlane16_swap_b32 {r}, {W(7)}\nv_add_f32 {r}, {r}, {W(7)}")
        a(f"v_mov_b32 {W(7)}, {r}\nv_permlane32_swap_b32 {r}, {W(7)}\nv_add_f32 {r}, {r}, {W(7)}")
    a(f"v_mul_f32 {W(9)}, {f32(1/512)}, {W(9)}\nv_mul_f32 {W(8)}, {f32(1/512)}, {W(8)}")
    ln_fin(W(9), W(8))
    for k in range(4):
        a(f"v_lshlrev_b32 {t0}, 16, {W(XR+k)}\nv_and_b32 {t1}, 0xffff0000, {W(XR+k)}\nv_sub_f32 {t0}, {t0}, {W(9)}\nv_sub_f32 {t1}, {t1}, {W(9)}")
        a(f"v_mul_f32 {t0}, {t0}, {W(8)}\nv_mul_f32 {t1}, {t1}, {W(8)}\nv_cvt_pk_bf16_f32 {W(16+k)}, {t0}, {t1}")
    a(f"ds_write_b128 {W(11)}, {WR(16,4)}")
    stamp("L preA")
    Lx = only(f"s_cmp_eq_u32 {sW}, 7", "w7m")
    Lm = lab("mf")
    a(f"s_lshl_b32 {sT0}, {sJ}, 8\ns_mul_i32 {sT1}, {sJ}, 112\ns_add_u32 {sT1}, {sT1}, {H_LSE-256}\nv_add_u32 {t0}, {sT0}, {vL16}\nv_add_u32 {t1}, {sT1}, {vL16}")
    sel(t0, t1, t0, f"v_cmp_gt_u32 vcc, 16, {vL}")
    sel(W(31), t3, t0, f"v_cmp_gt_u32 vcc, 23, {vL}")
    a("s_waitcnt lgkmcnt(0)")
    a(f"s_xor_b32 {sT0}, s4, {sFlag}")
    for k in range(1, 8): a(f"s_xor_b32 {sT1}, s{4+k}, {sFlag}\ns_or_b32 {sT0}, {sT0}, {sT1}")
    a(f"s_and_b32 {sT1}, {sT0}, 0x0fffffff\ns_cbranch_scc0 {Lm}k")
    a(f"v_lshlrev_b32 {t0}, 2, {vLo3}")
    a.label(Lm)
    a(f"buffer_load_dword {t1}, {t0}, {sWS}, {sHa} offen offset:{H_MF} sc1")
    a(f"s_add_u32 {sCnt}, {sCnt}, 1\ns_cmp_gt_u32 {sCnt}, {limit}\ns_cbranch_scc1 L_end\ns_waitcnt vmcnt(0)")
    a(f"v_xor_b32 {t1}, {sFlag}, {t1}\nv_and_b32 {t2}, 0x0fffffff, {t1}\nv_cmp_ne_u32 vcc, 0, {t2}\ns_cbranch_vccnz {Lm}")
    a(f"v_cmp_ne_u32 vcc, 0, {t1}\ns_nop 1\ns_mov_b32 {sT0}, vcc_lo")
    a.label(Lm + "k")
    a(f"s_cmp_eq_u32 {sT0}, 0\ns_cselect_b32 {sMode}, 1, 0")
    lstore([f"buffer_store_dwordx4 {WR(24,4)}, {W(31)}, {sWS}, {sHa} offen"])
    a(f"s_and_b32 {sT0}, s2, 31\ns_lshl_b32 {sT0}, {sT0}, 3\ns_add_u32 {sT0}, {sT0}, {sJ}\ns_lshl_b32 {sT0}, {sT0}, 2\ns_add_u32 {sT0}, {sT0}, {FLG}")
    a(f"s_waitcnt vmcnt(1)\nbuffer_store_dword {W(30)}, {vL0}, {sWS}, {sT0} offen sc1\ns_branch L_w1b")
    a.label(Lx)
    a("s_waitcnt vmcnt(0) lgkmcnt(0)")
    a.label("L_w1b")
    a(f"s_add_u32 {sT1}, {sMode}, 1")
    signal(0, sT1)
    await4(0, 20)
    a(f"v_readfirstlane_b32 {sMode}, {W(23)}\ns_sub_u32 {sMode}, {sMode}, 1")
    stamp("barA")
    a(f"ds_read_b128 {WR(0,4)}, {vXSR}\nds_read_b128 {WR(4,4)}, {vXSR} offset:64\nv_subrev_u32 {W(28)}, 128, {vTRQ}")
    for c in range(2): trread(aWQ + 4 * c, "a", vTRQ, LWQ + c * 8192, 1024)
    for c in range(2): trread(4 + 20 + 4 * c, "v", W(28), LWQ + c * 8192, 1024)
    a(f"s_add_u32 {sEp}, {sEp}, 1\ns_movk_i32 {sT2}, 0xff\nv_mov_b32 {W(16)}, {sEp}\nv_subrev_u32 {W(29)}, 256, {W(39)}")
    a("s_waitcnt lgkmcnt(0)")
    a(f"{MF} {WR(8,4)}, {AR(aWQ)}, {WR(0,4)}, 0\n{MF} {WR(12,4)}, {WR(20,4)}, {WR(0,4)}, 0")
    a(f"{MF} {WR(8,4)}, {AR(aWQ+4)}, {WR(4,4)}, {WR(8,4)}\n{MF} {WR(12,4)}, {WR(24,4)}, {WR(4,4)}, {WR(12,4)}")
    for k in range(8): a(f"v_bfi_b32 {W(8+k)}, {sT2}, {W(16)}, {W(8+k)}")
    a("s_waitcnt vmcnt(1)")
    lstore([f"buffer_store_dwordx4 {WR(8,4)}, {W(39)}, {sWS}, 0 offen", f"buffer_store_dwordx4 {WR(12,4)}, {W(29)}, {sWS}, 0 offen"])
    stamp("q0 pub")
    Lb = lab("lb")
    a(f"s_and_b32 {sT0}, {sW}, 3\ns_lshl_b32 {sT0}, {sT0}, 2\nv_mov_b32 {W(34)}, {sT0}")
    a.label(Lb)
    a(f"ds_read_b32 {W(35)}, {W(34)} offset:{LFLG+16}")
    a(f"s_add_u32 {sCnt}, {sCnt}, 1\ns_cmp_gt_u32 {sCnt}, {limit}\ns_cbranch_scc1 L_end\ns_waitcnt lgkmcnt(0)")
    a(f"v_cmp_eq_u32 vcc, 0, {W(35)}\ns_cbranch_vccnz {Lb}")
    stamp("barB")
    NPRE = 16 + cap + 1 + extra
    for k in range(NPRE): ldKV(k, k < NPRE - extra)
    stamp("L preC")
    a("s_branch L_toC0")
    def ldTail(k):
        if k < 32: return ldKV(k)
        k -= 32
        if k == 0: a(f"s_and_b32 {sT2}, {sW}, 3\ns_lshl_b32 {sT0}, {sH}, 17\ns_lshl_b32 {sT1}, {sT2}, 15\ns_add_u32 {sT0}, {sT0}, {sT1}\ns_lshl_b32 {sT1}, {sJ}, 7\ns_add_u32 {sT0}, {sT0}, {sT1}\ns_lshl_b32 {sT2}, {sT2}, 12")
        a(f"s_add_u32 m0, {sT2}, {LWO+k*1024}")
        if k: a(f"s_add_u32 {sT0}, {sT0}, 8192")
        a(f"s_waitcnt vmcnt({cap})\nbuffer_load_dwordx4 {vDW}, {sWo}, {sT0} offen nt lds")
    a.label("L_early1")
    stamp("issued")
    await4(0, 20)
    a(f"v_readfirstlane_b32 {sMode}, {W(23)}\ns_sub_u32 {sMode}, {sMode}, 1")
    for c in range(2): trread(aWQ + 4 * c, "a", vTRQ, LWQ + c * 8192, 1024)
    a(f"s_waitcnt lgkmcnt(0)\ns_add_u32 {sEp}, {sEp}, 1")
    a(f"s_mul_i32 {sT0}, {sW}, 480\ns_add_u32 {sT0}, {sT0}, {sAr}\ns_add_u32 s6, s26, {sT0}\ns_addc_u32 s7, s27, 0")
    if "smem" not in abl:
        for k in range(4): a(f"s_load_dword s{8+k}, s[6:7], {A_G+120*k}")
    a(f"s_lshl_b32 {sOff}, {sB}, 9\ns_mov_b32 {sOff2}, {FLG}")
    La = lab("arr")
    a(f"s_branch {La}b")
    a.label(La)
    a("s_sleep 16")
    a.label(La + "b")
    off("qld")
    a(f"buffer_load_dwordx4 {WR(0,4)}, {vQG}, {sWS}, {sOff} offen sc1")
    on("qld")
    for k in range(4): a(f"v_mov_b32 {W(16+k)}, {sEp}")
    a(f"s_cmp_lg_u32 {sW}, 0\ns_cbranch_scc1 {La}c")
    off("flag")
    a(f"buffer_load_dwordx4 {WR(16,4)}, {vL16}, {sWS}, {sOff2} offen sc1")
    on("flag")
    a.label(La + "c")
    a(f"s_add_u32 {sCnt}, {sCnt}, 1\ns_cmp_gt_u32 {sCnt}, {limit}\ns_cbranch_scc1 L_end")
    a(f"s_waitcnt vmcnt(0)")
    a(f"v_xor_b32 {W(9)}, {sEp}, {W(0)}")
    for k in range(1, 4): a(f"v_xor_b32 {W(11)}, {sEp}, {W(k)}\nv_or_b32 {W(9)}, {W(9)}, {W(11)}")
    a(f"v_xor_b32 {W(10)}, {sEp}, {W(16)}")
    for k in range(1, 4): a(f"v_xor_b32 {W(11)}, {sEp}, {W(16+k)}\nv_or_b32 {W(10)}, {W(10)}, {W(11)}")
    a(f"v_and_b32 {W(9)}, 0xff, {W(9)}\nv_and_b32 {W(10)}, 0x0fffffff, {W(10)}\nv_or_b32 {W(9)}, {W(9)}, {W(10)}")
    if not abl: a(f"v_cmp_ne_u32 vcc, 0, {W(9)}\ns_cbranch_vccnz {La}")
    stamp("q0 got")
    for k in range(4): a(f"v_and_b32 {W(k)}, 0xffffff00, {W(k)}")
    red8(W(0), W(1), W(2), W(3))
    a(f"v_mul_f32 {W(0)}, {f32(C2)}, {W(0)}\nv_cvt_pk_bf16_f32 {W(0)}, {W(0)}, {W(0)}\nds_write_b16 {vQSW}, {W(0)}")
    signal(2)

    def q_gather():
        a(f"s_lshl_b32 {sOff}, {sB}, 9")
        poll(f"buffer_load_dwordx4 {WR(0,4)}, {vQG}, {sWS}, {sOff} offen sc1\n"
             f"buffer_load_dword {W(4)}, {vSG}, {sWS}, 0 offen offset:{H_ST['Q1']} sc1", [W(k) for k in range(5)])
        stamp("qgot1")
        s_, mu = W(4), W(5)
        a(f"v_mul_f32 {s_}, {f32(1/512)}, {s_}")
        a(f"v_permlane32_swap_b32 {W(0)}, {W(1)}\nv_permlane32_swap_b32 {W(2)}, {W(3)}")
        a(f"v_add_f32_dpp {s_}, {s_}, {s_} {LO8[0]} {DPP}")
        a(f"v_add_f32 {W(0)}, {W(0)}, {W(1)}\nv_add_f32 {W(2)}, {W(2)}, {W(3)}")
        a(f"v_add_f32_dpp {s_}, {s_}, {s_} {LO8[1]} {DPP}")
        a(f"v_permlane16_swap_b32 {W(0)}, {W(2)}")
        a(f"v_add_f32_dpp {s_}, {s_}, {s_} {LO8[2]} {DPP}")
        a(f"v_add_f32 {W(0)}, {W(0)}, {W(2)}")
        a(f"v_mov_b32_dpp {mu}, {s_} row_ror:8 {DPP}")
        a(f"v_add_f32_dpp {W(0)}, {W(0)}, {W(0)} row_ror:8 {DPP}")
        ln_fin(mu, s_)
        a(f"v_fma_f32 {W(0)}, -{mu}, {vCSQ}, {W(0)}\nv_mul_f32 {W(0)}, {f32(C2)}, {W(0)}\nv_mul_f32 {W(0)}, {W(0)}, {s_}")
        a(f"v_cvt_pk_bf16_f32 {W(0)}, {W(0)}, {W(0)}\nds_write_b16 {vQSW}, {W(0)}")

    SD, OA = 16, 24
    def attn_zero():
        for k in range(24): a(f"v_mov_b32 {W(SD+k)}, 0")
    def clearG(base):
        ones4(base)
        a(f"s_and_b32 {sT0}, {sW}, 1\ns_mul_i32 {sT0}, {sT0}, 896\ns_add_u32 {sT0}, {sT0}, {sAr}")
        lstore([f"buffer_store_dwordx4 {WR(base,4)}, {vL16}, {sWS}, {sT0} offen offset:{A_G}"])
    def attention(L):
        for c, r in enumerate((vQR0, vQR1, vQR2, vQR3)): a(f"ds_read_b128 {WR(4*c,4)}, {r}")
        if L == 0:
            a(f"ds_read_u16 {vRES}, {vXSW} offset:{LXR-LXS}")
            a(f"s_waitcnt vmcnt({NPRE-16}) lgkmcnt(0)")
            a(f"v_lshlrev_b32 {vRES}, 16, {vRES}")
            a(f"s_cmp_ge_u32 {sW}, 2\ns_cbranch_scc1 L_noclr")
            clearG(16)
            a.label("L_noclr")
            a("s_nop 1")
            attn_zero()
        elif prio:
            Lx = only(f"s_cmp_lt_u32 {sW}, 4", "np")
            a("s_setprio 1")
            a.label(Lx)
        for g_ in range(2):
            for t in range(4):
                if L == 1 and g_ == 0: a(f"s_waitcnt lgkmcnt({3-t})")
                a(f"v_smfmac_f32_16x16x64_bf16 {WR(SD+4*g_,4)}, {WR(4*t,4)}, a[{32*g_+8*t}:{32*g_+8*t+7}], {vIDX}")
        s0, s1, m, mt, l, lt = W(16), W(20), W(8), W(9), W(10), W(11)
        a(f"v_add_f32 {W(18)}, {W(18)}, {W(19)}\nv_add_f32 {s0}, {W(16)}, {W(17)}")
        a(f"v_add_f32 {W(22)}, {W(22)}, {W(23)}\nv_add_f32 {s1}, {W(20)}, {W(21)}")
        a(f"v_add_f32_dpp {s0}, {W(18)}, {s0} quad_perm:[1,1,3,3] {DPP}\nv_add_f32_dpp {s1}, {W(22)}, {s1} quad_perm:[1,1,3,3] {DPP}")
        a(f"v_max_f32 {m}, {s0}, {s1}")
        for mm in ("quad_perm:[2,3,0,1]", "row_ror:4", "row_ror:8"): a(f"v_max_f32_dpp {m}, {m}, {m} {mm} {DPP}")
        a(f"v_mov_b32 {mt}, {m}\nv_permlane16_swap_b32 {m}, {mt}\nv_max_f32 {m}, {m}, {mt}")
        a(f"v_mov_b32 {mt}, {m}\nv_permlane32_swap_b32 {m}, {mt}\nv_max_f32 {m}, {m}, {mt}")
        a(f"v_sub_f32 {s0}, {s0}, {m}\nv_sub_f32 {s1}, {s1}, {m}\nv_exp_f32 {s0}, {s0}\nv_exp_f32 {s1}, {s1}")
        a(f"v_mov_b32_dpp {W(17)}, {s0} quad_perm:[2,2,2,2] {DPP}\nv_mov_b32_dpp {W(21)}, {s1} quad_perm:[2,2,2,2] {DPP}")
        a(f"v_cvt_pk_bf16_f32 {W(17)}, {s0}, {W(17)}\nv_cvt_pk_bf16_f32 {W(21)}, {s1}, {W(21)}\nv_add_f32 {l}, {s0}, {s1}")
        def pb(g_, i): return f"v_mov_b32_dpp {W(4*g_+i)}, {W(17+4*g_)} row_newbcast:{4*i} {DPP}"
        for i in range(4): a(pb(0, i))
        a(pb(1, 0)); a(pb(1, 1))
        fill = [[pb(1, 2), pb(1, 3)], [f"v_add_f32_dpp {l}, {l}, {l} quad_perm:[2,3,0,1] {DPP}"], [f"v_add_f32_dpp {l}, {l}, {l} row_ror:4 {DPP}"], [f"v_add_f32_dpp {l}, {l}, {l} row_ror:8 {DPP}"],
                [f"v_mov_b32 {lt}, {l}"], [f"v_permlane16_swap_b32 {l}, {lt}"], [f"v_add_f32 {l}, {l}, {lt}", f"v_mov_b32 {lt}, {l}"], [f"v_permlane32_swap_b32 {l}, {lt}", f"v_add_f32 {mt}, {l}, {lt}",
                 f"ds_write_b64 {vMLW}, {WR(8,2)}"]]
        nxt = [NPRE]
        for g_ in range(2):
            if L == 0:
                for hf in range(2):
                    t = 2 * g_ + hf
                    last = min(35, max(20 + 4 * t + cap, nxt[0] - 1))
                    if last >= nxt[0]:
                        Lx = only(f"s_cmp_ge_u32 {sW}, 4", "tail")
                        for k in range(nxt[0], last + 1): ldTail(k)
                        a.label(Lx)
                        nxt[0] = last + 1
                    a(f"s_waitcnt vmcnt({last - (19 + 4 * t)})")
                    for c in range(4):
                        for u in range(c + 1, 4): a(f"v_swap_b32 v{vVld(t,c)+u}, v{vVld(t,u)+c}")
            for u in range(4):
                b0 = 64 + 32 * g_ + 8 * u
                a(f"v_smfmac_f32_16x16x64_bf16 {WR(OA+4*u,4)}, {WR(4*g_,4)}, v[{b0}:{b0+7}], {vIDX}")
                for x in fill[4 * g_ + u]: a(x)
        for u in range(1, 4):
            for e in range(2): a(f"v_mov_b32_dpp {W(OA+e)}, {W(OA+4*u+e)} quad_perm:[0,1,2,3] row_mask:{hex(1<<u)} bank_mask:0xf")
        a(f"ds_write_b64 {vOWW}, {WR(OA,2)}")
        if L == 0:
            assert nxt[0] == 36
            Lx = only(f"s_cmp_lt_u32 {sW}, 4", "ack")
            a("s_waitcnt vmcnt(0)")
            a.label(Lx)
        if L == 1:
            Lx = only(f"s_cmp_lt_u32 {sW}, 2", "gclr")
            clearG(12)
            a("s_waitcnt vmcnt(0)")
            a.label(Lx)
            if prio: a("s_setprio 0")
        a("s_waitcnt lgkmcnt(0)\ns_barrier")
        stamp(f"barD{L}")
        if abl and L == 0: a("s_branch L_fin")
        Ls = only(f"s_cmp_eq_u32 {sW}, 7", "ocomb")
        a(f"ds_read_b64 {WR(16,2)}, {vMLR}")
        for k in range(4): a(f"ds_read2st64_b64 {WR(4*k,4)}, {vOWR} offset0:{2*k} offset1:{2*k+1}")
        a("s_waitcnt lgkmcnt(4)")
        M, F, FL = W(18), W(19), W(20)
        a(f"v_max_f32_dpp {M}, {W(16)}, {W(16)} {LO8[0]} {DPP}")
        for mm in LO8[1:]: a(f"v_max_f32_dpp {M}, {M}, {M} {mm} {DPP}")
        a(f"v_sub_f32 {F}, {W(16)}, {M}\nv_exp_f32 {F}, {F}\nv_mul_f32 {FL}, {F}, {W(17)}")
        a("s_waitcnt lgkmcnt(0)")
        ex = {0: f"v_add_f32_dpp {FL}, {FL}, {FL} {LO8[0]} {DPP}", 1: f"v_add_f32_dpp {FL}, {FL}, {FL} {LO8[1]} {DPP}", 2: f"v_add_f32_dpp {FL}, {FL}, {FL} {LO8[2]} {DPP}",
              3: f"v_rcp_f32 {W(21)}, {FL}", 4: f"v_log_f32 {FL}, {FL}", 5: f"v_add_f32 {M}, {M}, {FL}"}
        for w in range(8):
            op = "v_mul_f32_dpp" if w == 0 else "v_fmac_f32_dpp"
            a(f"{op} {W(22)}, {F}, {W(2*w)} row_newbcast:{w} {DPP}\n{op} {W(23)}, {F}, {W(2*w+1)} row_newbcast:{w} {DPP}")
            if w in ex: a(ex[w])
        a(f"v_mul_f32 {W(22)}, {W(22)}, {W(21)}\nv_mul_f32 {W(23)}, {W(23)}, {W(21)}")
        a(f"v_cvt_pk_bf16_f32 {W(22)}, {W(22)}, {W(23)}\nv_min_u32 {W(22)}, -2, {W(22)}")
        lstore([f"buffer_store_dword {W(22)}, {vOP}, {sWS}, 0 offen", f"buffer_store_dword {M}, {vL0}, {sWS}, {sLse} offen offset:{H_LSE}"])
        stamp(f"opub{L}")
        a.label(Ls)

    def x_publish(d, vaddr, xb):
        a(f"v_cvt_pk_bf16_f32 {W(d)}, {W(d)}, {W(d+1)}\nv_cvt_pk_bf16_f32 {W(d+1)}, {W(d+2)}, {W(d+3)}")
        a(f"v_min_u32 {W(d)}, -2, {W(d)}\nv_min_u32 {W(d+1)}, -2, {W(d+1)}")
        a(f"buffer_store_dwordx2 {WR(d,2)}, {vaddr}, {sWS}, {sOff2} offen sc1")

    def wo_stage(L):
        if L == 0:
            Lx = only(f"s_cmp_eq_u32 {sW}, 3", "z0c")
            ones4(8)
            a(f"v_mov_b32 {W(12)}, {OOB}")
            sel(W(12), vXC, W(12), f"v_cmp_gt_u32 vcc, 32, {vL}")
            a(f"buffer_store_dwordx4 {WR(8,4)}, {W(12)}, {sWS}, {sXp} offen sc1")
            a.label(Lx)
            a("s_waitcnt vmcnt(0)\ns_barrier")
        Ls = only(f"s_cmp_lt_u32 {sW}, 4", "wos")
        if L == 0:
            for c in range(4): trread(aWO + 4 * c, "a", vTR, LWO + c * 4096, 512)
        a(f"s_mov_b32 {sOff2}, {XB[2*L]}")
        poll(f"buffer_load_dwordx4 {WR(0,4)}, {vOG}, {sWS}, 0 offen sc1\n"
             f"buffer_load_dwordx4 {WR(4,4)}, {vOG}, {sWS}, 0 offen offset:1024 sc1\n"
             f"buffer_load_dword {W(8)}, {vLG}, {sWS}, 0 offen offset:{H_LSE} sc1", [W(k) for k in range(9)])
        stamp(f"ogot{L}")
        if L == 0: a("s_waitcnt lgkmcnt(0)")
        a(f"{MF} {WR(16,4)}, {AR(aWO+4)}, {WR(0,4)}, 0\n{MF} {WR(12,4)}, {AR(aWO)}, {WR(0,4)}, 0")
        a(f"v_sub_f32_dpp {W(9)}, {W(8)}, {W(8)} quad_perm:[1,0,3,2] {DPP}")
        a(f"{MF} {WR(16,4)}, {AR(aWO+12)}, {WR(4,4)}, {WR(16,4)}\nv_exp_f32 {W(9)}, {W(9)}\n{MF} {WR(12,4)}, {AR(aWO+8)}, {WR(4,4)}, {WR(12,4)}")
        a(f"v_add_f32 {W(9)}, 1.0, {W(9)}\nv_rcp_f32 {W(9)}, {W(9)}")
        for r in range(4): a(f"v_add_f32_dpp {W(12+r)}, {W(16+r)}, {W(12+r)} row_ror:8 {DPP}")
        for r in range(4): a(f"v_mul_f32 {W(12+r)}, {W(12+r)}, {W(9)}")
        for r in range(4): a(f"v_add_f32_dpp {W(12+r)}, {W(12+r)}, {W(12+r)} quad_perm:[1,0,3,2] {DPP}")
        x_publish(12, vYP, XB[2 * L])
        stamp(f"ypub{L}")
        if L == 1: a("s_waitcnt vmcnt(0)")
        a.label(Ls)
        if L == 0:
            a("s_barrier")
            a(f"s_lshl_b32 {sT2}, {sW}, 10\ns_add_u32 m0, {sT2}, {LWD}")
            a(f"buffer_load_dwordx4 {vDW}, {sWd}, {sWDo} offen {wnt} lds")
            Lg, Lg2 = lab("gua"), lab("gub")
            a(f"s_cmp_ge_u32 {sW}, 6\ns_cbranch_scc1 {Lg}")
            a(f"s_add_u32 m0, {sT2}, {LGU}")
            a(f"buffer_load_dwordx4 {vDMA}, {sWg}, {sGUo} offen {wnt} lds")
            a(f"s_add_u32 m0, {sT2}, {LGU+6144}")
            a(f"buffer_load_dwordx4 {vDMA}, {sWu}, {sGUo} offen {wnt} lds")
            a(f"s_cmp_ge_u32 {sW}, 4\ns_cbranch_scc1 {Lg2}")
            a(f"buffer_load_dwordx4 {WR(20,4)}, {vQG}, {sWS}, 0 offen offset:2048 sc1")
            a(f"s_waitcnt vmcnt(4)\ns_branch {Lg2}")
            a.label(Lg)
            ones4(8)
            a(f"s_and_b32 {sT0}, {sW}, 1\ns_lshl_b32 {sT0}, {sT0}, 10\ns_add_u32 {sT0}, {sT0}, {sAr}")
            lstore([f"buffer_store_dwordx4 {WR(8,4)}, {vL16}, {sWS}, {sT0} offen offset:{A_Q}"])
            a(f"s_cmp_eq_u32 {sW}, 6\ns_cbranch_scc1 {Lg2}")
            a(f"s_add_u32 {sT0}, {sXp}, {XB[2]}\nbuffer_store_dwordx4 {WR(8,4)}, {vXC}, {sWS}, {sT0} offen sc1")
            a.label(Lg2)
        a("s_barrier")
        stamp(f"yack{L}")

    def x_gather(off):
        a(f"s_mov_b32 {sOff}, {off}")
        if xdelay: a(f"s_sleep {xdelay}")
        poll(f"buffer_load_dwordx4 {WR(4,4)}, {vXG}, {sWS}, {sOff} offen sc1\n"
             f"buffer_load_dwordx4 {WR(8,4)}, {vXG}, {sWS}, {sOff} offen offset:2048 sc1", [W(k) for k in range(4, 12)])
        a(f"{MF} {WR(0,4)}, {WR(4,4)}, {AR(aSEL)}, 0\n{MF} {WR(0,4)}, {WR(8,4)}, {AR(aSEL)}, {WR(0,4)}")
        if map1: a(f"v_add_f32 {W(0)}, {W(0)}, {W(1)}\nv_add_f32 {W(2)}, {W(2)}, {W(3)}\nv_add_f32 {W(0)}, {W(0)}, {vRES}\nv_add_f32 {W(0)}, {W(0)}, {W(2)}")
        else:
            red4(W(0), W(1), W(2), W(3))
            a(f"v_add_f32 {W(0)}, {W(0)}, {vRES}")
        a(f"v_cvt_pk_bf16_f32 {W(0)}, {W(0)}, {W(0)}")

    def xs_publish():
        a(f"ds_write_b16 {vXSW}, {W(0)}\nv_and_b32 {vRES}, 0xffff0000, {W(0)}")
        a("s_waitcnt lgkmcnt(0)\ns_barrier")
        a(f"ds_read_b128 {WR(0,4)}, {vXSR}\nds_read_b128 {WR(4,4)}, {vXSR} offset:64")

    def gram_store(key):
        a(f"{MF} {WR(12,4)}, {WR(0,4)}, {WR(0,4)}, 0\n{MF} {WR(12,4)}, {WR(4,4)}, {WR(4,4)}, {WR(12,4)}")
        a(f"v_cndmask_b32 {W(12)}, {W(12)}, {W(13)}, {sM1}\nv_cndmask_b32 {W(12)}, {W(12)}, {W(14)}, {sM2}\nv_cndmask_b32 {W(12)}, {W(12)}, {W(15)}, {sM3}")
        lstore([f"buffer_store_dword {W(12)}, {vSP}, {sWS}, 0 offen offset:{H_ST[key]}"])

    def ffn(L):
        if L == 0:
            a(f"v_lshrrev_b32 {W(16)}, 2, {vN}\nv_lshl_add_u32 {W(16)}, {vGK}, 3, {W(16)}\nv_mul_u32_u24 {W(16)}, 96, {W(16)}\nv_and_b32 {W(17)}, 24, {vTR}")
            a(f"s_lshr_b32 {sT0}, {sW}, 1\ns_lshl_b32 {sT0}, {sT0}, 5\ns_and_b32 {sT1}, {sW}, 1\ns_mul_i32 {sT1}, {sT1}, 6144\ns_add_u32 {sT0}, {sT0}, {sT1}\nv_add3_u32 {W(16)}, {W(16)}, {W(17)}, {sT0}")
        x_gather(XB[2 * L])
        stamp(f"ygot{L}")
        xs_publish()
        L6, Ld = lab("gu6"), lab("gud")
        a(f"s_cmp_ge_u32 {sW}, 6\ns_cbranch_scc1 {L6}")
        if L == 0:
            for c in range(2): trread(aGU + 4 * c, "a", W(16), LGU + c * 3072, 384)
        a("s_waitcnt lgkmcnt(1)" if L == 1 else "s_waitcnt lgkmcnt(2)")
        a(f"{MF} {WR(8,4)}, {WR(0,4)}, {AR(aGU)}, 0")
        a("s_waitcnt lgkmcnt(0)")
        a(f"{MF} {WR(8,4)}, {WR(4,4)}, {AR(aGU+4)}, {WR(8,4)}")
        a(f"s_movk_i32 {sOff}, {A_G}\ns_mov_b32 {sOff2}, {XB[2*L+1]}")
        lstore([f"buffer_store_dwordx4 {WR(8,4)}, {vGP}, {sWS}, {sGp} offen", f"buffer_store_dword {W(8)}, {vGCP}, {sWS}, {sGc} offen offset:{GCS}"])
        stamp(f"gupub{L}")
        if L == 0:
            for c in range(2): trread(aWD + 4 * c, "a", vTR, LWD + c * 4096, 512)
            for k in range(4): a(f"v_and_b32 {W(20+k)}, 0xffffff00, {W(20+k)}")
            red8(W(20), W(21), W(22), W(23))
            a(f"v_mov_b32 {vCSQ}, {W(20)}")
        poll(f"buffer_load_dwordx4 {WR(0,4)}, {vGG}, {sWS}, {sOff} offen sc1\n"
             f"buffer_load_dwordx4 {WR(4,4)}, {vGG}, {sWS}, {sOff} offen offset:256 sc1\n"
             f"buffer_load_dwordx2 {WR(14,2)}, {vGC}, {sWS}, {sOff} offen offset:{GCS} sc1\n"
             f"buffer_load_dword {W(12)}, {vGS}, {sWS}, 0 offen offset:{H_ST['G%d'%L]} sc1", [W(k) for k in (0, 1, 2, 3, 4, 5, 6, 7, 12, 14, 15)])
        stamp(f"gugot{L}")
        s_, mu, cg, cu = W(12), W(13), W(14), W(15)
        a(f"v_mul_f32 {s_}, {f32(1/512)}, {s_}")
        a(f"v_permlane32_swap_b32 {cg}, {cu}\nv_permlane32_swap_b32 {W(0)}, {W(1)}")
        a(f"v_add_f32_dpp {s_}, {s_}, {s_} {LO8[0]} {DPP}")
        a(f"v_add_f32 {cg}, {cg}, {cu}\nv_permlane32_swap_b32 {W(2)}, {W(3)}")
        a(f"v_add_f32_dpp {s_}, {s_}, {s_} {LO8[1]} {DPP}")
        a(f"v_mov_b32 {cu}, {cg}\nv_permlane32_swap_b32 {W(4)}, {W(5)}")
        a(f"v_add_f32_dpp {s_}, {s_}, {s_} {LO8[2]} {DPP}")
        a(f"v_permlane16_swap_b32 {cg}, {cu}\nv_permlane32_swap_b32 {W(6)}, {W(7)}")
        a(f"v_mov_b32_dpp {mu}, {s_} row_ror:8 {DPP}")
        a(f"v_add_f32 {cg}, {cg}, {cu}\nv_add_f32 {W(0)}, {W(0)}, {W(1)}\nv_add_f32 {W(2)}, {W(2)}, {W(3)}")
        a(f"v_add_f32_dpp {cg}, {cg}, {cg} row_ror:8 {DPP}")
        a(f"v_add_f32 {W(4)}, {W(4)}, {W(5)}\nv_add_f32 {W(6)}, {W(6)}, {W(7)}")
        a(f"v_mov_b32 {cu}, {cg}\nv_permlane16_swap_b32 {W(0)}, {W(2)}")
        a(f"v_fma_f32 {s_}, -{mu}, {mu}, {s_}\nv_permlane16_swap_b32 {W(4)}, {W(6)}\nv_permlane32_swap_b32 {cg}, {cu}")
        a(f"v_max_f32 {s_}, 0, {s_}\nv_add_f32 {W(0)}, {W(0)}, {W(2)}\nv_add_f32 {W(4)}, {W(4)}, {W(6)}\nv_add_f32 {s_}, {f32(1e-5)}, {s_}")
        a(f"v_add_f32_dpp {W(0)}, {W(0)}, {W(0)} row_ror:8 {DPP}\nv_rsq_f32 {s_}, {s_}\nv_add_f32_dpp {W(4)}, {W(4)}, {W(4)} row_ror:8 {DPP}")
        g, u = W(0), W(4)
        k1 = -2.0 * math.sqrt(2.0 / math.pi) * math.log2(math.e); k2 = k1 * 0.044715
        a(f"v_fma_f32 {g}, -{mu}, {cg}, {g}\nv_mov_b32 {W(2)}, {f32(k1)}\nv_mul_f32 {g}, {g}, {s_}\nv_mul_f32 {W(1)}, {g}, {g}")
        a(f"v_fmac_f32 {W(2)}, {f32(k2)}, {W(1)}\nv_mul_f32 {W(2)}, {W(2)}, {g}\nv_exp_f32 {W(2)}, {W(2)}\nv_fma_f32 {u}, -{mu}, {cu}, {u}")
        a(f"v_add_f32 {W(2)}, 1.0, {W(2)}\nv_rcp_f32 {W(2)}, {W(2)}\nv_mul_f32 {u}, {u}, {s_}\nv_mul_f32 {g}, {g}, {W(2)}\nv_mul_f32 {u}, {u}, {g}")
        a(f"v_cvt_pk_bf16_f32 {u}, {u}, {u}\nds_write_b16 {vHW}, {u}")
        a(f"s_branch {Ld}")
        a.label(L6)
        a(f"s_waitcnt lgkmcnt(0)\ns_cmp_lg_u32 {sW}, 7\ns_cbranch_scc1 {Ld}")
        gram_store(f"G{L}")
        a.label(Ld)
        a("s_waitcnt lgkmcnt(0)\ns_barrier")
        stamp(f"hbar{L}")
        Lz, Lz2 = lab("dn"), lab("dnb")
        a(f"s_cmp_ge_u32 {sW}, 4\ns_cbranch_scc1 {Lz}")
        a(f"ds_read_b128 {WR(0,4)}, {vHR}\nds_read_b128 {WR(4,4)}, {vHR} offset:64")
        a(f"s_waitcnt lgkmcnt(1)\n{MF} {WR(8,4)}, {AR(aWD)}, {WR(0,4)}, 0\ns_waitcnt lgkmcnt(0)\n{MF} {WR(8,4)}, {AR(aWD+4)}, {WR(4,4)}, {WR(8,4)}")
        x_publish(8, vZP, XB[2 * L + 1])
        stamp(f"zpub{L}")
        a("s_waitcnt vmcnt(0)")
        if L == 0:
            a(f"s_branch {Lz2}")
            a.label(Lz)
            a(f"s_cmp_lg_u32 {sW}, 4\ns_cbranch_scc1 {Lz2}")
            ones4(8)
            a(f"s_lshl_b32 {sT0}, {sJ}, 8\ns_add_u32 {sT0}, {sT0}, {sHa}")
            lstore([f"buffer_store_dwordx4 {WR(8,4)}, {vGP}, {sWS}, {sT0} offen", f"buffer_store_dword {W(8)}, {vL0}, {sWS}, {sLse} offen offset:{H_LSE}"])
            a.label(Lz2)
        else:
            a.label(Lz)
        if L == 1: a(f"s_cmp_lg_u32 {sFin}, 0\ns_cbranch_scc1 L_fin")
        a("s_barrier")
        stamp(f"zack{L}")

    def q_stage():
        x_gather(XB[1])
        stamp("zgot0")
        xs_publish()
        a("s_waitcnt lgkmcnt(1)")
        a(f"{MF} {WR(8,4)}, {AR(aWQ)}, {WR(0,4)}, 0")
        a("s_waitcnt lgkmcnt(0)")
        a(f"{MF} {WR(8,4)}, {AR(aWQ+4)}, {WR(4,4)}, {WR(8,4)}")
        Ls = only(f"s_cmp_eq_u32 {sW}, 7", "qst")
        gram_store("Q1")
        a.label(Ls)
        a("s_nop 3")
        lstore([f"buffer_store_dwordx4 {WR(8,4)}, {vQP}, {sWS}, 0 offen"])
        stamp("qpub1")

    a.label("L_toC0")
    await4(2, 20)
    stamp("barC0")
    attention(0); wo_stage(0); ffn(0); q_stage()
    attn_zero()
    a(f"s_cmp_ge_u32 {sW}, 4\ns_cbranch_scc1 L_hiC1")
    q_gather()
    a("s_branch L_toC1")
    a.label("L_hiC1")
    a(f"s_xor_b32 {sT0}, {sW}, 4\ns_or_b32 {sT0}, {sT0}, s2\ns_cbranch_scc1 L_toC1")
    a(f"v_mov_b32 {W(0)}, {sEp}\ns_mov_b32 {sT0}, {EPO}\nbuffer_store_dword {W(0)}, {vL0}, {sWS}, {sT0} offen")
    a.label("L_toC1")
    a("s_waitcnt lgkmcnt(0)\ns_barrier")
    stamp("barC1")
    attention(1); wo_stage(1); ffn(1)
    x_gather(XB[3])
    a(f"buffer_store_short {W(0)}, v0, {sOut}, 0 offen")
    a.label("L_fin")
    if amp:
        if not stamps: stamp("end")
        if amp[0] == "start": a("s_mov_b32 s100, s96")
        a(f"s_cmp_lg_u32 {sW}, {stw}\ns_cbranch_scc1 L_end")
        a(f"s_sub_u32 s100, s101, s100\ns_min_u32 s100, s100, 3000\ns_mul_i32 s100, s100, {amp[2]}\ns_add_u32 s96, s96, s100")
        a.label("L_pad")
        a(f"s_memrealtime s[4:5]\ns_waitcnt lgkmcnt(0)\ns_sub_u32 s4, s4, s96\ns_cmp_lt_i32 s4, {pad*100}\ns_cbranch_scc1 L_pad")
    elif pad and not padat:
        a.label("L_pad")
        a(f"s_memrealtime s[4:5]\ns_waitcnt lgkmcnt(0)\ns_sub_u32 s4, s4, s96\ns_cmp_lt_u32 s4, {pad*100}\ns_cbranch_scc1 L_pad")
    if stamps:
        stamp("end")
        a(f"s_cmp_lg_u32 {sW}, {stw}\ns_cbranch_scc1 L_end")
        a(f"s_lshl_b32 {sT0}, s2, 8\ns_add_u32 {sT0}, {sT0}, 0x10000000\ns_add_u32 s98, s98, {sT0}\ns_addc_u32 s99, s99, 0")
        a(f"v_lshlrev_b32 {W(0)}, 2, {vL}\nglobal_store_dword {W(0)}, {vST}, s[98:99]")
    a.label("L_end")
    a("s_endpgm")
    for L, stores in slow:
        a.label(L)
        a("s_nop 7")
        for s_ in stores: a(s_ + " sc1")
        a(f"s_nop 1\ns_branch {L}r")
    a.label("L_codeend")
    return wrap(a.text(), 256, 512, LDS_SIZE, 256, 148), nst[0]

if __name__ == "__main__":
    t, _ = gen(); open("k.s", "w").write(t)
    t, n = gen(stamps=True); open("ks.s", "w").write(t)
    for arg in sys.argv[1:]:
        name, kw = arg.split("=", 1)
        t, n2 = gen(**eval("dict(" + kw + ")")); open(name + ".s", "w").write(t)
    print("stamps", n)
```

```python
import sys, math, struct
from asmlib import *

XB = [16384 + 262144 * k for k in range(4)]
FLG = 16384 + 1048576
EPO = 0
PRB = FLG
HA = FLG + 65536
H_OD = 0; H_LSE = 2048; H_ST = {"G0": 2176, "Q1": 2432, "G1": 2688}; H_MF = 2944; H_GF = 3072
HST = 3200
WA = HA + 32 * HST
A_Q = 0; A_G = 2560; GCS = 768
AST = 3712
WSN = WA + 256 * AST
OOB = 0x7FFF0000
LWQ = 0; LWO = 16384; LGU = 32768; LWD = 45056
LXS = 53248; XSS = 144
LXR = 54016
LHS = 54656
LQS = 55296; LZERO = 55552; LDUM = 55584; LFLG = 56704
LOW = 56832; LML = 61696
LDS_SIZE = 61824
C2 = math.log2(math.e) / math.sqrt(128.0)
K1 = -2.0 * math.sqrt(2.0 / math.pi) * math.log2(math.e)
DPP = "row_mask:0xf bank_mask:0xf"
def f32(x): return "0x%08x" % struct.unpack("<I", struct.pack("<f", x))[0]

sK, sV, sWq, sWo, sWg, sWu, sWd, sWS, sX, sOut = [f"s[{28+4*k}:{31+4*k}]" for k in range(10)]
def sr(srd, k): return "s%d" % (int(srd[2:srd.index(":")]) + k)
(sG, sI, sHL, sJ, sW, sB, sH, sAr, sHa, sT0, sT1, sT2, sT3, sCnt, sOff, sOff2, sNT, sTB, sXcc, sFin,
 sEp, sMode, sXp, sGUo, sWDo, sLse, sGp, sGc) = [f"s{68+k}" for k in range(28)]
sKV = "s3"; sFlag = sOff2
sM1, sM2, sM3 = "s[12:13]", "s[14:15]", "s[16:17]"
vL, vN, vGK = "v1", "v2", "v3"
W = lambda k: f"v{4+k}"
def WR(k, n): return f"v[{4+k}:{4+k+n-1}]"
P = ["v%d" % k for k in list(range(48, 64)) + list(range(128, 144))]
(vQG, vSG, vOG, vLG, vXG, vCG, vGC, vGS, vQP, vGP, vCU, vYP, vZP, vRES, vDW, vXSW,
 vXSR, vQSW, vQR0, vQR1, vQR2, vQR3, vOWW, vHW, vHR, vCSQ, vIDX, vTR, vL16, vL0, vMLW, vST) = P
vOWR, vMLR, vOP, vDMA, vOWR2 = vOG, vLG, vYP, vSG, vZP
vSP = vCG
def vVld(t, c): return 64 + 32 * (t >> 1) + 8 * c + 4 * (t & 1)
def aK(t, c): return f"a[{16*t+4*c}:{16*t+4*c+3}]"
aWQ, aWO, aGU, aWD, aSEL, aONE = 64, 72, 88, 96, 104, 108
def AR(b, n=4): return f"a[{b}:{b+n-1}]"
def VR(b, n=4): return f"v[{b}:{b+n-1}]"
MF = "v_mfma_f32_16x16x32_bf16"

def gen(stamps=False, limit=4000000, stw=0, xdelay=0, prio=False, cyc=False, pad=0, padat=None, amp=None,
        codepf=True, wnt="", ack0="own", guearly=False, ackY0=False, wdafter=True, y0delay=0, guw=2, gus=False, wds=True, woe=True, tcap=9, ramp=0, zd=0, zall=0, smprio=False, rep2=False, fin32=True, p2=(), p2gap=2, obar=2, gack=True, qack=True, gs=0, qs=0, os_=0, rs=0, d2ack=True, xs=None, numa='auto', dbgv=False, codepf2=True, sm64=True, map1=False, abl=(), cap=5, extra=4, rot=0, tight=None, tmask=0x55, mini=False, sel_st=(), cnt=False):
    a = Asm()
    nst = [0]; slow = []
    def stamp(name):
        if amp and name == amp[0]: a("s_memrealtime s[4:5]\ns_waitcnt lgkmcnt(0)\ns_mov_b32 s100, s4")
        if amp and name == amp[1]: a("s_memrealtime s[4:5]\ns_waitcnt lgkmcnt(0)\ns_mov_b32 s101, s4")
        if padat == name:
            a.label("L_pad")
            a(f"s_memrealtime s[4:5]\ns_waitcnt lgkmcnt(0)\ns_sub_u32 s4, s4, s96\ns_cmp_lt_u32 s4, {pad*100}\ns_cbranch_scc1 L_pad")
        if name.startswith("f ") and name not in sel_st: return
        if not stamps or (mini and name not in ("barD0", "end") + tuple(sel_st)): return
        if cnt:
            if nst[0] < 14: nst[0] += 1; a(f"s_nop 0"); return
            k = nst[0]; nst[0] += 1
            a(f"s_mul_i32 s100, {sCnt}, 100\ns_add_u32 s100, s100, s96\nv_writelane_b32 {vST}, s100, {k}")
            return
        k = nst[0]; nst[0] += 1
        a(f"{'s_memtime' if cyc else 's_memrealtime'} s[100:101]\ns_waitcnt lgkmcnt(0)\nv_writelane_b32 {vST}, s100, {k}")
    uid = [0]
    def lab(p):
        uid[0] += 1; return f"L_{p}{uid[0]}"
    def poll(loads, regs, spec="s_waitcnt vmcnt(0)"):
        L = lab("poll")
        if rs: a(f"s_branch {L}b")
        a.label(L)
        if rs:
            a(f"s_sleep {rs}"); a.label(L + "b")
        a(loads)
        a(f"s_add_u32 {sCnt}, {sCnt}, 1\ns_cmp_gt_u32 {sCnt}, {limit}\ns_cbranch_scc1 L_end")
        a(spec)
        t = W(43); r = list(regs)
        a(f"v_max3_u32 {t}, {r[0]}, {r[1]}, {r[2]}"); r = r[3:]
        while len(r) >= 2: a(f"v_max3_u32 {t}, {t}, {r[0]}, {r[1]}"); r = r[2:]
        if r: a(f"v_max_u32 {t}, {t}, {r[0]}")
        a(f"v_cmp_eq_u32 vcc, -1, {t}\ns_cbranch_vccnz {L}")
    def check(regs):
        t = W(43); r = list(regs)
        a(f"v_max3_u32 {t}, {r[0]}, {r[1]}, {r[2]}"); r = r[3:]
        while len(r) >= 2: a(f"v_max3_u32 {t}, {t}, {r[0]}, {r[1]}"); r = r[2:]
        if r: a(f"v_max_u32 {t}, {t}, {r[0]}")
        a(f"v_cmp_eq_u32 vcc, -1, {t}")
    def poll2(mk, post=None):
        L = lab("pp")
        n = mk(0, 0)[0].count("buffer_load")
        A, B = mk(0, n), mk(1, n)
        a(A[0])
        if p2gap: a(f"s_sleep {p2gap}")
        a.label(L)
        a(B[0])
        a(f"s_add_u32 {sCnt}, {sCnt}, 1\ns_cmp_gt_u32 {sCnt}, {limit}\ns_cbranch_scc1 L_end")
        a(A[2]); check(A[1]); a(f"s_cbranch_vccz {L}a")
        a(A[0])
        a(B[2]); check(B[1]); a(f"s_cbranch_vccnz {L}")
        if post:
            a(post(1)); a(f"s_branch {L}z")
            a.label(L + "a"); a(post(0)); a.label(L + "z")
        else: a.label(L + "a")
    def lstore(stores, pre=""):
        L = lab("slow")
        a(f"s_cmp_eq_u32 {sMode}, 0\ns_cbranch_scc1 {L}")
        a(pre)
        for s_ in stores: a(s_)
        a.label(L + "r")
        slow.append((L, stores, pre))
    def red4(r0, r1, r2, r3):
        a(f"v_permlane32_swap_b32 {r0}, {r1}\nv_permlane32_swap_b32 {r2}, {r3}")
        a(f"v_add_f32 {r0}, {r0}, {r1}\nv_add_f32 {r2}, {r2}, {r3}")
        a(f"v_permlane16_swap_b32 {r0}, {r2}\nv_add_f32 {r0}, {r0}, {r2}")
    def red8(r0, r1, r2, r3):
        red4(r0, r1, r2, r3)
        a(f"v_add_f32_dpp {r0}, {r0}, {r0} row_ror:8 {DPP}")
    LO8 = ("quad_perm:[1,0,3,2]", "quad_perm:[2,3,0,1]", "row_half_mirror")
    def ln_fin(vmu, vrs):
        a(f"v_fma_f32 {vrs}, -{vmu}, {vmu}, {vrs}\nv_max_f32 {vrs}, 0, {vrs}\nv_add_f32 {vrs}, {f32(1e-5)}, {vrs}\nv_rsq_f32 {vrs}, {vrs}")
    def trread(dst, kind, vbase, off, qstride):
        a(f"ds_read_b64_tr_b16 {kind}[{dst}:{dst+1}], {vbase} offset:{off}")
        a(f"ds_read_b64_tr_b16 {kind}[{dst+2}:{dst+3}], {vbase} offset:{off+qstride}")
    def sel(dst, vfalse, vtrue, cmp):
        a(f"{cmp}\nv_cndmask_b32 {dst}, {vfalse}, {vtrue}, vcc")
    def only(cond, name):
        L = lab(name); a(f"{cond}\ns_cbranch_scc0 {L}"); return L
    def ones4(k):
        for q in range(4): a(f"v_mov_b32 {W(k+q)}, -1")

    def off(tag):
        if tag in abl: a(f"s_mov_b32 {sr(sWS,2)}, 0")
    def on(tag):
        if tag in abl: a(f"s_mov_b32 {sr(sWS,2)}, {WSN}")
    def clearX(k, base):
        ones4(base)
        a(f"s_add_u32 {sT0}, {sXp}, {XB[k]}\nbuffer_store_dwordx4 {WR(base,4)}, {W(41)}, {sWS}, {sT0} offen sc1")
    def signal(grp, val="1", r=34):
        r2 = 35 if r == 34 else 42
        a(f"s_and_b32 {sT0}, {sW}, 3\ns_lshl_b32 {sT0}, {sT0}, 2\nv_mov_b32 {W(r)}, {sT0}\nv_mov_b32 {W(r2)}, {val}\nds_write_b32 {W(r)}, {W(r2)} offset:{LFLG+16*grp}")
    def await4(grp, r):
        L = lab("lw")
        a(f"v_mov_b32 {W(34)}, 0")
        a.label(L)
        a(f"ds_read_b128 {WR(r,4)}, {W(34)} offset:{LFLG+16*grp}")
        a(f"s_add_u32 {sCnt}, {sCnt}, 1\ns_cmp_gt_u32 {sCnt}, {limit}\ns_cbranch_scc1 L_end\ns_waitcnt lgkmcnt(0)")
        a(f"v_min3_u32 {W(35)}, {W(r)}, {W(r+1)}, {W(r+2)}\nv_min_u32 {W(35)}, {W(35)}, {W(r+3)}\nv_cmp_eq_u32 vcc, 0, {W(35)}\ns_cbranch_vccnz {L}")
    a("s_cmp_ge_u32 s2, 256\ns_cbranch_scc1 L_end")
    a("s_load_dwordx16 s[4:19], s[0:1], 0\ns_load_dwordx8 s[20:27], s[0:1], 64")
    if stamps or pad: a(f"{'s_memtime' if cyc else 's_memrealtime'} s[96:97]")
    if codepf:
        a("s_getpc_b64 s[28:29]")
        a.label("L_pcref")
        a(f"s_lshr_b32 s30, s2, 3\ns_mul_i32 s30, s30, 384\nv_lshl_add_u32 v4, v0, 7, s30\nv_min_u32 v4, L_codeend-L_pcref-4, v4")
        a(f"v_cmp_gt_u32 vcc, 3, v0\ns_and_saveexec_b64 s[30:31], vcc\ns_cbranch_execz L_nopf\nglobal_load_dword {W(36)}, v4, s[28:29]")
        a.label("L_nopf")
        a("s_mov_b64 exec, -1")
    a(f"v_lshrrev_b32 v4, 6, v0\nv_and_b32 {vL}, 63, v0\nv_readfirstlane_b32 {sW}, v4")
    a(f"v_and_b32 {vN}, 15, v0\nv_lshrrev_b32 {vGK}, 4, {vL}")
    a(f"v_lshlrev_b32 v4, 2, {vN}\nv_mov_b32 v5, 0\nds_write_b32 v4, v5 offset:{LFLG}")
    a(f"s_and_b32 {sG}, s2, 7\ns_lshr_b32 {sI}, s2, 3\ns_and_b32 {sHL}, {sI}, 3\ns_lshr_b32 {sJ}, {sI}, 2")
    a(f"s_and_b32 {sB}, {sJ}, 3\ns_lshl_b32 {sH}, {sG}, 2\ns_add_u32 {sH}, {sH}, {sHL}")
    a(f"s_lshl_b32 {sT0}, {sB}, 5\ns_add_u32 {sT0}, {sT0}, {sH}\ns_lshl_b32 {sT0}, {sT0}, 20\ns_add_u32 {sT0}, {sT0}, 0xC0000")
    a(f"s_lshr_b32 {sT1}, {sJ}, 2\ns_lshl_b32 {sT1}, {sT1}, 17\ns_add_u32 {sT0}, {sT0}, {sT1}")
    a(f"s_lshr_b32 {sT1}, {sW}, 2\ns_lshl_b32 {sT1}, {sT1}, 16\ns_add_u32 {sT0}, {sT0}, {sT1}")
    a(f"s_and_b32 {sT3}, {sW}, 3\ns_lshl_b32 {sKV}, {sT3}, 12")
    vKO, vWQO = W(40), W(42)
    t0, t1, t2, t3, vE, vHi3, vLo3 = W(0), W(1), W(2), W(3), W(4), W(5), W(6)
    a(f"v_and_b32 v4, 8, {vN}\nv_lshlrev_b32 v4, 12, v4\nv_lshl_add_u32 v4, {vGK}, 5, v4\nv_and_b32 v5, 2, {vN}\nv_lshl_add_u32 v4, v5, 10, v4")
    a(f"v_and_b32 v5, 4, {vN}\nv_lshl_add_u32 v4, v5, 6, v4\nv_and_b32 v5, 1, {vN}\nv_lshl_add_u32 {vKO}, v5, 4, v4")
    a(f"v_lshlrev_b32 {vL16}, 4, {vL}")
    for srd in (sK, sV, sWq, sX): a(f"s_mov_b32 {sr(srd,3)}, 0x20000")
    a(f"s_mov_b32 {sr(sK,2)}, 0x10000\ns_mov_b32 {sr(sV,2)}, 0x10000\ns_mov_b32 {sr(sWq,2)}, {0 if 'nowq' in abl else 0x400000}\ns_mov_b32 {sr(sX,2)}, {0 if 'nox' in abl else 4096}")
    a(f"v_lshlrev_b32 v4, 13, {vGK}\nv_lshl_add_u32 {vWQO}, {vN}, 4, v4")
    a(f"s_lshl_b32 {sT1}, {sJ}, 2\ns_add_u32 {sT1}, {sT1}, {sT3}\ns_lshl_b32 {sT1}, {sT1}, 17\ns_lshl_b32 {sT2}, {sH}, 8\ns_add_u32 {sT1}, {sT1}, {sT2}")
    a(f"s_lshl_b32 {sT2}, {sT3}, 12\ns_mov_b32 m0, {sT2}\ns_lshl_b32 {sT3}, {sT3}, 10")
    a("s_waitcnt lgkmcnt(0)\ns_barrier")
    XR = 12
    if stamps: a(f"v_mov_b32 {vST}, 0\nv_writelane_b32 {vST}, s96, 0"); nst[0] = 1
    stamp("kernarg")
    a(f"s_load_dword {sEp}, s[26:27], {EPO}")
    a(f"s_add_u32 {sr(sK,0)}, s6, {sT0}\ns_addc_u32 {sr(sK,1)}, s7, 0")
    a(f"s_add_u32 {sr(sV,0)}, s8, {sT0}\ns_addc_u32 {sr(sV,1)}, s9, 0")
    a(f"s_mov_b32 {sr(sX,0)}, s4\ns_mov_b32 {sr(sX,1)}, s5\ns_mov_b32 {sr(sWq,0)}, s10\ns_mov_b32 {sr(sWq,1)}, s11")
    first = [True]
    def tw():
        L = lab("tw"); a(f"s_cbranch_vccz {L}\ns_waitcnt vmcnt({tight})"); a.label(L)
    def setv():
        if tight is not None and (not ramp or first[0]): a(f"s_getreg_b32 {sT0}, hwreg(HW_REG_XCC_ID)\ns_and_b32 {sT0}, {sT0}, 7\ns_lshr_b32 {sT0}, {tmask}, {sT0}\ns_and_b32 {sT0}, {sT0}, 1\ns_cselect_b64 vcc, -1, 0")
    def ldKV(k, capped=True):
        t, c = (k & 15) >> 2, k & 3
        if k == 8 or (k > 16 and c == 0): a(f"s_add_u32 {sKV}, {sKV}, 16384")
        if k == 16: a(f"s_sub_u32 {sKV}, {sKV}, 16384")
        if capped and k > cap: a(f"s_waitcnt vmcnt({cap})")
        if capped and tight is not None and k > tight and (not ramp or (first[0] and k < ramp)): tw()
        if k < 16:
            g_, tq, hf = (k >> 2) & 1, 2 * (k >> 3) + ((k >> 1) & 1), k & 1
            b0 = 32 * g_ + 8 * tq + 4 * hf
            a(f"buffer_load_dwordx4 a[{b0}:{b0+3}], {vKO}, {sK}, {sKV} offen offset:{(4*g_+2*(tq&1))*256+hf*128} nt")
        else: a(f"buffer_load_dwordx4 {VR(vVld(t,c))}, {vL16}, {sV}, {sKV} offen offset:{c*1024} nt")
    a(f"s_cmp_lt_u32 {sW}, 4\ns_cbranch_scc1 L_early0")
    a(f"buffer_load_dwordx4 {WR(XR,4)}, {vL16}, {sX}, {sT3} offen")
    for k in range(4):
        if k: a(f"s_add_u32 m0, {sT2}, {k*1024}\ns_add_u32 {sT1}, {sT1}, 32768")
        a(f"buffer_load_dwordx4 {vWQO}, {sWq}, {sT1} offen nt lds")
    a("s_branch L_common")
    a.label("L_early0")
    setv()
    for k in range(32):
        ldKV(k)
        if k == cap + 1: stamp("E first")
    first[0] = False
    signal(1)
    stamp("E done")
    a.label("L_common")
    for srd in (sWo, sWg, sWu, sWd, sWS, sOut): a(f"s_mov_b32 {sr(srd,3)}, 0x20000")
    a(f"s_mov_b32 {sr(sWS,0)}, s26\ns_mov_b32 {sr(sWS,1)}, s27\ns_mov_b32 {sr(sWS,2)}, {0 if 'nows' in abl else WSN}")
    a(f"s_mul_i32 {sAr}, s2, {AST}\ns_add_u32 {sAr}, {sAr}, {WA}\ns_and_b32 {sT0}, s2, 31\ns_mul_i32 {sHa}, {sT0}, {HST}\ns_add_u32 {sHa}, {sHa}, {HA}")
    a(f"s_lshl_b32 {sXp}, {sJ}, 15\ns_lshl_b32 {sT0}, {sT0}, 7\ns_add_u32 {sXp}, {sXp}, {sT0}")
    a(f"v_mov_b32 {t3}, {OOB}\nv_lshrrev_b32 {vHi3}, 3, {vL}\nv_and_b32 {vLo3}, 7, {vL}\nv_lshlrev_b32 {vL0}, 24, {vL}")
    vXC = W(41)
    if numa is None:
        a(f"v_and_b32 {t0}, 32, {vL}\nv_lshlrev_b32 {t0}, 24, {t0}\nv_and_b32 {t1}, 8, {vL}\nv_lshl_add_u32 {t0}, {t1}, 10, {t0}")
    else:
        a(f"v_and_b32 {t0}, 32, {vL}\nv_lshlrev_b32 {t0}, 8, {t0}\nv_and_b32 {t1}, 8, {vL}")
    a(f"v_lshl_add_u32 {t0}, {t1}, 9, {t0}\nv_and_b32 {t1}, 16, {vL}\nv_lshl_add_u32 {t0}, {t1}, 10, {t0}\nv_lshl_add_u32 {vXC}, {vLo3}, 4, {t0}")
    a(f"s_mov_b32 {sCnt}, 0\ns_mov_b32 {sMode}, 0")
    a(f"s_getreg_b32 {sXcc}, hwreg(HW_REG_XCC_ID)\ns_and_b32 {sXcc}, {sXcc}, 15")
    a(f"v_lshlrev_b32 {t0}, 9, {vN}\nv_lshl_add_u32 {t0}, {vGK}, 4, {t0}\ns_lshl_b32 {sT1}, {sW}, 6\ns_add_u32 {sT1}, {sT1}, {sAr}\nv_add_u32 {t0}, {sT1}, {t0}")
    sel(W(39), t3, t0, f"v_cmp_gt_u32 vcc, 5, {vN}")
    sel(vQP, t3, t0, f"v_cmp_gt_u32 vcc, 4, {vN}")
    a(f"v_min_u32 {t0}, 4, {vN}\nv_mul_u32_u24 {t0}, {XSS}, {t0}\nv_lshl_add_u32 {t0}, {vGK}, 4, {t0}\nv_add_u32 {vXSR}, {LXS}, {t0}")
    vTRQ, vTRG = W(38), W(37)
    a(f"v_lshrrev_b32 {t0}, 2, {vN}\nv_lshl_add_u32 {t0}, {vGK}, 3, {t0}\nv_and_b32 {t1}, 3, {vN}\ns_lshl_b32 {sT0}, {sW}, 5\nv_lshl_add_u32 {t1}, {t1}, 3, {sT0}")
    a(f"v_lshl_add_u32 {vTRQ}, {t0}, 8, {t1}\nv_lshl_add_u32 {vTR}, {t0}, 7, {t1}")
    a(f"s_cmp_lt_u32 {sW}, 4\ns_cbranch_scc1 L_part2")
    a(f"s_and_b32 {sT0}, {sW}, 3\ns_mul_i32 {sT0}, {sT0}, 640\ns_add_u32 {sT0}, {sT0}, {sAr}\ns_add_u32 s6, s26, {sT0}\ns_addc_u32 s7, s27, 0")
    Lx = only(f"s_cmp_eq_u32 {sW}, 7", "w7")
    a(f"s_waitcnt lgkmcnt(0)\ns_add_u32 {sT1}, {sEp}, 1\ns_and_b32 {sT1}, {sT1}, 0x0fffffff\ns_lshl_b32 {sT2}, {sXcc}, 28\ns_or_b32 {sFlag}, {sT1}, {sT2}\nv_mov_b32 {W(30)}, {sFlag}")
    a(f"s_lshl_b32 {sT0}, {sJ}, 2\ns_add_u32 {sT0}, {sT0}, {sHa}\nbuffer_store_dword {W(30)}, {vL0}, {sWS}, {sT0} offen offset:{H_MF} sc1")
    ones4(24)
    off("y0c")
    a(f"s_add_u32 {sT0}, {sXp}, {XB[0]}\nbuffer_store_dwordx4 {WR(24,4)}, {vXC}, {sWS}, {sT0} offen sc1")
    on("y0c")
    a(f"s_lshl_b32 {sT0}, {sJ}, 8\ns_mul_i32 {sT1}, {sJ}, 112\ns_add_u32 {sT1}, {sT1}, {H_LSE-256}")
    a(f"s_add_u32 {sT1}, {sT1}, {sHa}\ns_add_u32 s10, s26, {sT1}\ns_addc_u32 s11, s27, 0")
    for o in (256, 312, 364): a(f"s_load_dword s4, s[10:11], {o}")
    a.label(Lx)
    Lx = only(f"s_cmp_eq_u32 {sW}, 5", "w5")
    a(f"s_lshl_b32 {sT0}, {sJ}, 8\ns_add_u32 {sT0}, {sT0}, {sHa}\ns_add_u32 s8, s26, {sT0}\ns_addc_u32 s9, s27, 0")
    for o in (0, 64, 128, 192): a(f"s_load_dword s4, s[8:9], {o}")
    a.label(Lx)
    for k in range(10):
        if (sm64 or k % 2 == 0) and "smq" not in abl: a(f"s_load_dword s5, s[6:7], {64*k}")
    a.label("L_part2")
    a(f"s_mov_b32 {sr(sWo,0)}, s12\ns_mov_b32 {sr(sWo,1)}, s13\ns_mov_b32 {sr(sWo,2)}, {0 if 'nowo' in abl else 0x400000}")
    a(f"s_mov_b32 {sr(sWg,0)}, s16\ns_mov_b32 {sr(sWg,1)}, s17\ns_mov_b32 {sr(sWg,2)}, 1409024")
    a(f"s_mov_b32 {sr(sWu,0)}, s18\ns_mov_b32 {sr(sWu,1)}, s19\ns_mov_b32 {sr(sWu,2)}, 1409024")
    a(f"s_mul_i32 {sTB}, {sG}, 11\ns_cmp_eq_u32 {sG}, 7\ns_cselect_b32 {sTB}, 76, {sTB}\ns_cmp_lt_u32 {sG}, 6\ns_cselect_b32 {sNT}, 11, 10")
    a(f"s_mul_i32 {sT0}, {sHL}, 3\ns_add_u32 {sTB}, {sTB}, {sT0}\ns_sub_u32 {sNT}, {sNT}, {sT0}\ns_min_u32 {sNT}, {sNT}, 3")
    a(f"s_add_u32 {sT0}, {sTB}, {sNT}\ns_lshl_b32 {sr(sWd,2)}, {sT0}, 14\ns_mov_b32 {sr(sWd,0)}, s20\ns_mov_b32 {sr(sWd,1)}, s21")
    a(f"s_mov_b32 {sr(sOut,0)}, s22\ns_mov_b32 {sr(sOut,1)}, s23\ns_mov_b32 {sr(sOut,2)}, 4096")
    if stamps: a("s_mov_b32 s98, s26\ns_mov_b32 s99, s27")
    a(f"s_xor_b32 {sFin}, {sG}, {sJ}")
    if not fin32: a(f"s_or_b32 {sFin}, {sFin}, {sHL}")
    a(f"s_mov_b64 {sM1}, 2\ns_mov_b64 {sM2}, 12\ns_mov_b64 {sM3}, 8")
    a(f"s_lshl_b32 {sGUo}, {sTB}, 5\ns_mul_i32 {sT1}, {sJ}, {64*2752}\ns_add_u32 {sGUo}, {sGUo}, {sT1}")
    a(f"s_lshl_b32 {sWDo}, {sTB}, 14\ns_lshl_b32 {sT1}, {sW}, 13\ns_add_u32 {sWDo}, {sWDo}, {sT1}\ns_lshl_b32 {sT1}, {sJ}, 7\ns_add_u32 {sWDo}, {sWDo}, {sT1}")
    a(f"v_lshrrev_b32 {t0}, 1, {vGK}\nv_and_b32 {t1}, 1, {vGK}\nv_lshl_add_u32 {vE}, {t1}, 1, {t0}")
    vXB = vGK if map1 else vE
    a(f"s_lshl_b32 {sT1}, {sW}, 4\nv_lshl_add_u32 {t1}, {vLo3}, 1, {sT1}\nv_mul_u32_u24 {t2}, {XSS}, {vXB}\nv_add_u32 {t2}, {t1}, {t2}\nv_add_u32 {vXSW}, {LXS}, {t2}")
    a(f"v_lshl_add_u32 {t0}, {vXB}, 10, {t1}\ns_lshl_b32 {sT1}, {sJ}, 7\nv_add_u32 v0, {sT1}, {t0}")
    a(f"v_mul_u32_u24 {t2}, {XSS}, {vE}\nv_add_u32 {t2}, {t1}, {t2}\nv_add_u32 {t0}, {LHS}, {t2}\nv_add_u32 {t2}, {LDUM}, {vL16}")
    sel(vHW, t2, t0, f"v_cmp_gt_u32 vcc, 8, {vN}")
    a(f"s_and_b32 {sT0}, s2, 31\ns_mul_i32 {sT0}, {sT0}, {AST}\ns_add_u32 {sT0}, {sT0}, {WA}\ns_mov_b32 {sT3}, {32*AST}\nv_mul_lo_u32 {t0}, {vHi3}, {sT3}\nv_add_u32 {W(7)}, {sT0}, {t0}")
    a(f"s_lshl_b32 {sT1}, {sW}, 7\nv_lshl_add_u32 {t0}, {vLo3}, 4, {W(7)}\nv_add_u32 {vQG}, {sT1}, {t0}")
    a(f"s_lshl_b32 {sT1}, {sW}, 5\nv_and_b32 {t0}, 4, {vL}\nv_lshl_add_u32 {t0}, {t0}, 2, {W(7)}\nv_add_u32 {vGC}, {sT1}, {t0}\nv_mov_b32 {vCG}, {t3}")
    a(f"v_lshl_add_u32 {t0}, {vN}, 2, {sHa}\nv_lshl_add_u32 {vGS}, {vE}, 6, {t0}\ns_lshl_b32 {sT0}, {sB}, 6\nv_add_u32 {vSG}, {sT0}, {t0}")
    a(f"v_lshrrev_b32 {t0}, 3, {vN}\nv_lshl_add_u32 {t0}, {t0}, 2, {vGK}\nv_lshlrev_b32 {t0}, 7, {t0}\nv_lshl_add_u32 {t0}, {vLo3}, 4, {t0}\nv_add_u32 {vOG}, {sHa}, {t0}")
    a(f"v_lshl_add_u32 {t0}, {vLo3}, 2, {sHa}")
    sel(vLG, t3, t0, f"v_cmp_gt_u32 vcc, 8, {vN}")
    a(f"s_lshl_b32 {sT0}, {sJ}, 15\ns_and_b32 {sT1}, {sW}, 2\ns_mul_i32 {sT1}, {sT1}, {2048 if numa is not None else 6144}\ns_add_u32 {sT0}, {sT0}, {sT1}\ns_and_b32 {sT1}, {sW}, 4\ns_lshl_b32 {sT1}, {sT1}, 12\ns_add_u32 {sT0}, {sT0}, {sT1}")
    if numa is not None: a(f"s_and_b32 {sT1}, {sXcc}, 4\ns_xor_b32 {sT1}, {sT1}, {4*(numa == 1)}\ns_lshl_b32 {sT1}, {sT1}, 11\ns_add_u32 {sT0}, {sT0}, {sT1}")
    a(f"s_and_b32 {sT1}, {sW}, 1\ns_lshl_b32 {sT1}, {sT1}, 6\ns_add_u32 {sT0}, {sT0}, {sT1}")
    if map1: a(f"v_and_b32 {t0}, 3, {vL}\nv_lshl_add_u32 {t0}, {vGK}, 2, {t0}\nv_lshlrev_b32 {t0}, 7, {t0}\nv_and_b32 {t1}, 12, {vL}\nv_lshl_add_u32 {t0}, {t1}, 2, {t0}\nv_add_u32 {vXG}, {sT0}, {t0}")
    else: a(f"v_lshrrev_b32 {t0}, 2, {vL}\nv_lshlrev_b32 {t0}, 7, {t0}\nv_and_b32 {t1}, 48, {vL16}\nv_add3_u32 {vXG}, {t0}, {t1}, {sT0}")
    a(f"s_and_b32 {sT0}, {sW}, 1\ns_mul_i32 {sT0}, {sT0}, {4096 if numa is not None else 12288}\ns_and_b32 {sT1}, {sW}, 2\ns_lshl_b32 {sT1}, {sT1}, 13\ns_add_u32 {sT0}, {sT0}, {sT1}\ns_add_u32 {sT0}, {sT0}, {sXp}")
    a(f"v_and_b32 {t0}, 2, {vGK}\nv_lshlrev_b32 {t0}, 5, {t0}\nv_and_b32 {t1}, 1, {vGK}\nv_lshl_add_u32 {t0}, {t1}, 3, {t0}\nv_add_u32 {t0}, {sT0}, {t0}")
    a(f"v_and_b32 {t1}, 3, {vN}\nv_lshl_add_u32 {t1}, {t1}, 4, {t0}\nv_and_b32 {W(7)}, 4, {vN}\nv_lshl_add_u32 {t1}, {W(7)}, 11, {t1}")
    sel(vZP, t3, t1, f"v_cmp_gt_u32 vcc, {4 if numa is None else 8}, {vN}")
    a(f"v_and_b32 {t1}, 6, {vN}\nv_lshl_add_u32 {t1}, {t1}, 3, {t0}\nv_and_b32 {W(7)}, 1, {vN}\nv_lshl_add_u32 {t1}, {W(7)}, 13, {t1}\nv_and_b32 {t0}, {9 if numa is None else 8}, {vN}")
    sel(vYP, t3, t1, f"v_cmp_eq_u32 vcc, 0, {t0}")
    a(f"s_and_b32 {sT0}, {sW}, 6\ns_lshl_b32 {sT0}, {sT0}, 1\ns_and_b32 {sT1}, {sW}, 1\ns_add_u32 {sT0}, {sT0}, {sT1}\nv_and_b32 {t0}, 2, {vGK}\nv_add_u32 {t0}, {sT0}, {t0}")
    a(f"s_add_u32 {sT0}, {sAr}, {A_G}\nv_and_b32 {t1}, 1, {vGK}\nv_lshl_add_u32 {t1}, {t1}, 3, {sT0}\nv_lshl_add_u32 {W(7)}, {t0}, 4, {t1}\nv_add_u32 {W(7)}, {GCS}, {W(7)}")
    a(f"v_lshl_add_u32 {t0}, {t0}, 6, {t1}\nv_lshl_add_u32 {t0}, {vN}, 4, {t0}")
    sel(t0, W(7), t0, f"v_cmp_gt_u32 vcc, 4, {vN}")
    sel(vGP, t3, t0, f"v_cmp_gt_u32 vcc, 5, {vN}")
    a(f"s_lshr_b32 {sT1}, {sJ}, 2\ns_lshl_b32 {sT0}, {sB}, 1\ns_add_u32 {sT0}, {sT0}, {sT1}\ns_lshl_b32 {sLse}, {sT0}, 2\ns_add_u32 {sLse}, {sLse}, {sHa}\ns_lshl_b32 {sT0}, {sT0}, 4\ns_add_u32 {sT0}, {sT0}, {sHa}")
    a(f"v_and_b32 {t0}, 3, {vN}\nv_mul_u32_u24 {t0}, {XSS}, {t0}\nv_lshl_add_u32 {t0}, {vGK}, 4, {t0}\nv_add_u32 {vHR}, {LHS}, {t0}")
    a(f"v_and_b32 {t0}, 2, {vL}\nv_lshlrev_b32 {t0}, 4, {t0}\nv_and_b32 {t1}, 1, {vE}\nv_lshl_add_u32 {t0}, {t1}, 4, {t0}\nv_and_b32 {t1}, 4, {vL}\nv_lshl_add_u32 {t0}, {t1}, 1, {t0}")
    a(f"v_and_b32 {t1}, 1, {vL}\nv_lshl_add_u32 {t0}, {t1}, 2, {t0}\nv_and_b32 {t1}, 2, {vE}\ns_lshl_b32 {sT0}, {sW}, 6\ns_add_u32 {sT0}, {sT0}, {LQS}\nv_add3_u32 {t0}, {t0}, {t1}, {sT0}")
    sel(vQSW, t2, t0, f"v_cmp_gt_u32 vcc, 8, {vN}")
    a(f"v_and_b32 {t0}, 3, {vN}\nv_lshlrev_b32 {t0}, 4, {t0}\nv_lshl_add_u32 {t0}, {vGK}, 6, {t0}\nv_add_u32 {t0}, {LQS}, {t0}\nv_mov_b32 {t1}, {LZERO}\nv_lshrrev_b32 {W(7)}, 2, {vN}")
    for c, r in enumerate((vQR0, vQR1, vQR2, vQR3)): sel(r, t1, t0, f"v_cmp_eq_u32 vcc, {c}, {W(7)}")
    a(f"s_mul_i32 {sT0}, {sW}, 608\ns_add_u32 {sT0}, {sT0}, {LOW}\nv_lshl_add_u32 {t0}, {vN}, 3, {sT0}\nv_lshlrev_b32 {t1}, 3, {vN}\nv_add_u32 {t1}, {LDUM}, {t1}")
    sel(vOWW, t1, t0, f"v_cmp_gt_u32 vcc, 16, {vL}")
    a(f"s_lshl_b32 {sT0}, {sW}, 3\ns_add_u32 {sT0}, {sT0}, {LML}\nv_lshlrev_b32 {t0}, 3, {vL}\nv_add_u32 {vMLW}, {LDUM}, {t0}\nv_writelane_b32 {vMLW}, {sT0}, 63")
    a(f"v_and_b32 {t0}, 1, {vL}\nv_mul_u32_u24 {t1}, 0x5555, {t0}\nv_add_u32 {vIDX}, 0x8888, {t1}")
    a(f"v_lshlrev_b32 {t0}, 4, {t0}\nv_mov_b32 {t1}, 0x3f80\nv_lshlrev_b32 {t0}, {t0}, {t1}\nv_lshrrev_b32 {t1}, 1, {vLo3}")
    for q in range(4): a(f"v_cmp_eq_u32 vcc, {q}, {t1}\nv_cndmask_b32 {W(7)}, 0, {t0}, vcc\nv_accvgpr_write_b32 a{aSEL+q}, {W(7)}")
    a(f"v_lshlrev_b32 {t0}, 10, {vHi3}\nv_lshl_add_u32 {vDW}, {vLo3}, 4, {t0}")
    a(f"s_cmp_lt_u32 {sW}, 4\ns_cbranch_scc1 L_early1")
    a(f"s_and_b32 {sT0}, {sW}, 3\ns_lshl_b32 {sT0}, {sT0}, 6\nv_add_u32 {t0}, {sT0}, {vL}\nv_mul_u32_u24 {t1}, 43691, {t0}\nv_lshrrev_b32 {t1}, 18, {t1}\nv_mul_u32_u24 {t2}, 6, {t1}\nv_sub_u32 {t0}, {t0}, {t2}")
    a(f"v_mul_u32_u24 {t1}, 2752, {t1}\nv_lshl_add_u32 {t1}, {t0}, 4, {t1}\ns_lshl_b32 {sT0}, {sNT}, 1")
    sel(vDMA, t3, t1, f"v_cmp_gt_u32 vcc, {sT0}, {t0}")
    a(f"s_sub_u32 {sT0}, {sLse}, {sHa}\ns_lshl_b32 {sT0}, {sT0}, 2\ns_add_u32 {sT0}, {sT0}, {sHa}")
    a(f"v_lshrrev_b32 {t0}, 2, {vL}\nv_lshlrev_b32 {t0}, 7, {t0}\nv_and_b32 {t1}, 3, {vL}\nv_lshl_add_u32 {t0}, {t1}, 2, {t0}\nv_add_u32 {vOP}, {sT0}, {t0}")
    a(f"v_and_b32 {t0}, 3, {vL}\nv_mul_u32_u24 {t0}, 160, {t0}\nv_lshrrev_b32 {t1}, 2, {vL}\nv_lshl_add_u32 {t0}, {t1}, 3, {t0}\nv_add_u32 {vOWR}, {LOW}, {t0}\nv_add_u32 {vOWR2}, {LOW+4*608}, {t0}\nv_lshlrev_b32 {t0}, 3, {vLo3}\nv_add_u32 {vMLR}, {LML}, {t0}")
    Lx = only(f"s_cmp_eq_u32 {sW}, 7", "w7b")
    a(f"s_lshl_b32 {sT0}, {sJ}, 2\ns_add_u32 {sT0}, {sT0}, {sHa}\nv_lshlrev_b32 {t0}, 6, {vN}\nv_lshl_add_u32 {t0}, {vGK}, 5, {t0}\nv_add_u32 {t0}, {sT0}, {t0}\nv_and_b32 {t1}, 0x2c, {vL}")
    sel(vSP, t3, t0, f"v_cmp_eq_u32 vcc, 0, {t1}")
    a.label(Lx)
    Lx = only(f"s_cmp_eq_u32 {sW}, 6", "w6")
    a(f"v_mov_b32 {t0}, 0x3f803f80\nv_and_b32 {t1}, 31, {vL}\nv_lshlrev_b32 {t1}, 2, {t1}\nds_write_b32 {t1}, {t0} offset:{LXS+4*XSS}")
    a(f"v_mov_b32 {t2}, 0\nv_and_b32 {t0}, 12, {t1}\nds_write_b32 {t0}, {t2} offset:{LZERO}")
    a(f"v_mul_u32_u24 {t0}, {XSS}, {vGK}\nv_lshl_add_u32 {t0}, {vLo3}, 2, {t0}\nds_write_b32 {t0}, {t2} offset:{LHS+96}")
    a.label(Lx)
    a(f"v_mov_b32 {W(8)}, 0\nv_mov_b32 {W(9)}, 0\nv_mov_b32 {W(10)}, 0x3f803f80")
    a(f"s_and_b32 {sT0}, {sW}, 3\ns_mul_i32 {sT0}, {sT0}, {XSS}\ns_add_u32 {sT0}, {sT0}, {LXS}\nv_lshl_add_u32 {t0}, {vLo3}, 4, {sT0}\nv_mov_b32 {t2}, {LDUM}")
    sel(W(11), t2, t0, f"v_cmp_eq_u32 vcc, {sJ}, {vHi3}")
    stamp("L addr")
    a(f"s_cmp_lt_u32 {sW}, 7\ns_cbranch_scc1 L_w0a\ns_add_u32 s24, s26, {sHa}\ns_addc_u32 s25, s27, 0\ns_waitcnt vmcnt(6) lgkmcnt(0)\ns_load_dwordx8 s[4:11], s[24:25], {H_MF}\ns_branch L_w0b")
    a.label("L_w0a")
    a("s_waitcnt vmcnt(4)")
    a.label("L_w0b")
    stamp("L wq")
    for k in range(4): a(f"v_dot2_f32_bf16 {W(8)}, {W(XR+k)}, {W(XR+k)}, {W(8)}\nv_dot2_f32_bf16 {W(9)}, {W(XR+k)}, {W(10)}, {W(9)}")
    a(f"ds_write_b128 {W(11)}, {WR(XR,4)} offset:{LXR-LXS}\ns_nop 1")
    for m in LO8 + ("row_ror:8",):
        for r in (W(8), W(9)): a(f"v_add_f32_dpp {r}, {r}, {r} {m} {DPP}")
    for r in (W(8), W(9)):
        a(f"v_mov_b32 {W(7)}, {r}\nv_permlane16_swap_b32 {r}, {W(7)}\nv_add_f32 {r}, {r}, {W(7)}")
        a(f"v_mov_b32 {W(7)}, {r}\nv_permlane32_swap_b32 {r}, {W(7)}\nv_add_f32 {r}, {r}, {W(7)}")
    a(f"v_mul_f32 {W(9)}, {f32(1/512)}, {W(9)}\nv_mul_f32 {W(8)}, {f32(1/512)}, {W(8)}")
    ln_fin(W(9), W(8))
    for k in range(4):
        a(f"v_lshlrev_b32 {t0}, 16, {W(XR+k)}\nv_and_b32 {t1}, 0xffff0000, {W(XR+k)}\nv_sub_f32 {t0}, {t0}, {W(9)}\nv_sub_f32 {t1}, {t1}, {W(9)}")
        a(f"v_mul_f32 {t0}, {t0}, {W(8)}\nv_mul_f32 {t1}, {t1}, {W(8)}\nv_cvt_pk_bf16_f32 {W(16+k)}, {t0}, {t1}")
    a(f"ds_write_b128 {W(11)}, {WR(16,4)}")
    stamp("L preA")
    Lx = only(f"s_cmp_eq_u32 {sW}, 7", "w7m")
    Lm = lab("mf")
    a(f"s_lshl_b32 {sT0}, {sJ}, 8\ns_mul_i32 {sT1}, {sJ}, 112\ns_add_u32 {sT1}, {sT1}, {H_LSE-256}\nv_add_u32 {t0}, {sT0}, {vL16}\nv_add_u32 {t1}, {sT1}, {vL16}")
    sel(t0, t1, t0, f"v_cmp_gt_u32 vcc, 16, {vL}")
    sel(W(31), t3, t0, f"v_cmp_gt_u32 vcc, 23, {vL}")
    a("s_waitcnt lgkmcnt(0)")
    a(f"s_xor_b32 {sT0}, s4, {sFlag}")
    for k in range(1, 8): a(f"s_xor_b32 {sT1}, s{4+k}, {sFlag}\ns_or_b32 {sT0}, {sT0}, {sT1}")
    a(f"s_and_b32 {sT1}, {sT0}, 0x0fffffff\ns_cbranch_scc0 {Lm}k")
    a(f"v_lshlrev_b32 {t0}, 2, {vLo3}")
    a.label(Lm)
    a(f"buffer_load_dword {t1}, {t0}, {sWS}, {sHa} offen offset:{H_MF} sc1")
    a(f"s_add_u32 {sCnt}, {sCnt}, 1\ns_cmp_gt_u32 {sCnt}, {limit}\ns_cbranch_scc1 L_end\ns_waitcnt vmcnt(0)")
    a(f"v_xor_b32 {t1}, {sFlag}, {t1}\nv_and_b32 {t2}, 0x0fffffff, {t1}\nv_cmp_ne_u32 vcc, 0, {t2}\ns_cbranch_vccnz {Lm}")
    a(f"v_cmp_ne_u32 vcc, 0, {t1}\ns_nop 1\ns_mov_b32 {sT0}, vcc_lo")
    a.label(Lm + "k")
    a(f"s_cmp_eq_u32 {sT0}, 0\ns_cselect_b32 {sMode}, 1, 0")
    lstore([f"buffer_store_dwordx4 {WR(24,4)}, {W(31)}, {sWS}, {sHa} offen"])
    a("s_waitcnt vmcnt(1)\ns_branch L_w1b")
    a.label(Lx)
    a("s_waitcnt vmcnt(0) lgkmcnt(0)")
    a.label("L_w1b")
    a(f"s_add_u32 {sT1}, {sMode}, 1")
    signal(0, sT1)
    Lx = only(f"s_cmp_eq_u32 {sW}, 4", "race")
    a(f"s_lshr_b32 {sT0}, s2, 6\ns_lshl_b32 {sT0}, {sT0}, 14\ns_and_b32 {sT1}, s2, 63\ns_lshl_b32 {sT1}, {sT1}, 7\ns_add_u32 {sT0}, {sT0}, {sT1}\ns_add_u32 {sT0}, {sT0}, {PRB}")
    a(f"s_and_b32 {sT2}, {sHL}, 1\ns_lshl_b32 {sT1}, {sT2}, 13\ns_add_u32 {sT0}, {sT0}, {sT1}\ns_xor_b32 {sT1}, {sT0}, 8192\ns_waitcnt lgkmcnt(0)")
    a(f"s_load_dword s4, s[26:27], {sT0}\ns_load_dword s5, s[26:27], {sT1}\ns_waitcnt lgkmcnt(1)\ns_nop 3\ns_getreg_b32 {sT0}, hwreg(HW_REG_IB_STS, 8, 4)")
    a(f"s_cmp_eq_u32 {sT0}, 0\ns_cselect_b32 {sT0}, 1, 0\ns_xor_b32 {sT0}, {sT0}, {sT2}\ns_lshr_b32 {sT1}, {sXcc}, 2\ns_xor_b32 {sT0}, {sT0}, {sT1}\ns_and_b32 {sT0}, {sT0}, 1")
    if dbgv: a(f"s_add_u32 s100, {sT0}, 1\ns_mul_i32 s100, s100, 100\ns_add_u32 s100, s100, s96\nv_writelane_b32 {vST}, s100, {nst[0]}"); nst[0] += 1
    a(f"s_lshl_b32 {sT0}, {sT0}, 28\ns_add_u32 {sT1}, {sEp}, 1\ns_and_b32 {sT1}, {sT1}, 0x0fffffff\ns_or_b32 {sT0}, {sT0}, {sT1}\nv_mov_b32 {W(30)}, {sT0}")
    a.label(Lx)
    await4(0, 20)
    a(f"v_readfirstlane_b32 {sMode}, {W(23)}\ns_sub_u32 {sMode}, {sMode}, 1")
    Lx = only(f"s_cmp_eq_u32 {sW}, 4", "gf")
    a(f"s_lshl_b32 {sT0}, {sJ}, 2\ns_add_u32 {sT0}, {sT0}, {sHa}\nbuffer_store_dword {W(30)}, {vL0}, {sWS}, {sT0} offen offset:{H_GF} sc1")
    a.label(Lx)
    stamp("barA")
    a(f"ds_read_b128 {WR(0,4)}, {vXSR}\nds_read_b128 {WR(4,4)}, {vXSR} offset:64\nv_subrev_u32 {W(28)}, 128, {vTRQ}")
    for c in range(2): trread(aWQ + 4 * c, "a", vTRQ, LWQ + c * 8192, 1024)
    for c in range(2): trread(4 + 20 + 4 * c, "v", W(28), LWQ + c * 8192, 1024)
    a(f"s_add_u32 {sEp}, {sEp}, 1\ns_movk_i32 {sT2}, 0xff\nv_mov_b32 {W(16)}, {sEp}\nv_subrev_u32 {W(29)}, 256, {W(39)}")
    a("s_waitcnt lgkmcnt(0)")
    a(f"{MF} {WR(8,4)}, {AR(aWQ)}, {WR(0,4)}, 0\n{MF} {WR(12,4)}, {WR(20,4)}, {WR(0,4)}, 0")
    a(f"{MF} {WR(8,4)}, {AR(aWQ+4)}, {WR(4,4)}, {WR(8,4)}\n{MF} {WR(12,4)}, {WR(24,4)}, {WR(4,4)}, {WR(12,4)}")
    for k in range(8): a(f"v_bfi_b32 {W(8+k)}, {sT2}, {W(16)}, {W(8+k)}")
    Lx = only(f"s_cmp_eq_u32 {sW}, 7", "hack")
    a("s_waitcnt vmcnt(0)")
    a.label(Lx)
    off("qst")
    lstore([f"buffer_store_dwordx4 {WR(8,4)}, {W(39)}, {sWS}, 0 offen", f"buffer_store_dwordx4 {WR(12,4)}, {W(29)}, {sWS}, 0 offen"])
    on("qst")
    stamp("q0 pub")
    Lb = lab("lb")
    a(f"s_and_b32 {sT0}, {sW}, 3\ns_lshl_b32 {sT0}, {sT0}, 2\nv_mov_b32 {W(34)}, {sT0}")
    a.label(Lb)
    a(f"ds_read_b32 {W(35)}, {W(34)} offset:{LFLG+16}")
    a(f"s_add_u32 {sCnt}, {sCnt}, 1\ns_cmp_gt_u32 {sCnt}, {limit}\ns_cbranch_scc1 L_end\ns_waitcnt lgkmcnt(0)")
    a(f"v_cmp_eq_u32 vcc, 0, {W(35)}\ns_cbranch_vccnz {Lb}")
    stamp("barB")
    NPRE = 16 + cap + 1 + extra
    setv()
    for k in range(NPRE): ldKV(k, k < NPRE - extra)
    stamp("L preC")
    a("s_branch L_toC0")
    def ldTail(k):
        if k < 32: return ldKV(k)
        k -= 32
        if k == 0: a(f"s_and_b32 {sT2}, {sW}, 3\ns_lshl_b32 {sT0}, {sH}, 17\ns_lshl_b32 {sT1}, {sT2}, 15\ns_add_u32 {sT0}, {sT0}, {sT1}\ns_lshl_b32 {sT1}, {sJ}, 7\ns_add_u32 {sT0}, {sT0}, {sT1}\ns_lshl_b32 {sT2}, {sT2}, 12")
        a(f"s_add_u32 m0, {sT2}, {LWO+k*1024}")
        if k: a(f"s_add_u32 {sT0}, {sT0}, 8192")
        a(f"s_waitcnt vmcnt({cap})")
        a(f"buffer_load_dwordx4 {vDW}, {sWo}, {sT0} offen nt lds")
    a.label("L_early1")
    stamp("issued")
    await4(0, 20)
    a(f"v_readfirstlane_b32 {sMode}, {W(23)}\ns_sub_u32 {sMode}, {sMode}, 1")
    for c in range(2): trread(aWQ + 4 * c, "a", vTRQ, LWQ + c * 8192, 1024)
    a(f"s_waitcnt lgkmcnt(0)\ns_add_u32 {sEp}, {sEp}, 1")
    Lx = only(f"s_cmp_eq_u32 {sW}, {9 if 'gw' in abl else 1}", "gw")
    a(f"v_lshlrev_b32 {W(21)}, 7, {vL}\nv_lshl_add_u32 {W(21)}, {vHi3}, 24, {W(21)}\nbuffer_load_dword {W(42)}, {W(21)}, {sWS}, {sAr} offen offset:{A_G} sc1")
    a.label(Lx)
    a(f"s_lshl_b32 {sOff}, {sB}, 9\ns_lshl_b32 {sOff2}, {sJ}, 2\ns_add_u32 {sOff2}, {sOff2}, {HA}\nv_lshrrev_b32 {W(17)}, 1, {vL}\nv_mul_u32_u24 {W(17)}, {HST}, {W(17)}")
    La = lab("arr")
    a(f"s_branch {La}b")
    a.label(La)
    a("s_sleep 16")
    a.label(La + "b")
    off("qld")
    a(f"buffer_load_dwordx4 {WR(0,4)}, {vQG}, {sWS}, {sOff} offen sc1")
    on("qld")
    a(f"v_mov_b32 {W(16)}, {sEp}")
    a(f"s_cmp_lg_u32 {sW}, 0\ns_cbranch_scc1 {La}c")
    off("flag")
    a(f"buffer_load_dword {W(16)}, {W(17)}, {sWS}, {sOff2} offen offset:{H_GF} sc1")
    on("flag")
    a.label(La + "c")
    a(f"s_add_u32 {sCnt}, {sCnt}, 1\ns_cmp_gt_u32 {sCnt}, {limit}\ns_cbranch_scc1 L_end")
    a(f"s_waitcnt vmcnt(0)")
    a(f"v_xor_b32 {W(9)}, {sEp}, {W(0)}")
    for k in range(1, 4): a(f"v_xor_b32 {W(11)}, {sEp}, {W(k)}\nv_or_b32 {W(9)}, {W(9)}, {W(11)}")
    a(f"v_xor_b32 {W(10)}, {sEp}, {W(16)}")
    a(f"v_and_b32 {W(9)}, 0xff, {W(9)}\nv_and_b32 {W(10)}, 0x0fffffff, {W(10)}\nv_or_b32 {W(9)}, {W(9)}, {W(10)}")
    if not abl: a(f"v_cmp_ne_u32 vcc, 0, {W(9)}\ns_cbranch_vccnz {La}")
    stamp("q0 got")
    for k in range(4): a(f"v_and_b32 {W(k)}, 0xffffff00, {W(k)}")
    red8(W(0), W(1), W(2), W(3))
    a(f"v_mul_f32 {W(0)}, {f32(C2)}, {W(0)}\nv_cvt_pk_bf16_f32 {W(0)}, {W(0)}, {W(0)}\nds_write_b16 {vQSW}, {W(0)}")
    a(f"v_bfe_u32 {W(16)}, {W(16)}, 28, 1\nv_cmp_ne_u32 vcc, 0, {W(16)}\ns_nop 1\ns_bcnt1_i32_b64 {sT1}, vcc")
    if dbgv: a(f"s_add_u32 s100, {sT1}, 1\ns_mul_i32 s100, s100, 100\ns_add_u32 s100, s100, s96\nv_writelane_b32 {vST}, s100, {nst[0]}"); nst[0] += 1
    a(f"s_cmp_gt_u32 {sT1}, 32\ns_cselect_b32 {sT1}, 8193, 1")
    signal(2, sT1)

    def q_gather():
        a(f"s_lshl_b32 {sOff}, {sB}, 9")
        s_, mu = W(1), W(3)
        if qack: a("s_waitcnt vmcnt(0)")
        if qs: a(f"s_sleep {qs}")
        def mkq(st, n):
            d = 4 + 6 * st
            return (f"buffer_load_dwordx4 {WR(d,4)}, {vQG}, {sWS}, {sOff} offen sc1\n"
                    f"buffer_load_dword {W(d+4)}, {vSG}, {sWS}, 0 offen offset:{H_ST['Q1']} sc1", [W(k) for k in range(d, d + 5)],
                    f"s_waitcnt vmcnt({n})\nv_mul_f32 {s_}, {f32(1/512)}, {W(d+4)}")
        def postq(st):
            d = 4 + 6 * st
            return (f"v_permlane32_swap_b32 {W(d)}, {W(d+1)}\nv_permlane32_swap_b32 {W(d+2)}, {W(d+3)}\nv_add_f32_dpp {s_}, {s_}, {s_} {LO8[0]} {DPP}\n"
                    f"v_add_f32 {W(0)}, {W(d)}, {W(d+1)}\nv_add_f32 {W(2)}, {W(d+2)}, {W(d+3)}")
        if "q" in p2: poll2(mkq, postq)
        else: poll(*mkq(0, 0)); a(postq(0))
        stamp("qgot1")
        a(f"v_add_f32_dpp {s_}, {s_}, {s_} {LO8[1]} {DPP}")
        a(f"v_permlane16_swap_b32 {W(0)}, {W(2)}")
        a(f"v_add_f32_dpp {s_}, {s_}, {s_} {LO8[2]} {DPP}")
        a(f"v_add_f32 {W(0)}, {W(0)}, {W(2)}")
        a(f"v_mov_b32_dpp {mu}, {s_} row_ror:8 {DPP}")
        a(f"v_add_f32_dpp {W(0)}, {W(0)}, {W(0)} row_ror:8 {DPP}")
        ln_fin(mu, s_)
        a(f"v_fma_f32 {W(0)}, -{mu}, {vCSQ}, {W(0)}\nv_mul_f32 {W(0)}, {f32(C2)}, {W(0)}\nv_mul_f32 {W(0)}, {W(0)}, {s_}")
        a(f"v_cvt_pk_bf16_f32 {W(0)}, {W(0)}, {W(0)}\nds_write_b16 {vQSW}, {W(0)}")

    SD, OA = 16, 24
    def attn_zero():
        for k in range(24): a(f"v_mov_b32 {W(SD+k)}, 0")
    def ldGU():
        a(f"buffer_load_dwordx4 {vDMA}, {sWg}, {sGUo} offen {wnt} lds\ns_add_u32 m0, {sT2}, {LGU+6144}")
        a(f"buffer_load_dwordx4 {vDMA}, {sWu}, {sGUo} offen {wnt} lds\ns_add_u32 m0, {sT2}, {LGU+3072}")
        a(f"buffer_load_dwordx4 {vDMA}, {sWg}, {sT1} offen {wnt} lds\ns_add_u32 m0, {sT2}, {LGU+9216}")
        a(f"buffer_load_dwordx4 {vDMA}, {sWu}, {sT1} offen {wnt} lds")
    def clearG(base):
        ones4(base)
        lstore([f"buffer_store_dwordx4 {WR(base,4)}, {vL16}, {sWS}, {sAr} offen offset:{A_G}"])
    def attention(L):
        for c, r in enumerate((vQR0, vQR1, vQR2, vQR3)): a(f"ds_read_b128 {WR(4*c,4)}, {r}")
        if L == 0:
            a(f"ds_read_u16 {vRES}, {vXSW} offset:{LXR-LXS}")
            a(f"s_waitcnt vmcnt({NPRE-16}) lgkmcnt(0)")
            a(f"v_lshlrev_b32 {vRES}, 16, {vRES}")
            a(f"s_cmp_ge_u32 {sW}, {0 if 'gw' in abl else 4}\ns_cbranch_scc1 L_noclr")
            Lx = only(f"s_cmp_eq_u32 {sW}, 1", "c1")
            clearG(16)
            a.label(Lx)
            a(f"v_min_u32 {W(21)}, 2, {vL}\nv_lshlrev_b32 {W(21)}, 7, {W(21)}")
            Lx = only(f"s_cmp_eq_u32 {sW}, 2", "c2")
            a(f"s_mul_i32 {sT0}, {sJ}, 384\ns_add_u32 {sT0}, {sT0}, {sHa}\nbuffer_load_dword {W(42)}, {W(21)}, {sWS}, {sT0} offen sc1")
            a.label(Lx)
            if codepf2:
                Lx = only(f"s_cmp_eq_u32 {sW}, 3", "c3")
                a("s_getpc_b64 s[6:7]")
                a.label("L_pcref2")
                a(f"s_lshl_b32 {sT0}, {sI}, 8\nv_min_u32 {W(21)}, 128, {W(21)}\nv_add_u32 {W(21)}, {sT0}, {W(21)}\nv_min_u32 {W(21)}, L_end-L_pcref2, {W(21)}\nglobal_load_dword {W(42)}, {W(21)}, s[6:7]")
                a.label(Lx)
            if gus:
                Lx = only(f"s_cmp_lt_u32 {sW}, 3", "gus")
                a(f"s_lshl_b32 {sT2}, {sW}, 10\ns_add_u32 m0, {sT2}, {LGU}\ns_add_u32 {sT1}, {sGUo}, {32*2752}")
                ldGU()
                a.label(Lx)
            if wds:
                a(f"s_lshl_b32 {sT2}, {sW}, 10\ns_add_u32 m0, {sT2}, {LWD}\ns_add_u32 {sT1}, {sWDo}, 32768")
                a(f"buffer_load_dwordx4 {vDW}, {sWd}, {sWDo} offen nt lds\ns_add_u32 m0, {sT2}, {LWD+4096}")
                a(f"buffer_load_dwordx4 {vDW}, {sWd}, {sT1} offen nt lds")
            a.label("L_noclr")
            a("s_nop 1")
            attn_zero()
        else:
            Lx = only(f"s_cmp_eq_u32 {sW}, 4", "gclr")
            lstore([f"buffer_store_dwordx4 {WR(40,4)}, {vL16}, {sWS}, {sAr} offen offset:{A_G}"])
            a.label(Lx)
        s0, s1, m, l = W(18), W(22), W(16), W(17)
        def qk(g_, t): return f"v_smfmac_f32_16x16x64_bf16 {WR(SD+4*g_,4)}, {WR(4*t,4)}, a[{32*g_+8*t}:{32*g_+8*t+7}], {vIDX}"
        for t in range(4):
            if L == 1: a(f"s_waitcnt lgkmcnt({3-t})")
            a(qk(0, t))
        for t in range(4): a(qk(1, t))
        if L == 1: stamp("f qk")
        if L == 1 and smprio: a("s_setprio 2")
        a(f"v_add_f32 {W(16)}, {W(16)}, {W(17)}\nv_add_f32 {s0}, {W(18)}, {W(19)}")
        a(f"v_add_f32 {W(20)}, {W(20)}, {W(21)}\nv_add_f32 {s1}, {W(22)}, {W(23)}")
        a(f"v_add_f32_dpp {s0}, {W(16)}, {s0} quad_perm:[0,0,2,2] {DPP}")
        a(f"v_add_f32_dpp {s1}, {W(20)}, {s1} quad_perm:[0,0,2,2] {DPP}")
        a(f"v_max_f32 {m}, {s0}, {s1}")
        for mm in ("quad_perm:[2,3,0,1]", "row_ror:4", "row_ror:8"): a(f"v_max_f32_dpp {m}, {m}, {m} {mm} {DPP}")
        a(f"v_max_f32_dpp {m}, {m}, {m} row_bcast:15 row_mask:0xa bank_mask:0xf\nv_max_f32_dpp {m}, {m}, {m} row_bcast:31 row_mask:0xc bank_mask:0xf")
        a(f"v_readlane_b32 {sT3}, {m}, 63")
        a(f"v_subrev_f32 {s0}, {sT3}, {s0}\nv_subrev_f32 {s1}, {sT3}, {s1}\nv_exp_f32 {s0}, {s0}\nv_exp_f32 {s1}, {s1}")
        a(f"v_cvt_pk_bf16_f32 {W(20)}, {s0}, {s1}\nv_add_f32 {l}, {s0}, {s1}")
        def pb(g_, i): return f"v_mov_b32_dpp {W(4*g_+i)}, {W(20)} row_newbcast:{8*g_+2*i+1} {DPP}"
        for i in range(4): a(pb(0, i))
        a(pb(1, 0)); a(pb(1, 1))
        lr = [f"v_add_f32_dpp {l}, {l}, {l} {mm} {DPP}" for mm in ("quad_perm:[2,3,0,1]", "row_ror:4", "row_ror:8")]
        lr += [f"v_add_f32_dpp {l}, {l}, {l} row_bcast:15 row_mask:0xa bank_mask:0xf", f"v_add_f32_dpp {l}, {l}, {l} row_bcast:31 row_mask:0xc bank_mask:0xf"]
        wr_ml = f"ds_write_b64 {vMLW}, {WR(16,2)}"
        fill = [[pb(1, 2), pb(1, 3)], [lr[0]], [lr[1]], lr[2:] + [wr_ml], [], [], [], []]
        if L == 1: stamp("f sm")
        nxt = [NPRE]
        if L == 0: setv()
        if L == 1 and smprio: a("s_setprio 0")
        def pv(g_, u):
            b0 = 64 + 32 * g_ + 8 * u
            return f"v_smfmac_f32_16x16x64_bf16 {WR(OA+4*u,4)}, {WR(4*g_,4)}, v[{b0}:{b0+7}], {vIDX}"
        wr01 = f"ds_write2_b64 {vOWW}, {WR(OA,2)}, {WR(OA+4,2)} offset0:0 offset1:20"
        wr2 = f"ds_write_b64 {vOWW}, {WR(OA+8,2)} offset:320"
        wr3 = f"ds_write_b64 {vOWW}, {WR(OA+12,2)} offset:480"
        if L == 1:
            for x in [pv(0, 0), pb(1, 2), pb(1, 3), pv(0, 1), lr[0], pv(1, 0), lr[1], pv(1, 1), lr[2], pv(0, 2), lr[3], pv(1, 2), lr[4],
                      pv(0, 3), wr01, pv(1, 3), wr_ml, wr2, wr3]: a(x)
        for g_ in range(2 - 2 * L):
            if L == 0:
                for hf in range(2):
                    t = 2 * g_ + hf
                    NL = 31 if woe else 35
                    tc = cap if tcap is None else tcap
                    last = min(NL, max(20 + 4 * t + tc, nxt[0] - 1))
                    if last >= nxt[0]:
                        Lx = only(f"s_cmp_ge_u32 {sW}, 4", "tail")
                        for k in range(nxt[0], last + 1):
                            if tcap is None or k >= 32: ldTail(k)
                            else:
                                a(f"s_waitcnt vmcnt({tcap})"); ldKV(k, False)
                        if woe and last == 31: signal(3, "1", 40)
                        a.label(Lx)
                        nxt[0] = last + 1
                    if t == 3: stamp("L issued")
                    a(f"s_waitcnt vmcnt({last - (19 + 4 * t)})")
                    if t == 3: stamp("L vdone")
                    for c in range(4):
                        for u in range(c + 1, 4): a(f"v_swap_b32 v{vVld(t,c)+u}, v{vVld(t,u)+c}")
            for u in range(4):
                b0 = 64 + 32 * g_ + 8 * u
                a(f"v_smfmac_f32_16x16x64_bf16 {WR(OA+4*u,4)}, {WR(4*g_,4)}, v[{b0}:{b0+7}], {vIDX}")
                for x in fill[4 * g_ + u]: a(x)
        if L == 1: stamp("f pv")
        if L == 0: a(f"{wr01}\n{wr2}\n{wr3}")
        if L == 0:
            assert nxt[0] == (32 if woe else 36)
            Lx = only(f"s_cmp_lt_u32 {sW}, 4", "ack")
            a("s_waitcnt vmcnt(0)")
            if woe:
                await4(3, 0)
                for k in range(32, 36): ldTail(k)
            a.label(Lx)
        if L == 1:
            a("s_waitcnt vmcnt(0)")
            if prio: a("s_setprio 0")
        a("s_waitcnt lgkmcnt(0)")
        if L == 1: stamp("f pre")
        a("s_barrier")
        stamp(f"barD{L}")
        if rep2 and L == 1: a("s_add_u32 s6, s6, 1\ns_cmp_lt_u32 s6, 2\ns_cbranch_scc1 L_rep2")
        if abl and L == 0: a("s_branch L_fin")
        Ls = only(f"s_cmp_eq_u32 {sW}, 7", "ocomb")
        a(f"ds_read_b64 {WR(16,2)}, {vMLR}")
        for k in range(4): a(f"ds_read2_b64 {WR(4*k,4)}, {vOWR if k < 2 else vOWR2} offset0:{152*(k&1)} offset1:{152*(k&1)+76}")
        a("s_waitcnt lgkmcnt(4)")
        M, F, FL = W(18), W(19), W(20)
        a(f"v_max_f32_dpp {M}, {W(16)}, {W(16)} {LO8[0]} {DPP}")
        for mm in LO8[1:]: a(f"v_max_f32_dpp {M}, {M}, {M} {mm} {DPP}")
        a(f"v_sub_f32 {F}, {W(16)}, {M}\nv_exp_f32 {F}, {F}\nv_mul_f32 {FL}, {F}, {W(17)}")
        a("s_waitcnt lgkmcnt(0)")
        ex = {0: f"v_add_f32_dpp {FL}, {FL}, {FL} {LO8[0]} {DPP}", 1: f"v_add_f32_dpp {FL}, {FL}, {FL} {LO8[1]} {DPP}", 2: f"v_add_f32_dpp {FL}, {FL}, {FL} {LO8[2]} {DPP}",
              3: f"v_rcp_f32 {W(21)}, {FL}", 4: f"v_log_f32 {FL}, {FL}", 5: f"v_add_f32 {M}, {M}, {FL}"}
        for w in range(7):
            op = "v_mul_f32_dpp" if w == 0 else "v_fmac_f32_dpp"
            a(f"{op} {W(22)}, {F}, {W(2*w)} row_newbcast:{w} {DPP}\n{op} {W(23)}, {F}, {W(2*w+1)} row_newbcast:{w} {DPP}")
            if w in ex: a(ex[w])
        lstore([f"buffer_store_dword {W(22)}, {vOP}, {sWS}, 0 offen", f"buffer_store_dword {M}, {vL0}, {sWS}, {sLse} offen offset:{H_LSE}"],
               f"v_fmac_f32_dpp {W(22)}, {F}, {W(14)} row_newbcast:7 {DPP}\nv_fmac_f32_dpp {W(23)}, {F}, {W(15)} row_newbcast:7 {DPP}\n"
               f"v_mul_f32 {W(22)}, {W(22)}, {W(21)}\nv_mul_f32 {W(23)}, {W(23)}, {W(21)}\nv_cvt_pk_bf16_f32 {W(22)}, {W(22)}, {W(23)}\nv_min_u32 {W(22)}, -2, {W(22)}")
        stamp(f"opub{L}")
        a.label(Ls)

    def x_publish(d, vaddr, xb):
        a(f"v_cvt_pk_bf16_f32 {W(d)}, {W(d)}, {W(d+1)}\nv_cvt_pk_bf16_f32 {W(d+1)}, {W(d+2)}, {W(d+3)}")
        a(f"v_min_u32 {W(d)}, -2, {W(d)}\nv_min_u32 {W(d+1)}, -2, {W(d+1)}")
        a(f"buffer_store_dwordx2 {WR(d,2)}, {vaddr}, {sWS}, {sOff2} offen sc1")

    def wo_stage(L):
        if L == 0:
            Lx = only(f"s_cmp_eq_u32 {sW}, 3", "z0c")
            clearX(1, 12)
            a("s_waitcnt vmcnt(1)\ns_branch L_d2")
            a.label(Lx)
            if woe and not d2ack: a(f"s_cmp_ge_u32 {sW}, 4\ns_cbranch_scc1 L_d2")
            a("s_waitcnt vmcnt(0)")
            a.label("L_d2")
            a("s_barrier")
        if L == 1 and obar: a("s_waitcnt vmcnt(0)\ns_barrier" if obar == 2 else "s_barrier")
        Ls = only(f"s_cmp_lt_u32 {sW}, 4", "wos")
        if L == 0:
            for c in range(4): trread(aWO + 4 * c, "a", vTR, LWO + c * 4096, 512)
        a(f"s_mov_b32 {sOff2}, {XB[2*L]}")
        def mko(st, n):
            d = 0 if st == 0 else 20
            e = d + 8
            return (f"buffer_load_dword {W(e)}, {vLG}, {sWS}, 0 offen offset:{H_LSE} sc1\n"
                    f"buffer_load_dwordx4 {WR(d,4)}, {vOG}, {sWS}, 0 offen sc1\n"
                    f"buffer_load_dwordx4 {WR(d+4,4)}, {vOG}, {sWS}, 0 offen offset:1024 sc1", [W(k) for k in range(d, d + 9)],
                    f"s_waitcnt vmcnt({n+1}) lgkmcnt(0)\n{MF} {WR(16,4)}, {AR(aWO+4)}, {WR(d,4)}, 0\nv_sub_f32_dpp {W(9)}, {W(e)}, {W(e)} quad_perm:[1,0,3,2] {DPP}\n"
                    f"{MF} {WR(12,4)}, {AR(aWO)}, {WR(d,4)}, 0\nv_exp_f32 {W(9)}, {W(9)}\ns_waitcnt vmcnt({n})\n"
                    f"{MF} {WR(16,4)}, {AR(aWO+12)}, {WR(d+4,4)}, {WR(16,4)}\nv_add_f32 {W(9)}, 1.0, {W(9)}\n{MF} {WR(12,4)}, {AR(aWO+8)}, {WR(d+4,4)}, {WR(12,4)}\nv_rcp_f32 {W(9)}, {W(9)}")
        if os_: a(f"s_sleep {os_}")
        if "o" in p2: poll2(mko)
        else: poll(*mko(0, 0))
        stamp(f"ogot{L}")
        for r in range(4): a(f"v_add_f32_dpp {W(12+r)}, {W(16+r)}, {W(12+r)} row_ror:8 {DPP}")
        for r in range(4): a(f"v_mul_f32 {W(12+r)}, {W(12+r)}, {W(9)}")
        for r in range(4): a(f"v_add_f32_dpp {W(12+r)}, {W(12+r)}, {W(12+r)} quad_perm:[1,0,3,2] {DPP}")
        x_publish(12, vYP, XB[2 * L])
        stamp(f"ypub{L}")
        if L == 1:
            a("s_waitcnt vmcnt(0)" if xs is None else f"s_sleep {xs}")
            a.label(Ls)
            a("s_barrier")
        else:
            Lg2 = lab("gub")
            a("s_barrier")
            a(f"buffer_load_dwordx4 {WR(20,4)}, {vQG}, {sWS}, 0 offen offset:2048 sc1")
            if ackY0: a("s_waitcnt vmcnt(1)")
            a(f"s_branch {Lg2}")
            a.label(Ls)
            a(f"s_and_b32 {sT2}, {sW}, 3\ns_lshl_b32 {sT2}, {sT2}, 10\ns_add_u32 m0, {sT2}, {LGU}\ns_add_u32 {sT1}, {sGUo}, {32*2752}")
            ones4(8)
            a(f"s_cmp_eq_u32 {sW}, 7\ns_barrier\ns_cbranch_scc1 {Lg2}c")
            if not gus: ldGU()
            if guw is not None: a(f"s_waitcnt vmcnt({guw})")
            a(f"s_branch {Lg2}")
            a.label(Lg2 + "c")
            lstore([f"buffer_store_dwordx4 {WR(8,4)}, {vL16}, {sWS}, {sAr} offen offset:{A_Q}", f"buffer_store_dwordx4 {WR(8,4)}, {vL16}, {sWS}, {sAr} offen offset:{A_Q+1024}"])
            a(f"s_add_u32 {sT0}, {sXp}, {XB[2]}\nbuffer_store_dwordx4 {WR(8,4)}, {W(41)}, {sWS}, {sT0} offen sc1")
            a.label(Lg2)
            a(f"s_lshl_b32 {sT2}, {sW}, 10\ns_add_u32 m0, {sT2}, {LWD}\ns_barrier")
        stamp(f"yack{L}")

    def x_gather(off):
        a(f"s_mov_b32 {sOff}, {off}")
        if xdelay: a(f"s_sleep {xdelay}")
        if zd and off == XB[0]: a(f"s_add_u32 {sGp}, {sCnt}, 1")
        if zall and off == XB[1]: a(f"s_sleep {zall}")
        if zd and off == XB[1]:
            Lx = only(f"s_cmp_lg_u32 {sGp}, 0", "zd")
            a(f"s_sleep {zd}")
            a.label(Lx)
        poll(f"buffer_load_dwordx4 {WR(4,4)}, {vXG}, {sWS}, {sOff} offen sc1\n"
             f"buffer_load_dwordx4 {WR(8,4)}, {vXG}, {sWS}, {sOff} offen offset:2048 sc1", [W(k) for k in range(4, 12)],
             f"s_waitcnt vmcnt(1)\n{MF} {WR(0,4)}, {WR(4,4)}, {AR(aSEL)}, 0\ns_waitcnt vmcnt(0)\n{MF} {WR(0,4)}, {WR(8,4)}, {AR(aSEL)}, {WR(0,4)}")
        if map1: a(f"v_add_f32 {W(0)}, {W(0)}, {W(1)}\nv_add_f32 {W(2)}, {W(2)}, {W(3)}\nv_add_f32 {W(0)}, {W(0)}, {vRES}\nv_add_f32 {W(0)}, {W(0)}, {W(2)}")
        else:
            red4(W(0), W(1), W(2), W(3))
            a(f"v_add_f32 {W(0)}, {W(0)}, {vRES}")
        a(f"v_cvt_pk_bf16_f32 {W(0)}, {W(0)}, {W(0)}")

    def xs_publish():
        a(f"ds_write_b16 {vXSW}, {W(0)}\nv_and_b32 {vRES}, 0xffff0000, {W(0)}")
        a("s_waitcnt lgkmcnt(0)\ns_barrier")
        a(f"ds_read_b128 {WR(0,4)}, {vXSR}\nds_read_b128 {WR(4,4)}, {vXSR} offset:64")

    GSEL = f"v_cndmask_b32 {W(12)}, {W(12)}, {W(13)}, {sM1}\nv_cndmask_b32 {W(14)}, {W(14)}, {W(15)}, {sM3}\nv_cndmask_b32 {W(12)}, {W(12)}, {W(14)}, {sM2}"
    def gram_store(key):
        a(f"{MF} {WR(12,4)}, {WR(0,4)}, {WR(0,4)}, 0\n{MF} {WR(12,4)}, {WR(4,4)}, {WR(4,4)}, {WR(12,4)}")
        lstore([f"buffer_store_dword {W(12)}, {vSP}, {sWS}, 0 offen offset:{H_ST[key]}"], GSEL)

    def ffn(L):
        if L == 0:
            a(f"v_lshrrev_b32 {W(16)}, 2, {vN}\nv_lshl_add_u32 {W(16)}, {vGK}, 3, {W(16)}\nv_mul_u32_u24 {W(16)}, 96, {W(16)}\nv_and_b32 {W(17)}, 24, {vTR}")
            a(f"s_lshr_b32 {sT0}, {sW}, 1\ns_lshl_b32 {sT0}, {sT0}, 5\ns_and_b32 {sT1}, {sW}, 1\ns_mul_i32 {sT1}, {sT1}, 6144\ns_add_u32 {sT0}, {sT0}, {sT1}\nv_add3_u32 {W(16)}, {W(16)}, {W(17)}, {sT0}")
        x_gather(XB[2 * L])
        if zd and L == 0: a(f"s_sub_u32 {sGp}, {sCnt}, {sGp}")
        stamp(f"ygot{L}")
        xs_publish()
        L6, Ld = lab("gu6"), lab("gud")
        a(f"s_cmp_ge_u32 {sW}, 6\ns_cbranch_scc1 {L6}")
        if L == 0:
            for c in range(2): trread(aGU + 4 * c, "a", W(16), LGU + c * 3072, 384)
        a("s_waitcnt lgkmcnt(1)" if L == 1 else "s_waitcnt lgkmcnt(2)")
        a(f"{MF} {WR(8,4)}, {AR(aGU)}, {WR(0,4)}, 0")
        a("s_waitcnt lgkmcnt(0)")
        a(f"{MF} {WR(8,4)}, {AR(aGU+4)}, {WR(4,4)}, {WR(8,4)}")
        a(f"s_mov_b32 {sOff2}, {XB[2*L+1]}")
        lstore([f"buffer_store_dwordx2 {WR(8,2)}, {vGP}, {sWS}, 0 offen"],
               f"v_cvt_pk_bf16_f32 {W(8)}, {W(8)}, {W(9)}\nv_cvt_pk_bf16_f32 {W(9)}, {W(10)}, {W(11)}\nv_min_u32 {W(8)}, -2, {W(8)}\nv_min_u32 {W(9)}, -2, {W(9)}")
        stamp(f"gupub{L}")
        if L == 0:
            for k in range(4): a(f"v_and_b32 {W(20+k)}, 0xffffff00, {W(20+k)}")
            red8(W(20), W(21), W(22), W(23))
            a(f"v_mov_b32 {vCSQ}, {W(20)}")
        ld = (f"buffer_load_dwordx4 {WR(4,4)}, {vQG}, {sWS}, 0 offen offset:{A_G} sc1\n"
              f"buffer_load_dword {W(12)}, {vGS}, {sWS}, 0 offen offset:{H_ST['G%d'%L]} sc1")
        if L == 0: ld += f"\nbuffer_load_dwordx4 {WR(16,4)}, {vGC}, {sWS}, 0 offen offset:{A_G+GCS} sc1"
        s_, mu, cg, cu = W(14), W(13), vCG, vCU
        if gack: a("s_waitcnt vmcnt(0)")
        if gs: a(f"s_sleep {gs}")
        sp = f"s_waitcnt vmcnt(0)\n{MF} {WR(0,4)}, {WR(4,4)}, {AR(aSEL)}, 0\n"
        if L == 0: sp += f"{MF} {WR(20,4)}, {WR(16,4)}, {AR(aSEL)}, 0\n"
        sp += f"v_add_f32_dpp {s_}, {W(12)}, {W(12)} {LO8[0]} {DPP}"
        if "g" in p2:
            def mk(st, n):
                d, e, c = 24 + 9 * st + st, 24 + 9 * st + st + 8, 24 + 9 * st + st + 4
                l_ = (f"buffer_load_dwordx4 {WR(d,4)}, {vQG}, {sWS}, 0 offen offset:{A_G} sc1\n"
                      f"buffer_load_dword {W(e)}, {vGS}, {sWS}, 0 offen offset:{H_ST['G%d'%L]} sc1")
                if L == 0: l_ += f"\nbuffer_load_dwordx4 {WR(c,4)}, {vGC}, {sWS}, 0 offen offset:{A_G+GCS} sc1"
                sp_ = f"s_waitcnt vmcnt({n})\n{MF} {WR(0,4)}, {WR(d,4)}, {AR(aSEL)}, 0\n"
                if L == 0: sp_ += f"{MF} {WR(20,4)}, {WR(c,4)}, {AR(aSEL)}, 0\n"
                sp_ += f"v_add_f32_dpp {s_}, {W(e)}, {W(e)} {LO8[0]} {DPP}"
                return l_, [W(k) for k in (d, d+1, d+2, d+3, e) + ((c, c+1, c+2, c+3) if L == 0 else ())], sp_
            if L == 1: poll2(mk)
        if not ("g" in p2 and L == 1):
          poll(ld, [W(k) for k in (4, 5, 6, 7, 12) + ((16, 17, 18, 19) if L == 0 else ())], sp)
        stamp(f"gugot{L}")
        a(f"v_add_f32_dpp {s_}, {s_}, {s_} {LO8[1]} {DPP}\nv_mov_b32 {W(15)}, {f32(K1)}\nv_add_f32_dpp {s_}, {s_}, {s_} {LO8[2]} {DPP}\nv_mul_f32 {s_}, {f32(1/512)}, {s_}")
        a(f"v_permlane32_swap_b32 {W(0)}, {W(1)}\nv_permlane32_swap_b32 {W(2)}, {W(3)}")
        a(f"v_mov_b32_dpp {mu}, {s_} row_ror:8 {DPP}")
        a(f"v_add_f32 {W(0)}, {W(0)}, {W(1)}\nv_add_f32 {W(4)}, {W(2)}, {W(3)}")
        a(f"v_fma_f32 {s_}, -{mu}, {mu}, {s_}\nv_max_f32 {s_}, 0, {s_}")
        a(f"v_permlane16_swap_b32 {W(0)}, {W(4)}")
        a(f"v_add_f32 {s_}, {f32(1e-5)}, {s_}\nv_rsq_f32 {s_}, {s_}")
        if L == 0:
            a(f"v_permlane32_swap_b32 {W(20)}, {W(21)}\nv_add_f32 {cg}, {W(20)}, {W(21)}\nv_add_f32 {cu}, {W(20)}, {W(21)}\nv_permlane16_swap_b32 {cg}, {cu}")
        g, u = W(0), W(4)
        a(f"v_fma_f32 {g}, -{mu}, {cg}, {g}\nv_mul_f32 {g}, {g}, {s_}\nv_mul_f32 {W(1)}, {g}, {g}")
        a(f"v_fmac_f32 {W(15)}, {f32(K1*0.044715)}, {W(1)}\nv_mul_f32 {W(2)}, {W(15)}, {g}\nv_exp_f32 {W(2)}, {W(2)}\nv_fma_f32 {u}, -{mu}, {cu}, {u}")
        a(f"v_add_f32 {W(2)}, 1.0, {W(2)}\nv_rcp_f32 {W(2)}, {W(2)}\nv_mul_f32 {u}, {u}, {s_}\nv_mul_f32 {g}, {g}, {W(2)}\nv_mul_f32 {u}, {u}, {g}")
        a(f"v_cvt_pk_bf16_f32 {u}, {u}, {u}\nds_write_b16 {vHW}, {u}")
        a(f"s_branch {Ld}")
        a.label(L6)
        a(f"s_waitcnt lgkmcnt(0)\ns_cmp_lg_u32 {sW}, 7\ns_cbranch_scc1 {Ld}")
        gram_store(f"G{L}")
        stamp(f"stpub{L}")
        a.label(Ld)
        a("s_waitcnt vmcnt(0) lgkmcnt(0)\ns_barrier" if L == 0 else "s_waitcnt lgkmcnt(0)\ns_barrier")
        stamp(f"hbar{L}")
        Lz, Lz2 = lab("dn"), lab("dnb")
        a(f"s_cmp_ge_u32 {sW}, 4\ns_cbranch_scc1 {Lz}")
        a(f"ds_read_b128 {WR(0,4)}, {vHR}\nds_read_b128 {WR(4,4)}, {vHR} offset:64")
        if L == 0:
            for c in range(2): trread(aWD + 4 * c, "a", vTR, LWD + c * 4096, 512)
        a(f"s_waitcnt lgkmcnt({2-L})\n{MF} {WR(8,4)}, {AR(aWD)}, {WR(0,4)}, 0\ns_waitcnt lgkmcnt(0)\n{MF} {WR(8,4)}, {AR(aWD+4)}, {WR(4,4)}, {WR(8,4)}")
        x_publish(8, vZP, XB[2 * L + 1])
        stamp(f"zpub{L}")
        if L == 1: a("s_waitcnt vmcnt(0)" if xs is None else f"s_sleep {xs}")
        if L == 0:
            a.label(Lz)
            attn_zero()
            Lx = only(f"s_cmp_lt_u32 {sW}, 4", "zack")
            a("s_waitcnt vmcnt(0)")
            a.label(Lx)
            Lx = only(f"s_cmp_eq_u32 {sW}, 4", "oclr")
            ones4(8)
            a(f"s_lshl_b32 {sT0}, {sJ}, 8\ns_add_u32 {sT0}, {sT0}, {sHa}\nv_lshlrev_b32 {W(12)}, 20, {vL16}\nv_and_b32 {W(12)}, 0x30000000, {W(12)}\nv_or_b32 {W(12)}, {W(12)}, {vL16}")
            lstore([f"buffer_store_dwordx4 {WR(8,4)}, {W(12)}, {sWS}, {sT0} offen", f"buffer_store_dword {W(8)}, {vL0}, {sWS}, {sLse} offen offset:{H_LSE}"])
            a.label(Lx)
            Lx = only(f"s_cmp_eq_u32 {sW}, 5", "zclr")
            clearX(3, 8)
            a.label(Lx)
        else:
            a.label(Lz)
        if L == 1: a(f"s_cmp_lg_u32 {sFin}, 0\ns_cbranch_scc1 L_fin")
        a("s_barrier")
        stamp(f"zack{L}")

    def q_stage():
        x_gather(XB[1])
        stamp("zgot0")
        xs_publish()
        Ls, Le = lab("q7"), lab("qe")
        a(f"s_cmp_eq_u32 {sW}, 7\ns_cbranch_scc1 {Ls}")
        a(f"s_waitcnt lgkmcnt(1)\n{MF} {WR(8,4)}, {AR(aWQ)}, {WR(0,4)}, 0\ns_waitcnt lgkmcnt(0)\n{MF} {WR(8,4)}, {AR(aWQ+4)}, {WR(4,4)}, {WR(8,4)}")
        lstore([f"buffer_store_dwordx4 {WR(8,4)}, {vQP}, {sWS}, 0 offen"])
        a(f"s_branch {Le}")
        a.label(Ls)
        a(f"s_waitcnt lgkmcnt(1)\n{MF} {WR(12,4)}, {WR(0,4)}, {WR(0,4)}, 0\n{MF} {WR(8,4)}, {AR(aWQ)}, {WR(0,4)}, 0")
        a(f"s_waitcnt lgkmcnt(0)\n{MF} {WR(12,4)}, {WR(4,4)}, {WR(4,4)}, {WR(12,4)}\n{MF} {WR(8,4)}, {AR(aWQ+4)}, {WR(4,4)}, {WR(8,4)}")
        lstore([f"buffer_store_dwordx4 {WR(8,4)}, {vQP}, {sWS}, 0 offen", f"buffer_store_dword {W(12)}, {vSP}, {sWS}, 0 offen offset:{H_ST['Q1']}"], GSEL)
        a.label(Le)
        stamp("qpub1")

    a.label("L_toC0")
    await4(2, 20)
    if numa == "auto": a(f"v_and_b32 {W(20)}, 8192, {W(20)}\nv_xor_b32 {vXG}, {vXG}, {W(20)}")
    stamp("barC0")
    attention(0); wo_stage(0); ffn(0); q_stage()
    a(f"s_cmp_ge_u32 {sW}, 4\ns_cbranch_scc1 L_hiC1")
    if prio: a("s_setprio 1")
    q_gather()
    if "q" in p2: a("s_waitcnt vmcnt(0)")
    a("s_branch L_toC1")
    a.label("L_hiC1")
    ones4(40)
    a(f"s_xor_b32 {sT0}, {sW}, 4\ns_or_b32 {sT0}, {sT0}, s2\ns_cbranch_scc1 L_toC1")
    a(f"v_mov_b32 {W(0)}, {sEp}\ns_mov_b32 {sT0}, {EPO}\nbuffer_store_dword {W(0)}, {vL0}, {sWS}, {sT0} offen")
    a.label("L_toC1")
    if rep2:
        a(f"s_mov_b32 s6, 0")
        a.label("L_rep2")
        attn_zero()
    a("s_waitcnt lgkmcnt(0)\ns_barrier")
    stamp("barC1")
    attention(1); wo_stage(1); ffn(1)
    if fin32: a(f"s_lshr_b32 {sT0}, {sW}, 1\ns_cmp_lg_u32 {sT0}, {sHL}\ns_cbranch_scc1 L_fin")
    x_gather(XB[3])
    a(f"buffer_store_short {W(0)}, v0, {sOut}, 0 offen")
    a.label("L_fin")
    if amp:
        if not stamps: stamp("end")
        if amp[0] == "start": a("s_mov_b32 s100, s96")
        a(f"s_cmp_lg_u32 {sW}, {stw}\ns_cbranch_scc1 L_end")
        a(f"s_sub_u32 s100, s101, s100\ns_min_u32 s100, s100, 3000\ns_mul_i32 s100, s100, {amp[2]}\ns_add_u32 s96, s96, s100")
        a.label("L_pad")
        a(f"s_memrealtime s[4:5]\ns_waitcnt lgkmcnt(0)\ns_sub_u32 s4, s4, s96\ns_cmp_lt_i32 s4, {pad*100}\ns_cbranch_scc1 L_pad")
    elif pad and not padat:
        a.label("L_pad")
        a(f"s_memrealtime s[4:5]\ns_waitcnt lgkmcnt(0)\ns_sub_u32 s4, s4, s96\ns_cmp_lt_u32 s4, {pad*100}\ns_cbranch_scc1 L_pad")
    if stamps:
        stamp("end")
        a(f"s_cmp_lg_u32 {sW}, {stw}\ns_cbranch_scc1 L_end")
        a(f"s_lshl_b32 {sT0}, s2, 8\ns_add_u32 {sT0}, {sT0}, 0x10000000\ns_add_u32 s98, s98, {sT0}\ns_addc_u32 s99, s99, 0")
        a(f"v_lshlrev_b32 {W(0)}, 2, {vL}\nglobal_store_dword {W(0)}, {vST}, s[98:99]")
    a.label("L_end")
    a("s_endpgm")
    for L, stores, pre in slow:
        a.label(L)
        a("s_nop 7")
        a(pre)
        for s_ in stores: a(s_ + " sc1" if s_.startswith("buffer") else s_)
        a(f"s_nop 1\ns_branch {L}r")
    a.label("L_codeend")
    return wrap(a.text(), 256, 512, LDS_SIZE, 256, 144), nst[0]

if __name__ == "__main__":
    t, _ = gen(); open("k.s", "w").write(t)
    t, n = gen(stamps=True); open("ks.s", "w").write(t)
    for arg in sys.argv[1:]:
        name, kw = arg.split("=", 1)
        t, n2 = gen(**eval("dict(" + kw + ")")); open(name + ".s", "w").write(t)
    print("stamps", n)
```

```python
import sys, math, struct
from asmlib import *

EPO = 0
XB = [16384 + 262144 * k for k in range(4)]
PRB = 16384 + 1048576
HA = PRB + 65536
H_LSE = 2048; H_ST = {"G0": 2176, "Q1": 2432, "G1": 2688}; H_MF = 2944; H_GF = 3072
HST = 3200
WA = HA + 32 * HST
A_Q = 0; A_G = 2560; GCS = 768
AST = 3712
WSN = WA + 256 * AST
OOB = 0x7FFF0000
LWQ = 0; LWO = 16384; LGU = 32768; LWD = 45056
LXS = 53248; XSS = 144; LXR = 54144; LHS = 54784
LQS = 55424; LZERO = 55680; LDUM = 55712; LFLG = 56768
LOW = 56896; LML = 61760
LDS_SIZE = 61952
C2 = math.log2(math.e) / math.sqrt(128.0)
K1 = -2.0 * math.sqrt(2.0 / math.pi) * math.log2(math.e)
DPP = "row_mask:0xf bank_mask:0xf"
def f32(x): return "0x%08x" % struct.unpack("<I", struct.pack("<f", x))[0]

sK, sV, sWq, sWo, sWg, sWu, sWd, sWS, sX, sOut = [f"s[{28+4*k}:{31+4*k}]" for k in range(10)]
def sr(srd, k): return "s%d" % (int(srd[2:srd.index(":")]) + k)
(sG, sI, sHL, sJ, sW, sB, sH, sAr, sHa, sT0, sT1, sT2, sT3, sCnt, sOff, sOff2, sNT, sTB, sXcc, sFin,
 sEp, sMode, sXp, sGUo, sWDo, sLse, sNear) = [f"s{68+k}" for k in range(27)]
sKV = "s3"; sFlag = sOff2
sM1, sM2, sM3 = "s[12:13]", "s[14:15]", "s[16:17]"
vL, vN, vGK = "v1", "v2", "v3"
W = lambda k: f"v{4+k}"
def WR(k, n): return f"v[{4+k}:{4+k+n-1}]"
P = ["v%d" % k for k in list(range(48, 64)) + list(range(128, 144))]
(vQG, vSG, vOG, vLG, vXG, vCG, vGC, vGS, vQP, vGP, vCU, vYP, vZP, vXSW, vRES, vDW,
 vXSR, vQSW, vQR0, vQR1, vQR2, vQR3, vOWW, vHW, vHR, vCSQ, vIDX, vTR, vL16, vL0, vMLW, vST) = P
vDMA = vSG; vSP = vCG; vRES1 = vDW; RESQ = "v[62:65]"
def vVld(t, c): return 64 + 32 * (t >> 1) + 8 * c + 4 * (t & 1)
aWQ, aWO, aGU, aWD, aSEL, aSEL2 = 64, 72, 88, 96, 104, 108
def AR(b, n=4): return f"a[{b}:{b+n-1}]"
def VR(b, n=4): return f"v[{b}:{b+n-1}]"
MF = "v_mfma_f32_16x16x32_bf16"
SMF = "v_smfmac_f32_16x16x64_bf16"

DOC = """\
;
"""

def gen(stamps=False, stw=4, cyc=False, mini=False, sel_st=(), cnt=False, pad=0, amp=None, limit=4000000,
        wide=7, narrow=5, nmask=0x5f, npre=26, extra=4, tcap=9, hand=3, guw=2, xd=(0, 9, 9, 9), qwarm=False, cs0=False, mix=0):
    a = Asm()
    nst = [0]; slow = []; uid = [0]
    def c(txt): a("; " + txt)
    def stamp(name):
        if amp and name == amp[0]: a("s_memrealtime s[4:5]\ns_waitcnt lgkmcnt(0)\ns_mov_b32 s100, s4")
        if amp and name == amp[1]: a("s_memrealtime s[4:5]\ns_waitcnt lgkmcnt(0)\ns_mov_b32 s101, s4")
        if name.startswith("f ") and name not in sel_st: return
        if not stamps or (mini and name not in ("barD0", "end") + tuple(sel_st)): return
        k = nst[0]; nst[0] += 1
        if cnt: a(f"s_mul_i32 s100, {sCnt}, 100\ns_add_u32 s100, s100, s96\nv_writelane_b32 {vST}, s100, {k}")
        else: a(f"{'s_memtime' if cyc else 's_memrealtime'} s[100:101]\ns_waitcnt lgkmcnt(0)\nv_writelane_b32 {vST}, s100, {k}")
    def lab(p):
        uid[0] += 1; return f"L_{p}{uid[0]}"
    BOUND = f"s_add_u32 {sCnt}, {sCnt}, 1\ns_cmp_gt_u32 {sCnt}, {limit}\ns_cbranch_scc1 L_end"
    def poll(loads, regs, spec):
        L = lab("poll")
        a.label(L)
        a(loads); a(BOUND); a(spec)
        t = W(43); r = list(regs)
        a(f"v_max3_u32 {t}, {r[0]}, {r[1]}, {r[2]}"); r = r[3:]
        while len(r) >= 2: a(f"v_max3_u32 {t}, {t}, {r[0]}, {r[1]}"); r = r[2:]
        if r: a(f"v_max_u32 {t}, {t}, {r[0]}")
        a(f"v_cmp_eq_u32 vcc, -1, {t}\ns_cbranch_vccnz {L}")
    def lstore(stores, pre=""):
        L = lab("sc1_")
        a(f"s_cmp_eq_u32 {sMode}, 0\ns_cbranch_scc1 {L}")
        a(pre)
        for s_ in stores: a(s_)
        a.label(L + "r")
        slow.append((L, stores, pre))
    def red8(r0, r1, r2, r3):
        a(f"v_permlane32_swap_b32 {r0}, {r1}\nv_permlane32_swap_b32 {r2}, {r3}")
        a(f"v_add_f32 {r0}, {r0}, {r1}\nv_add_f32 {r2}, {r2}, {r3}")
        a(f"v_permlane16_swap_b32 {r0}, {r2}\nv_add_f32 {r0}, {r0}, {r2}")
        a(f"v_add_f32_dpp {r0}, {r0}, {r0} row_ror:8 {DPP}")
    LO8 = ("quad_perm:[1,0,3,2]", "quad_perm:[2,3,0,1]", "row_half_mirror")
    def trread(dst, kind, vbase, off, qstride):
        a(f"ds_read_b64_tr_b16 {kind}[{dst}:{dst+1}], {vbase} offset:{off}")
        a(f"ds_read_b64_tr_b16 {kind}[{dst+2}:{dst+3}], {vbase} offset:{off+qstride}")
    def sel(dst, vfalse, vtrue, cmp): a(f"{cmp}\nv_cndmask_b32 {dst}, {vfalse}, {vtrue}, vcc")
    def only(cond, name):
        L = lab(name); a(f"{cond}\ns_cbranch_scc0 {L}"); return L
    def ones4(k):
        for q in range(4): a(f"v_mov_b32 {W(k+q)}, -1")
    vXC = W(41)
    def clearX(k, base): a(f"s_add_u32 {sT0}, {sXp}, {XB[k]}\nbuffer_store_dwordx4 {WR(base,4)}, {vXC}, {sWS}, {sT0} offen sc1")
    def signal(grp, val="1", r=34, r2=35):
        a(f"s_and_b32 {sT0}, {sW}, 3\ns_lshl_b32 {sT0}, {sT0}, 2\nv_mov_b32 {W(r)}, {sT0}\nv_mov_b32 {W(r2)}, {val}\nds_write_b32 {W(r)}, {W(r2)} offset:{LFLG+16*grp}")
    def await4(grp, r):
        L = lab("lds")
        a(f"v_mov_b32 {W(34)}, 0")
        a.label(L)
        a(f"ds_read_b128 {WR(r,4)}, {W(34)} offset:{LFLG+16*grp}\n{BOUND}\ns_waitcnt lgkmcnt(0)")
        a(f"v_min3_u32 {W(35)}, {W(r)}, {W(r+1)}, {W(r+2)}\nv_min_u32 {W(35)}, {W(35)}, {W(r+3)}\nv_cmp_eq_u32 vcc, 0, {W(35)}\ns_cbranch_vccnz {L}")

    a("s_cmp_ge_u32 s2, 256\ns_cbranch_scc1 L_end")
    a("s_load_dwordx16 s[4:19], s[0:1], 0\ns_load_dwordx8 s[20:27], s[0:1], 64")
    if stamps or pad: a(f"{'s_memtime' if cyc else 's_memrealtime'} s[96:97]")
    c("pull this kernel's code into L2: 3 lines per WG, 32 WGs usually share an XCD")
    a("s_getpc_b64 s[28:29]")
    a.label("L_pcref")
    a(f"s_lshr_b32 s30, s2, 3\ns_mul_i32 s30, s30, 384\nv_lshl_add_u32 v4, v0, 7, s30\nv_min_u32 v4, L_end-L_pcref, v4")
    a(f"v_cmp_gt_u32 vcc, 3, v0\ns_and_saveexec_b64 s[30:31], vcc\ns_cbranch_execz L_nopf\nglobal_load_dword {W(36)}, v4, s[28:29]")
    a.label("L_nopf")
    a("s_mov_b64 exec, -1")
    a(f"v_lshrrev_b32 v4, 6, v0\nv_and_b32 {vL}, 63, v0\nv_readfirstlane_b32 {sW}, v4")
    a(f"v_and_b32 {vN}, 15, v0\nv_lshrrev_b32 {vGK}, 4, {vL}")
    c("zero the LDS flag words used between the waves during the K/V stream")
    a(f"v_lshlrev_b32 v4, 2, {vN}\nv_mov_b32 v5, 0\nds_write_b32 v4, v5 offset:{LFLG}")
    a(f"s_and_b32 {sG}, s2, 7\ns_lshr_b32 {sI}, s2, 3\ns_and_b32 {sHL}, {sI}, 3\ns_lshr_b32 {sJ}, {sI}, 2")
    a(f"s_and_b32 {sB}, {sJ}, 3\ns_lshl_b32 {sH}, {sG}, 2\ns_add_u32 {sH}, {sH}, {sHL}")
    c("K/V base: (b*32+h) MB + 768 KB (window start) + key half * 128 KB + (w>>2) * 64 KB")
    a(f"s_lshl_b32 {sT0}, {sB}, 5\ns_add_u32 {sT0}, {sT0}, {sH}\ns_lshl_b32 {sT0}, {sT0}, 20\ns_add_u32 {sT0}, {sT0}, 0xC0000")
    a(f"s_lshr_b32 {sT1}, {sJ}, 2\ns_lshl_b32 {sT1}, {sT1}, 17\ns_add_u32 {sT0}, {sT0}, {sT1}")
    if mix: a(f"s_mul_i32 {sT2}, s2, 0x9E3779B1\ns_lshr_b32 {sT2}, {sT2}, 15")
    a(f"s_lshr_b32 {sT1}, {sW}, 2\ns_lshl_b32 {sT1}, {sT1}, 16")
    if mix & 1: a(f"s_xor_b32 {sT1}, {sT1}, {sT2}\ns_and_b32 {sT1}, {sT1}, 0x10000")
    a(f"s_add_u32 {sT0}, {sT0}, {sT1}")
    a(f"s_and_b32 {sT3}, {sW}, 3\ns_lshl_b32 {sKV}, {sT3}, 12")
    if mix & 2: a(f"s_and_b32 {sT2}, {sT2}, 0x4000\ns_or_b32 {sKV}, {sKV}, {sT2}")
    vKO, vWQO = W(40), W(42)
    t0, t1, t2, t3, vE, vHi3, vLo3 = W(0), W(1), W(2), W(3), W(4), W(5), W(6)
    c("K lane offset: tile pair (n>>3)*32K, row 8*((n>>1)&1) + ((n>>2)&1), byte gk*32 + (n&1)*16")
    a(f"v_and_b32 v4, 8, {vN}\nv_lshlrev_b32 v4, 12, v4\nv_lshl_add_u32 v4, {vGK}, 5, v4\nv_and_b32 v5, 2, {vN}\nv_lshl_add_u32 v4, v5, 10, v4")
    a(f"v_and_b32 v5, 4, {vN}\nv_lshl_add_u32 v4, v5, 6, v4\nv_and_b32 v5, 1, {vN}\nv_lshl_add_u32 {vKO}, v5, 4, v4")
    a(f"v_lshlrev_b32 {vL16}, 4, {vL}")
    for srd in (sK, sV, sWq, sX): a(f"s_mov_b32 {sr(srd,3)}, 0x20000")
    a(f"s_mov_b32 {sr(sK,2)}, 0x10000\ns_mov_b32 {sr(sV,2)}, 0x10000\ns_mov_b32 {sr(sWq,2)}, 0x400000\ns_mov_b32 {sr(sX,2)}, 4096")
    a(f"v_lshlrev_b32 v4, 13, {vGK}\nv_lshl_add_u32 {vWQO}, {vN}, 4, v4")
    a(f"s_lshl_b32 {sT1}, {sJ}, 2\ns_add_u32 {sT1}, {sT1}, {sT3}\ns_lshl_b32 {sT1}, {sT1}, 17\ns_lshl_b32 {sT2}, {sH}, 8\ns_add_u32 {sT1}, {sT1}, {sT2}")
    a(f"s_lshl_b32 {sT2}, {sT3}, 12\ns_mov_b32 m0, {sT2}\ns_lshl_b32 {sT3}, {sT3}, 10")
    a(f"s_getreg_b32 {sXcc}, hwreg(HW_REG_XCC_ID)\ns_and_b32 {sXcc}, {sXcc}, 15\ns_mov_b32 {sCnt}, 0")
    a("s_waitcnt lgkmcnt(0)\ns_barrier")
    XR = 12
    if stamps: a(f"v_mov_b32 {vST}, 0\nv_writelane_b32 {vST}, s96, 0"); nst[0] = 1
    stamp("kernarg")
    a(f"s_load_dword {sEp}, s[26:27], {EPO}")
    a(f"s_add_u32 {sr(sK,0)}, s6, {sT0}\ns_addc_u32 {sr(sK,1)}, s7, 0")
    a(f"s_add_u32 {sr(sV,0)}, s8, {sT0}\ns_addc_u32 {sr(sV,1)}, s9, 0")
    a(f"s_mov_b32 {sr(sX,0)}, s4\ns_mov_b32 {sr(sX,1)}, s5\ns_mov_b32 {sr(sWq,0)}, s10\ns_mov_b32 {sr(sWq,1)}, s11")
    def window():
        c("loads in flight per wave: fewer than the CU could queue, so that the XCDs share HBM evenly (vcc: narrow)")
        a(f"s_lshr_b32 {sT0}, {nmask}, {sXcc}\ns_and_b32 {sT0}, {sT0}, 1\ns_cselect_b64 vcc, -1, 0")
    def ldKV(k, capped=True):
        t, cc = (k & 15) >> 2, k & 3
        if k == 8 or (k >= 16 and cc == 0): a(f"s_xor_b32 {sKV}, {sKV}, {0xc000 if k == 24 else 0x4000}")
        if capped and k == narrow + 1: window()
        if capped and k > wide: a(f"s_waitcnt vmcnt({wide})")
        if capped and k > narrow:
            L = lab("w"); a(f"s_cbranch_vccz {L}\ns_waitcnt vmcnt({narrow})"); a.label(L)
        if k < 16:
            g_, tq, hf = (k >> 2) & 1, 2 * (k >> 3) + ((k >> 1) & 1), k & 1
            b0 = 32 * g_ + 8 * tq + 4 * hf
            a(f"buffer_load_dwordx4 a[{b0}:{b0+3}], {vKO}, {sK}, {sKV} offen offset:{(4*g_+2*(tq&1))*256+hf*128} nt")
        else: a(f"buffer_load_dwordx4 {VR(vVld(t,cc))}, {vL16}, {sV}, {sKV} offen offset:{cc*1024} nt")
    a(f"s_cmp_lt_u32 {sW}, 4\ns_cbranch_scc1 L_early0")
    c("waves 4-7 first fetch input row w-4 and the wq slab, waves 0-3 stream their K and V")
    a(f"buffer_load_dwordx4 {WR(XR,4)}, {vL16}, {sX}, {sT3} offen")
    for k in range(4):
        if k: a(f"s_add_u32 m0, {sT2}, {k*1024}\ns_add_u32 {sT1}, {sT1}, 32768")
        a(f"buffer_load_dwordx4 {vWQO}, {sWq}, {sT1} offen nt lds")
    a("s_branch L_common")
    a.label("L_early0")
    for k in range(32): ldKV(k)
    a(f"s_waitcnt vmcnt({hand})")
    c("hand the stream over to wave w+4")
    signal(1)
    stamp("E done")
    a.label("L_common")
    for srd in (sWo, sWg, sWu, sWd, sWS, sOut): a(f"s_mov_b32 {sr(srd,3)}, 0x20000")
    a(f"s_mov_b32 {sr(sWS,0)}, s26\ns_mov_b32 {sr(sWS,1)}, s27\ns_mov_b32 {sr(sWS,2)}, {WSN}")
    a(f"s_mul_i32 {sAr}, s2, {AST}\ns_add_u32 {sAr}, {sAr}, {WA}\ns_and_b32 {sT0}, s2, 31\ns_mul_i32 {sHa}, {sT0}, {HST}\ns_add_u32 {sHa}, {sHa}, {HA}")
    c("cross-XCD line (wg, tile t, copy c) = j*32K + (t>>1)*16K + c*8K + (t&1)*4K + (wg&31)*128")
    a(f"s_lshl_b32 {sXp}, {sJ}, 15\ns_lshl_b32 {sT0}, {sT0}, 7\ns_add_u32 {sXp}, {sXp}, {sT0}")
    a(f"v_mov_b32 {t3}, {OOB}\nv_lshrrev_b32 {vHi3}, 3, {vL}\nv_and_b32 {vLo3}, 7, {vL}\nv_lshlrev_b32 {vL0}, 24, {vL}")
    a(f"v_and_b32 {t0}, 32, {vL}\nv_lshlrev_b32 {t0}, 8, {t0}\nv_and_b32 {t1}, 8, {vL}")
    a(f"v_lshl_add_u32 {t0}, {t1}, 9, {t0}\nv_and_b32 {t1}, 16, {vL}\nv_lshl_add_u32 {t0}, {t1}, 10, {t0}\nv_lshl_add_u32 {vXC}, {vLo3}, 4, {t0}")
    c("this launch's tag: previous one + 1, low byte never zero")
    a(f"s_mov_b32 {sMode}, 0\ns_waitcnt lgkmcnt(0)\ns_add_u32 {sEp}, {sEp}, 1\ns_and_b32 {sT0}, {sEp}, 0xff\ns_cselect_b32 {sT0}, 0, 1\ns_add_u32 {sEp}, {sEp}, {sT0}")
    a(f"s_cmp_lt_u32 {sW}, 4\ns_cbranch_scc1 L_part2")
    Lx = only(f"s_cmp_eq_u32 {sW}, 7", "w7")
    c("wave 7: XCD id to the head group, clear of the own Y0 lines")
    a(f"s_and_b32 {sT1}, {sEp}, 0x0fffffff\ns_lshl_b32 {sT2}, {sXcc}, 28\ns_or_b32 {sFlag}, {sT1}, {sT2}\nv_mov_b32 {W(30)}, {sFlag}")
    a(f"s_lshl_b32 {sT0}, {sJ}, 2\ns_add_u32 {sT0}, {sT0}, {sHa}\nbuffer_store_dword {W(30)}, {vL0}, {sWS}, {sT0} offen offset:{H_MF} sc1")
    ones4(24)
    clearX(0, 24)
    a(f"s_mul_i32 {sT1}, {sJ}, 112\ns_add_u32 {sT1}, {sT1}, {sHa}\ns_add_u32 s10, s26, {sT1}\ns_addc_u32 s11, s27, 0")
    for o in (0, 56, 108): a(f"s_load_dword s4, s[10:11], {H_LSE+o}")
    a.label(Lx)
    c("a plain store only stays in L2 when its line is there: fetch the lines about to be written (scalar path)")
    Lx = only(f"s_cmp_eq_u32 {sW}, 5", "w5")
    a(f"s_lshl_b32 {sT0}, {sJ}, 8\ns_add_u32 {sT0}, {sT0}, {sHa}\ns_add_u32 s8, s26, {sT0}\ns_addc_u32 s9, s27, 0")
    for o in (0, 64, 128, 192): a(f"s_load_dword s4, s[8:9], {o}")
    a.label(Lx)
    a(f"s_and_b32 {sT0}, {sW}, 3\ns_mul_i32 {sT0}, {sT0}, 640\ns_add_u32 {sT0}, {sT0}, {sAr}\ns_add_u32 s6, s26, {sT0}\ns_addc_u32 s7, s27, 0")
    for k in range(10): a(f"s_load_dword s5, s[6:7], {64*k}")
    a.label("L_part2")
    c("remaining descriptors and scalars")
    a(f"s_mov_b32 {sr(sWo,0)}, s12\ns_mov_b32 {sr(sWo,1)}, s13\ns_mov_b32 {sr(sWo,2)}, 0x400000")
    a(f"s_mov_b32 {sr(sWg,0)}, s16\ns_mov_b32 {sr(sWg,1)}, s17\ns_mov_b32 {sr(sWg,2)}, 1409024")
    a(f"s_mov_b32 {sr(sWu,0)}, s18\ns_mov_b32 {sr(sWu,1)}, s19\ns_mov_b32 {sr(sWu,2)}, 1409024")
    c("86 FFN tiles of 16: 11 per g (10 for g = 6, 7), 3 per head group; rows past the last valid tile read as zero")
    a(f"s_mul_i32 {sTB}, {sG}, 11\ns_cmp_eq_u32 {sG}, 7\ns_cselect_b32 {sTB}, 76, {sTB}\ns_cmp_lt_u32 {sG}, 6\ns_cselect_b32 {sNT}, 11, 10")
    a(f"s_mul_i32 {sT0}, {sHL}, 3\ns_add_u32 {sTB}, {sTB}, {sT0}\ns_sub_u32 {sNT}, {sNT}, {sT0}\ns_min_u32 {sNT}, {sNT}, 3")
    a(f"s_add_u32 {sT0}, {sTB}, {sNT}\ns_lshl_b32 {sr(sWd,2)}, {sT0}, 14\ns_mov_b32 {sr(sWd,0)}, s20\ns_mov_b32 {sr(sWd,1)}, s21")
    a(f"s_mov_b32 {sr(sOut,0)}, s22\ns_mov_b32 {sr(sOut,1)}, s23\ns_mov_b32 {sr(sOut,2)}, 4096")
    if stamps: a("s_mov_b32 s98, s26\ns_mov_b32 s99, s27")
    a(f"s_xor_b32 {sFin}, {sG}, {sJ}")
    a(f"s_mov_b64 {sM1}, 0xf0002\ns_mov_b64 {sM2}, 12\ns_mov_b64 {sM3}, 8")
    a(f"s_lshl_b32 {sGUo}, {sTB}, 5\ns_mul_i32 {sT1}, {sJ}, {64*2752}\ns_add_u32 {sGUo}, {sGUo}, {sT1}")
    a(f"s_lshl_b32 {sWDo}, {sTB}, 14\ns_lshl_b32 {sT1}, {sW}, 13\ns_add_u32 {sWDo}, {sWDo}, {sT1}\ns_lshl_b32 {sT1}, {sJ}, 7\ns_add_u32 {sWDo}, {sWDo}, {sT1}")
    c("per-lane addresses (n = l&15, gk = l>>4); lanes with nothing to move get an out-of-range offset")
    a(f"v_lshlrev_b32 {t0}, 9, {vN}\nv_lshl_add_u32 {t0}, {vGK}, 4, {t0}\ns_lshl_b32 {sT1}, {sW}, 6\ns_add_u32 {sT1}, {sT1}, {sAr}\nv_add_u32 {t0}, {sT1}, {t0}")
    sel(W(39), t3, t0, f"v_cmp_gt_u32 vcc, 5, {vN}")
    sel(vQP, t3, t0, f"v_cmp_gt_u32 vcc, 4, {vN}")
    a(f"v_min_u32 {t0}, 5, {vN}\nv_mul_u32_u24 {t0}, {XSS}, {t0}\nv_lshl_add_u32 {t0}, {vGK}, 4, {t0}\nv_add_u32 {vXSR}, {LXS}, {t0}")
    vTRQ = W(38)
    a(f"v_lshrrev_b32 {t0}, 2, {vN}\nv_lshl_add_u32 {t0}, {vGK}, 3, {t0}\nv_and_b32 {t1}, 3, {vN}\ns_lshl_b32 {sT0}, {sW}, 5\nv_lshl_add_u32 {t1}, {t1}, 3, {sT0}")
    a(f"v_lshl_add_u32 {vTRQ}, {t0}, 8, {t1}\nv_lshl_add_u32 {vTR}, {t0}, 7, {t1}")
    a(f"v_lshrrev_b32 {t0}, 1, {vGK}\nv_and_b32 {t1}, 1, {vGK}\nv_lshl_add_u32 {vE}, {t1}, 1, {t0}")
    a(f"s_and_b32 {sT1}, {sW}, 3\ns_lshl_b32 {sT1}, {sT1}, 5\nv_and_b32 {t0}, 4, {vN}\nv_add_u32 {t0}, {t0}, {vGK}\nv_lshl_add_u32 {t1}, {t0}, 2, {sT1}")
    a(f"v_and_b32 {t0}, 3, {vN}\nv_mul_u32_u24 {t2}, {XSS}, {t0}\nv_add_u32 {t2}, {t1}, {t2}\nv_add_u32 {vXSW}, {LXS}, {t2}")
    a(f"v_and_b32 {t0}, 11, {vN}\nv_lshl_add_u32 {t0}, {t0}, 10, {t1}\ns_lshl_b32 {sT0}, {sJ}, 7\nv_add_u32 v0, {sT0}, {t0}")
    a(f"s_lshl_b32 {sT1}, {sW}, 5\ns_add_u32 {sT1}, {sT1}, {LHS}\nv_lshl_add_u32 {t1}, {vN}, 1, {sT1}\nv_mul_u32_u24 {t2}, {XSS}, {vE}\nv_add_u32 {vHW}, {t1}, {t2}\nv_add_u32 {t2}, {LDUM}, {vL16}")
    a(f"s_and_b32 {sT0}, s2, 31\ns_mul_i32 {sT0}, {sT0}, {AST}\ns_add_u32 {sT0}, {sT0}, {WA}\ns_mov_b32 {sT3}, {32*AST}\nv_mul_lo_u32 {t0}, {vHi3}, {sT3}\nv_add_u32 {W(7)}, {sT0}, {t0}")
    a(f"s_lshl_b32 {sT1}, {sW}, 7\nv_lshl_add_u32 {t0}, {vLo3}, 4, {W(7)}\nv_add_u32 {vQG}, {sT1}, {t0}")
    a(f"s_lshl_b32 {sT1}, {sW}, 6\nv_and_b32 {t0}, 4, {vL}\nv_lshl_add_u32 {t0}, {t0}, 2, {W(7)}\nv_and_b32 {t1}, 2, {vL}\nv_lshl_add_u32 {t0}, {t1}, 4, {t0}\nv_add_u32 {vGC}, {sT1}, {t0}\nv_mov_b32 {vCG}, {t3}")
    a(f"v_lshl_add_u32 {t0}, {vLo3}, 3, {sHa}\nv_lshl_add_u32 {vGS}, {vE}, 6, {t0}\ns_lshl_b32 {sT0}, {sB}, 6\nv_add_u32 {vSG}, {sT0}, {t0}")
    a(f"v_lshrrev_b32 {t0}, 3, {vN}\nv_lshl_add_u32 {t0}, {t0}, 2, {vGK}\nv_lshlrev_b32 {t0}, 7, {t0}\nv_lshl_add_u32 {t0}, {vLo3}, 4, {t0}\nv_add_u32 {vOG}, {sHa}, {t0}")
    a(f"v_lshl_add_u32 {t0}, {vLo3}, 2, {sHa}")
    sel(vLG, t3, t0, f"v_cmp_gt_u32 vcc, 8, {vN}")
    a(f"s_and_b32 {sT0}, {sW}, 1\ns_lshl_b32 {sT0}, {sT0}, 12\ns_and_b32 {sT1}, {sW}, 2\ns_lshl_b32 {sT1}, {sT1}, 13\ns_add_u32 {sT0}, {sT0}, {sT1}")
    a(f"s_lshl_b32 {sT1}, {sJ}, 15\ns_add_u32 {sT1}, {sT1}, {sT0}\nv_add_u32 {vXG}, {sT1}, {vL16}\ns_add_u32 {sT0}, {sT0}, {sXp}")
    a(f"v_and_b32 {t0}, 2, {vGK}\nv_lshlrev_b32 {t0}, 5, {t0}\nv_and_b32 {t1}, 1, {vGK}\nv_lshl_add_u32 {t0}, {t1}, 3, {t0}\nv_add_u32 {t0}, {sT0}, {t0}")
    a(f"v_and_b32 {t1}, 3, {vN}\nv_lshl_add_u32 {t1}, {t1}, 4, {t0}\nv_and_b32 {W(7)}, 4, {vN}\nv_lshl_add_u32 {t1}, {W(7)}, 11, {t1}\nv_cndmask_b32 {vZP}, {t3}, {t1}, vcc")
    a(f"v_and_b32 {t1}, 6, {vN}\nv_lshl_add_u32 {t1}, {t1}, 3, {t0}\nv_and_b32 {W(7)}, 1, {vN}\nv_lshl_add_u32 {t1}, {W(7)}, 13, {t1}\nv_cndmask_b32 {vYP}, {t3}, {t1}, vcc")
    a(f"v_and_b32 {t0}, 2, {vL}\nv_lshlrev_b32 {t0}, 4, {t0}\nv_and_b32 {t1}, 1, {vE}\nv_lshl_add_u32 {t0}, {t1}, 4, {t0}\nv_and_b32 {t1}, 4, {vL}\nv_lshl_add_u32 {t0}, {t1}, 1, {t0}")
    a(f"v_and_b32 {t1}, 1, {vL}\nv_lshl_add_u32 {t0}, {t1}, 2, {t0}\nv_and_b32 {t1}, 2, {vE}\ns_lshl_b32 {sT0}, {sW}, 6\ns_add_u32 {sT0}, {sT0}, {LQS}\nv_add3_u32 {t0}, {t0}, {t1}, {sT0}\nv_cndmask_b32 {vQSW}, {t2}, {t0}, vcc")
    a(f"s_and_b32 {sT0}, {sW}, 6\ns_lshl_b32 {sT0}, {sT0}, 1\ns_and_b32 {sT1}, {sW}, 1\ns_add_u32 {sT0}, {sT0}, {sT1}\nv_and_b32 {t0}, 2, {vGK}\nv_add_u32 {t0}, {sT0}, {t0}")
    a(f"s_add_u32 {sT0}, {sAr}, {A_G}\nv_and_b32 {t1}, 1, {vGK}\nv_lshl_add_u32 {t1}, {t1}, 3, {sT0}\nv_lshl_add_u32 {W(7)}, {t0}, 4, {t1}\nv_add_u32 {W(7)}, {GCS}, {W(7)}")
    a(f"v_lshl_add_u32 {t0}, {t0}, 6, {t1}\nv_lshl_add_u32 {t0}, {vN}, 4, {t0}")
    sel(t0, W(7), t0, f"v_cmp_gt_u32 vcc, 4, {vN}")
    sel(vGP, t3, t0, f"v_cmp_gt_u32 vcc, 5, {vN}")
    a(f"s_lshr_b32 {sT1}, {sJ}, 2\ns_lshl_b32 {sT0}, {sB}, 1\ns_add_u32 {sT0}, {sT0}, {sT1}\ns_lshl_b32 {sLse}, {sT0}, 2\ns_add_u32 {sLse}, {sLse}, {sHa}")
    a(f"v_and_b32 {t0}, 3, {vN}\nv_mul_u32_u24 {t1}, {XSS}, {t0}\nv_lshl_add_u32 {t1}, {vGK}, 4, {t1}\nv_add_u32 {vHR}, {LHS}, {t1}")
    a(f"v_lshlrev_b32 {t0}, 4, {t0}\nv_lshl_add_u32 {t0}, {vGK}, 6, {t0}\nv_add_u32 {t0}, {LQS}, {t0}\nv_mov_b32 {t1}, {LZERO}\nv_lshrrev_b32 {W(7)}, 2, {vN}")
    for cc, r in enumerate((vQR0, vQR1, vQR2, vQR3)): sel(r, t1, t0, f"v_cmp_eq_u32 vcc, {cc}, {W(7)}")
    a(f"s_mul_i32 {sT0}, {sW}, 608\ns_add_u32 {sT0}, {sT0}, {LOW}\nv_lshl_add_u32 {t0}, {vN}, 3, {sT0}\nv_lshlrev_b32 {t1}, 3, {vN}\nv_add_u32 {t1}, {LDUM}, {t1}")
    sel(vOWW, t1, t0, f"v_cmp_gt_u32 vcc, 16, {vL}")
    a(f"s_lshl_b32 {sT0}, {sW}, 3\ns_add_u32 {sT0}, {sT0}, {LML}\nv_lshlrev_b32 {t0}, 3, {vL}\nv_add_u32 {vMLW}, {LDUM}, {t0}\nv_writelane_b32 {vMLW}, {sT0}, 63")
    c("sparsity index (even rows take elements 0,2 of each 4, odd rows 1,3) and the 0/1 operands that sum bf16 partials")
    a(f"v_and_b32 {t0}, 1, {vL}\nv_mul_u32_u24 {t1}, 0x5555, {t0}\nv_add_u32 {vIDX}, 0x8888, {t1}")
    a(f"v_lshlrev_b32 {t0}, 4, {t0}\nv_mov_b32 {t1}, 0x3f80\nv_lshlrev_b32 {t0}, {t0}, {t1}\nv_lshrrev_b32 {t1}, 1, {vLo3}")
    for q in range(4): a(f"v_cmp_eq_u32 vcc, {q}, {t1}\nv_cndmask_b32 {t2}, 0, {t0}, vcc\nv_accvgpr_write_b32 a{aSEL+q}, {t2}")
    for q in range(4): a(f"v_cmp_eq_u32 vcc, {q}, {W(7)}\nv_cndmask_b32 {t2}, 0, {t0}, vcc\nv_accvgpr_write_b32 a{aSEL2+q}, {t2}")
    a(f"v_lshlrev_b32 {t0}, 10, {vHi3}\nv_lshl_add_u32 {vDW}, {vLo3}, 4, {t0}")
    a(f"s_cmp_lt_u32 {sW}, 4\ns_cbranch_scc1 L_early1")

    c("waves 4-7: gate/up DMA pieces p = 64(w&3) + l -> row p/6, 16-byte piece p%6")
    a(f"s_and_b32 {sT0}, {sW}, 3\ns_lshl_b32 {sT0}, {sT0}, 6\nv_add_u32 {t0}, {sT0}, {vL}\nv_mul_u32_u24 {t1}, 43691, {t0}\nv_lshrrev_b32 {t1}, 18, {t1}\nv_mul_u32_u24 {t2}, 6, {t1}\nv_sub_u32 {t0}, {t0}, {t2}")
    a(f"v_mul_u32_u24 {t1}, 2752, {t1}\nv_lshl_add_u32 {t1}, {t0}, 4, {t1}\ns_lshl_b32 {sT0}, {sNT}, 1")
    sel(vDMA, t3, t1, f"v_cmp_gt_u32 vcc, {sT0}, {t0}")
    a(f"s_lshl_b32 {sT0}, {sJ}, 3\ns_add_u32 {sT0}, {sT0}, {sHa}\nv_lshlrev_b32 {t0}, 6, {vN}\nv_lshl_add_u32 {t0}, {vGK}, 2, {t0}\nv_add_u32 {t0}, {sT0}, {t0}\nv_and_b32 {t1}, 0x2c, {vL}")
    sel(vSP, t3, t0, f"v_cmp_eq_u32 vcc, 0, {t1}")
    Lx = only(f"s_cmp_eq_u32 {sW}, 6", "w6")
    c("LDS constants: rows of 1.0 and 1/512 behind the x chunk, zero block, zero padding of h")
    a(f"v_mov_b32 {t0}, 0x3f803f80\nv_and_b32 {t1}, 31, {vL}\nv_lshlrev_b32 {t1}, 2, {t1}\nds_write_b32 {t1}, {t0} offset:{LXS+4*XSS}\nv_mov_b32 {t0}, 0x3b003b00\nds_write_b32 {t1}, {t0} offset:{LXS+5*XSS}")
    a(f"v_mov_b32 {t2}, 0\nv_and_b32 {t0}, 12, {t1}\nds_write_b32 {t0}, {t2} offset:{LZERO}")
    a(f"v_mul_u32_u24 {t0}, {XSS}, {vGK}\nv_lshl_add_u32 {t0}, {vLo3}, 2, {t0}\nds_write_b32 {t0}, {t2} offset:{LHS+96}")
    a.label(Lx)
    a(f"v_mov_b32 {W(8)}, 0\nv_mov_b32 {W(9)}, 0\nv_mov_b32 {W(10)}, 0x3f803f80")
    a(f"s_and_b32 {sT0}, {sW}, 3\ns_mul_i32 {sT0}, {sT0}, {XSS}\ns_add_u32 {sT0}, {sT0}, {LXS}\nv_lshl_add_u32 {t0}, {vLo3}, 4, {sT0}\nv_mov_b32 {t2}, {LDUM}")
    sel(W(11), t2, t0, f"v_cmp_eq_u32 vcc, {sJ}, {vHi3}")
    a(f"s_cmp_lt_u32 {sW}, 7\ns_cbranch_scc1 L_w0a\ns_add_u32 s22, s26, {sHa}\ns_addc_u32 s23, s27, 0\ns_waitcnt vmcnt(6) lgkmcnt(0)\ns_load_dwordx8 s[4:11], s[22:23], {H_MF}\ns_branch L_w0b")
    a.label("L_w0a")
    a("s_waitcnt vmcnt(4) lgkmcnt(0)")
    a.label("L_w0b")
    c("LayerNorm of input row w-4; chunk j goes to LDS raw (residual) and normalised")
    for k in range(4): a(f"v_dot2_f32_bf16 {W(8)}, {W(XR+k)}, {W(XR+k)}, {W(8)}\nv_dot2_f32_bf16 {W(9)}, {W(XR+k)}, {W(10)}, {W(9)}")
    a(f"ds_write_b128 {W(11)}, {WR(XR,4)} offset:{LXR-LXS}\ns_nop 1")
    for m in LO8 + ("row_ror:8",):
        for r in (W(8), W(9)): a(f"v_add_f32_dpp {r}, {r}, {r} {m} {DPP}")
    for r in (W(8), W(9)):
        a(f"v_mov_b32 {W(7)}, {r}\nv_permlane16_swap_b32 {r}, {W(7)}\nv_add_f32 {r}, {r}, {W(7)}")
        a(f"v_mov_b32 {W(7)}, {r}\nv_permlane32_swap_b32 {r}, {W(7)}\nv_add_f32 {r}, {r}, {W(7)}")
    a(f"v_mul_f32 {W(9)}, {f32(1/512)}, {W(9)}\nv_mul_f32 {W(8)}, {f32(1/512)}, {W(8)}")
    a(f"v_fma_f32 {W(8)}, -{W(9)}, {W(9)}, {W(8)}\nv_max_f32 {W(8)}, 0, {W(8)}\nv_add_f32 {W(8)}, {f32(1e-5)}, {W(8)}\nv_rsq_f32 {W(8)}, {W(8)}")
    for k in range(4):
        a(f"v_lshlrev_b32 {t0}, 16, {W(XR+k)}\nv_and_b32 {t1}, 0xffff0000, {W(XR+k)}\nv_sub_f32 {t0}, {t0}, {W(9)}\nv_sub_f32 {t1}, {t1}, {W(9)}")
        a(f"v_mul_f32 {t0}, {t0}, {W(8)}\nv_mul_f32 {t1}, {t1}, {W(8)}\nv_cvt_pk_bf16_f32 {W(16+k)}, {t0}, {t1}")
    a(f"ds_write_b128 {W(11)}, {WR(16,4)}")
    Lx = only(f"s_cmp_eq_u32 {sW}, 7", "w7m")
    c("wave 7: do the 8 WGs of the head group share an XCD?  then clear this WG's slices of the group area")
    Lm = lab("mf")
    a(f"s_lshl_b32 {sT0}, {sJ}, 8\ns_mul_i32 {sT1}, {sJ}, 112\ns_add_u32 {sT1}, {sT1}, {H_LSE-256}\nv_add_u32 {t0}, {sT0}, {vL16}\nv_add_u32 {t1}, {sT1}, {vL16}")
    sel(t0, t1, t0, f"v_cmp_gt_u32 vcc, 16, {vL}")
    sel(W(31), t3, t0, f"v_cmp_gt_u32 vcc, 23, {vL}")
    a(f"s_waitcnt lgkmcnt(0)\ns_xor_b32 {sT0}, s4, {sFlag}")
    for k in range(1, 8): a(f"s_xor_b32 {sT1}, s{4+k}, {sFlag}\ns_or_b32 {sT0}, {sT0}, {sT1}")
    a(f"s_and_b32 {sT1}, {sT0}, 0x0fffffff\ns_cbranch_scc0 {Lm}k\nv_lshlrev_b32 {t0}, 2, {vLo3}")
    a.label(Lm)
    a(f"buffer_load_dword {t1}, {t0}, {sWS}, {sHa} offen offset:{H_MF} sc1\n{BOUND}\ns_waitcnt vmcnt(0)")
    a(f"v_xor_b32 {t1}, {sFlag}, {t1}\nv_and_b32 {t2}, 0x0fffffff, {t1}\nv_cmp_ne_u32 vcc, 0, {t2}\ns_cbranch_vccnz {Lm}")
    a(f"v_cmp_ne_u32 vcc, 0, {t1}\ns_nop 1\ns_mov_b32 {sT0}, vcc_lo")
    a.label(Lm + "k")
    a(f"s_cmp_eq_u32 {sT0}, 0\ns_cselect_b32 {sMode}, 1, 0")
    lstore([f"buffer_store_dwordx4 {WR(24,4)}, {W(31)}, {sWS}, {sHa} offen"])
    a("s_waitcnt vmcnt(1)\ns_branch L_w1b")
    a.label(Lx)
    a("s_waitcnt vmcnt(0)")
    a.label("L_w1b")
    a(f"s_add_u32 {sT1}, {sMode}, 1")
    signal(0, sT1)
    Lx = only(f"s_cmp_eq_u32 {sW}, 4", "race")
    c("wave 4: which of two addresses 8 KB apart is on this XCD's memory die?  Scalar loads return in order: when the")
    c("second is already there as the first arrives, the first took the long way.  One vote per WG, speed only.")
    a(f"s_lshr_b32 {sT0}, s2, 6\ns_lshl_b32 {sT0}, {sT0}, 14\ns_and_b32 {sT1}, s2, 63\ns_lshl_b32 {sT1}, {sT1}, 7\ns_add_u32 {sT0}, {sT0}, {sT1}\ns_add_u32 {sT0}, {sT0}, {PRB}")
    a(f"s_and_b32 {sT2}, {sHL}, 1\ns_lshl_b32 {sT1}, {sT2}, 13\ns_add_u32 {sT0}, {sT0}, {sT1}\ns_xor_b32 {sT1}, {sT0}, 8192\ns_waitcnt lgkmcnt(0)")
    a(f"s_load_dword s4, s[26:27], {sT0}\ns_load_dword s5, s[26:27], {sT1}\ns_waitcnt lgkmcnt(1)")
    a(f"s_lshr_b32 {sT1}, {sXcc}, 2\ns_xor_b32 {sT2}, {sT2}, {sT1}\ns_and_b32 {sT2}, {sT2}, 1\ns_and_b32 {sT1}, {sEp}, 0x0fffffff\ns_getreg_b32 {sT0}, hwreg(HW_REG_IB_STS, 8, 4)")
    a(f"s_cmp_eq_u32 {sT0}, 0\ns_cselect_b32 {sT0}, 1, 0\ns_xor_b32 {sT0}, {sT0}, {sT2}\ns_lshl_b32 {sT0}, {sT0}, 28\ns_or_b32 {sT0}, {sT0}, {sT1}\nv_mov_b32 {W(30)}, {sT0}")
    a.label(Lx)
    await4(0, 20)
    a(f"v_readfirstlane_b32 {sMode}, {W(23)}\ns_sub_u32 {sMode}, {sMode}, 1")
    Lx = only(f"s_cmp_eq_u32 {sW}, 4", "gf")
    c("flag: this WG's Y0 lines are cleared (with the vote)")
    a(f"s_lshl_b32 {sT0}, {sJ}, 2\ns_add_u32 {sT0}, {sT0}, {sHa}\nbuffer_store_dword {W(30)}, {vL0}, {sWS}, {sT0} offen offset:{H_GF} sc1")
    a.label(Lx)
    stamp("barA")
    c("layer-1 q partials, tiles w and w-4 (row 4: column sums of the wq slab); low byte of every word = tag")
    a(f"ds_read_b128 {WR(0,4)}, {vXSR}\nds_read_b128 {WR(4,4)}, {vXSR} offset:64\nv_subrev_u32 {W(28)}, 128, {vTRQ}")
    for cc in range(2): trread(aWQ + 4 * cc, "a", vTRQ, LWQ + cc * 8192, 1024)
    for cc in range(2): trread(4 + 20 + 4 * cc, "v", W(28), LWQ + cc * 8192, 1024)
    a(f"s_movk_i32 {sT2}, 0xff\nv_mov_b32 {W(16)}, {sEp}\nv_subrev_u32 {W(29)}, 256, {W(39)}\ns_waitcnt lgkmcnt(0)")
    a(f"{MF} {WR(8,4)}, {AR(aWQ)}, {WR(0,4)}, 0\n{MF} {WR(12,4)}, {WR(20,4)}, {WR(0,4)}, 0")
    a(f"{MF} {WR(8,4)}, {AR(aWQ+4)}, {WR(4,4)}, {WR(8,4)}\n{MF} {WR(12,4)}, {WR(24,4)}, {WR(4,4)}, {WR(12,4)}")
    for k in range(8): a(f"v_bfi_b32 {W(8+k)}, {sT2}, {W(16)}, {W(8+k)}")
    Lx = only(f"s_cmp_eq_u32 {sW}, 7", "hack")
    c("wave 7's tiles also tell the group that the slice clears are done")
    a("s_waitcnt vmcnt(0)")
    a.label(Lx)
    lstore([f"buffer_store_dwordx4 {WR(8,4)}, {W(39)}, {sWS}, 0 offen", f"buffer_store_dwordx4 {WR(12,4)}, {W(29)}, {sWS}, 0 offen"])
    stamp("q0 pub")
    Lb = lab("hand")
    a(f"s_and_b32 {sT0}, {sW}, 3\ns_lshl_b32 {sT0}, {sT0}, 2\nv_mov_b32 {W(34)}, {sT0}")
    a.label(Lb)
    a(f"ds_read_b32 {W(35)}, {W(34)} offset:{LFLG+16}\n{BOUND}\ns_waitcnt lgkmcnt(0)\nv_cmp_eq_u32 vcc, 0, {W(35)}\ns_cbranch_vccnz {Lb}")
    stamp("barB")
    for k in range(npre): ldKV(k, k < npre - extra)
    stamp("L preC")
    a("s_branch L_toC0")

    a.label("L_early1")
    await4(0, 20)
    a(f"v_readfirstlane_b32 {sMode}, {W(23)}\ns_sub_u32 {sMode}, {sMode}, 1")
    for cc in range(2): trread(aWQ + 4 * cc, "a", vTRQ, LWQ + cc * 8192, 1024)
    vOWR, vMLR, vOP = W(40), W(41), W(42)
    Lx = only(f"s_cmp_eq_u32 {sW}, 0", "cmb")
    c("wave 0 merges the eight waves' attention partials: its LDS and publish addresses")
    a(f"s_sub_u32 {sT0}, {sLse}, {sHa}\ns_lshl_b32 {sT0}, {sT0}, 2\ns_add_u32 {sT0}, {sT0}, {sHa}")
    a(f"v_and_b32 {t0}, 3, {vL}\nv_lshrrev_b32 {t1}, 2, {vL}\nv_lshlrev_b32 {vOP}, 7, {t1}\nv_lshl_add_u32 {vOP}, {t0}, 2, {vOP}\nv_add_u32 {vOP}, {sT0}, {vOP}")
    a(f"v_mul_u32_u24 {t0}, 160, {t0}\nv_lshl_add_u32 {t0}, {t1}, 3, {t0}\nv_add_u32 {vOWR}, {LOW}, {t0}\nv_lshlrev_b32 {vMLR}, 3, {vLo3}")
    a.label(Lx)
    Lx = only(f"s_cmp_eq_u32 {sW}, 1", "gw")
    c("wave 1 fetches the lines of the own gate/up slot (it clears them below)")
    a(f"v_lshlrev_b32 {W(21)}, 7, {vL}\nv_lshl_add_u32 {W(21)}, {vHi3}, 24, {W(21)}\nbuffer_load_dword {W(42)}, {W(21)}, {sWS}, {sAr} offen offset:{A_G} sc1")
    a.label(Lx)
    c("layer-1 q gather (tagged words); wave 0 also reads the flags of the 32 WGs whose Y0 lines this WG will read")
    a(f"s_lshl_b32 {sOff}, {sB}, 9\ns_lshl_b32 {sOff2}, {sJ}, 2\ns_add_u32 {sOff2}, {sOff2}, {HA}\nv_lshrrev_b32 {W(17)}, 1, {vL}\nv_mul_u32_u24 {W(17)}, {HST}, {W(17)}")
    La = lab("arr")
    a.label(La)
    a(f"buffer_load_dwordx4 {WR(0,4)}, {vQG}, {sWS}, {sOff} offen sc1")
    if cs0: a(f"buffer_load_dwordx4 {WR(4,4)}, {vQG}, {sWS}, 0 offen offset:2048 sc1")
    a(f"v_mov_b32 {W(16)}, {sEp}\ns_cmp_lg_u32 {sW}, 0\ns_cbranch_scc1 {La}c")
    a(f"buffer_load_dword {W(16)}, {W(17)}, {sWS}, {sOff2} offen offset:{H_GF} sc1")
    a.label(La + "c")
    a(f"{BOUND}\ns_waitcnt vmcnt(0)\nv_xor_b32 {W(9)}, {sEp}, {W(0)}")
    for k in range(1, 8 if cs0 else 4): a(f"v_xor_b32 {W(11)}, {sEp}, {W(k)}\nv_or_b32 {W(9)}, {W(9)}, {W(11)}")
    a(f"v_xor_b32 {W(10)}, {sEp}, {W(16)}\nv_and_b32 {W(9)}, 0xff, {W(9)}\nv_and_b32 {W(10)}, 0x0fffffff, {W(10)}\nv_or_b32 {W(9)}, {W(9)}, {W(10)}")
    a(f"v_cmp_ne_u32 vcc, 0, {W(9)}\ns_cbranch_vccnz {La}")
    stamp("q0 got")
    for k in range(8 if cs0 else 4): a(f"v_and_b32 {W(k)}, 0xffffff00, {W(k)}")
    red8(W(0), W(1), W(2), W(3))
    a(f"v_mul_f32 {W(0)}, {f32(C2)}, {W(0)}\nv_cvt_pk_bf16_f32 {W(0)}, {W(0)}, {W(0)}\nds_write_b16 {vQSW}, {W(0)}")
    a(f"v_bfe_u32 {W(16)}, {W(16)}, 28, 1\nv_cmp_ne_u32 vcc, 0, {W(16)}\ns_nop 1\ns_bcnt1_i32_b64 {sT1}, vcc\ns_cmp_gt_u32 {sT1}, 32\ns_cselect_b32 {sT1}, 8193, 1")
    signal(2, sT1)
    if cs0:
        red8(W(4), W(5), W(6), W(7))
        a(f"v_mov_b32 {vCSQ}, {W(4)}")

    SD, OA = 16, 24
    def attn_zero():
        for k in range(24): a(f"v_mov_b32 {W(SD+k)}, 0")

    def attention(L):
        c(f"================ layer {L+1}: attention over this wave's 64 keys ================")
        for cc, r in enumerate((vQR0, vQR1, vQR2, vQR3)): a(f"ds_read_b128 {WR(4*cc,4)}, {r}")
        if L == 0:
            a(f"ds_read_b32 {vRES}, {vXSW} offset:{LXR-LXS}\ns_waitcnt vmcnt({npre-16}) lgkmcnt(0)")
            a(f"s_cmp_ge_u32 {sW}, 4\ns_cbranch_scc1 L_noclr")
            Lx = only(f"s_cmp_eq_u32 {sW}, 1", "c1")
            ones4(16)
            lstore([f"buffer_store_dwordx4 {WR(16,4)}, {vL16}, {sWS}, {sAr} offen offset:{A_G}"])
            a.label(Lx)
            c("the stream has pushed early lines out of L2: fetch 3 group lines (wave 2) and 2 code lines (wave 3) again")
            a(f"v_min_u32 {W(21)}, 2, {vL}\nv_lshlrev_b32 {W(21)}, 7, {W(21)}")
            Lx = only(f"s_cmp_eq_u32 {sW}, 2", "c2")
            a(f"s_mul_i32 {sT0}, {sJ}, 384\ns_add_u32 {sT0}, {sT0}, {sHa}\nbuffer_load_dword {W(42)}, {W(21)}, {sWS}, {sT0} offen sc1")
            a.label(Lx)
            Lx = only(f"s_cmp_eq_u32 {sW}, 3", "c3")
            a("s_getpc_b64 s[6:7]")
            a.label("L_pcref2")
            a(f"s_lshl_b32 {sT0}, {sI}, 8\nv_min_u32 {W(21)}, 128, {W(21)}\nv_add_u32 {W(21)}, {sT0}, {W(21)}\nv_min_u32 {W(21)}, L_end-L_pcref2, {W(21)}\nglobal_load_dword {W(42)}, {W(21)}, s[6:7]")
            a.label(Lx)
            a.label("L_noclr")
            attn_zero()
        else:
            Lx = only(f"s_cmp_eq_u32 {sW}, 4", "gclr")
            c("the group has read the layer-1 gate/up partials: clear the slot again")
            lstore([f"buffer_store_dwordx4 {WR(40,4)}, {vL16}, {sWS}, {sAr} offen offset:{A_G}"])
            a.label(Lx)
        s0, s1, m, l = W(18), W(22), W(16), W(17)
        for g_ in range(2):
            for t in range(4):
                if L == 1 and g_ == 0: a(f"s_waitcnt lgkmcnt({3-t})")
                a(f"{SMF} {WR(SD+4*g_,4)}, {WR(4*t,4)}, a[{32*g_+8*t}:{32*g_+8*t+7}], {vIDX}")
        c("scores (log2 units) end up in the odd lanes; max over the wave, exp, p packed as the sparse operand")
        a(f"v_add_f32 {W(16)}, {W(16)}, {W(17)}\nv_add_f32 {s0}, {W(18)}, {W(19)}")
        a(f"v_add_f32 {W(20)}, {W(20)}, {W(21)}\nv_add_f32 {s1}, {W(22)}, {W(23)}")
        a(f"v_add_f32_dpp {s0}, {W(16)}, {s0} quad_perm:[0,0,2,2] {DPP}\nv_add_f32_dpp {s1}, {W(20)}, {s1} quad_perm:[0,0,2,2] {DPP}")
        RED = [f"quad_perm:[2,3,0,1] {DPP}", f"row_ror:4 {DPP}", f"row_ror:8 {DPP}", "row_bcast:15 row_mask:0xa bank_mask:0xf", "row_bcast:31 row_mask:0xc bank_mask:0xf"]
        a(f"v_max_f32 {m}, {s0}, {s1}")
        for mm in RED: a(f"v_max_f32_dpp {m}, {m}, {m} {mm}")
        a(f"v_readlane_b32 {sT3}, {m}, 63")
        a(f"v_subrev_f32 {s0}, {sT3}, {s0}\nv_subrev_f32 {s1}, {sT3}, {s1}\nv_exp_f32 {s0}, {s0}\nv_exp_f32 {s1}, {s1}")
        a(f"v_cvt_pk_bf16_f32 {W(20)}, {s0}, {s1}\nv_add_f32 {l}, {s0}, {s1}")
        def pb(g_, i): return f"v_mov_b32_dpp {W(4*g_+i)}, {W(20)} row_newbcast:{8*g_+2*i+1} {DPP}"
        def pv(g_, u): return f"{SMF} {WR(OA+4*u,4)}, {WR(4*g_,4)}, v[{64+32*g_+8*u}:{71+32*g_+8*u}], {vIDX}"
        for i in range(4): a(pb(0, i))
        a(pb(1, 0)); a(pb(1, 1))
        lr = [f"v_add_f32_dpp {l}, {l}, {l} {mm}" for mm in RED]
        wr_ml = f"ds_write_b64 {vMLW}, {WR(16,2)}"
        wr01 = f"ds_write2_b64 {vOWW}, {WR(OA,2)}, {WR(OA+4,2)} offset0:0 offset1:20"
        wr2 = f"ds_write_b64 {vOWW}, {WR(OA+8,2)} offset:320"
        wr3 = f"ds_write_b64 {vOWW}, {WR(OA+12,2)} offset:480"
        if L == 1:
            for x in [pv(0, 0), pb(1, 2), pb(1, 3), pv(0, 1), lr[0], pv(1, 0), lr[1], pv(1, 1), lr[2], pv(0, 2), lr[3], pv(1, 2), lr[4],
                      wr_ml, pv(0, 3), wr01, pv(1, 3)]: a(x)
        else:
            fill = [[pb(1, 2), pb(1, 3)], [lr[0]], [lr[1]], lr[2:] + [wr_ml], [], [], [], []]
            nxt = npre
            for g_ in range(2):
                for t in (2 * g_, 2 * g_ + 1):
                    last = min(31, max(20 + 4 * t + tcap, nxt - 1))
                    if last >= nxt:
                        Lx = only(f"s_cmp_ge_u32 {sW}, 4", "tail")
                        for k in range(nxt, last + 1):
                            a(f"s_waitcnt vmcnt({tcap})"); ldKV(k, False)
                        if last == 31: signal(3, "1", 40, 42)
                        a.label(Lx)
                        nxt = last + 1
                    c(f"V tile {t} has landed: 4x4 dword transpose in place (kept for layer 2)")
                    a(f"s_waitcnt vmcnt({last - (19 + 4 * t)})")
                    if t == 3: stamp("L vdone")
                    sw = [f"v_swap_b32 v{vVld(t,cc)+u}, v{vVld(t,u)+cc}" for cc in range(4) for u in range(cc + 1, 4)]
                    if t == 3: fill[4].append(sw.pop())
                    for x in sw: a(x)
                for u in range(4):
                    a(pv(g_, u))
                    for x in fill[4 * g_ + u]: a(x)
                if g_ == 0:
                    assert nxt == 32
                    Lx = only(f"s_cmp_ge_u32 {sW}, 4", "d0y")
                    a("s_waitcnt lgkmcnt(0)\ns_barrier")
                    a.label(Lx)
            a(f"{wr01}\n{wr2}\n{wr3}")
            Lx = only(f"s_cmp_lt_u32 {sW}, 4", "wo")
            c("once every V load of this WG is queued, wo and w_down go behind them")
            a("s_waitcnt vmcnt(0)")
            a(f"s_lshl_b32 {sT3}, {sH}, 17\ns_lshl_b32 {sT1}, {sW}, 15\ns_add_u32 {sT3}, {sT3}, {sT1}\ns_lshl_b32 {sT1}, {sJ}, 7\ns_add_u32 {sT3}, {sT3}, {sT1}\ns_lshl_b32 {sT2}, {sW}, 12")
            if qwarm: a(f"v_min_u32 {W(8)}, 19, {vL}\nv_lshlrev_b32 {W(8)}, 7, {W(8)}")
            await4(3, 0)
            for k in range(4):
                a(f"s_add_u32 m0, {sT2}, {LWO+k*1024}")
                if k: a(f"s_add_u32 {sT3}, {sT3}, 8192")
                a(f"buffer_load_dwordx4 {vDW}, {sWo}, {sT3} offen nt lds")
            a(f"s_lshl_b32 {sT2}, {sW}, 10\ns_add_u32 m0, {sT2}, {LWD}\ns_add_u32 {sT1}, {sWDo}, 32768")
            a(f"buffer_load_dwordx4 {vDW}, {sWd}, {sWDo} offen nt lds\ns_add_u32 m0, {sT2}, {LWD+4096}")
            a(f"buffer_load_dwordx4 {vDW}, {sWd}, {sT1} offen nt lds")
            if qwarm:
                c("wave 2 keeps the own q slot lines in L2 for layer 2")
                a(f"s_cmp_lg_u32 {sW}, 2\ns_cbranch_scc1 {Lx}\nbuffer_load_dword {W(42)}, {W(8)}, {sWS}, {sAr} offen sc1")
            a.label(Lx)
        Lc, Ls = lab("comb"), lab("ocomb")
        c("two barriers: after the first every wave's (max, sum) and the partials of waves 0-3 are in LDS, after the second all")
        a(f"s_cmp_lt_u32 {sW}, 4\ns_cbranch_scc1 {Lc}")
        if L == 1: a(f"{wr2}\ns_waitcnt lgkmcnt(2)\ns_barrier\n{wr3}")
        a("s_waitcnt vmcnt(0) lgkmcnt(0)")
        a.label(Lc + "d")
        a("s_barrier")
        stamp(f"barD{L}")
        a(f"s_branch {Ls}")
        a.label(Lc)
        vOWR2 = W(29)
        if L == 1: a(f"{wr2}\ns_nop 4\n{wr3}")
        a(f"s_cmp_lg_u32 {sW}, 0\ns_waitcnt lgkmcnt(0)\nv_add_u32 {vOWR2}, {4*608}, {vOWR}\ns_barrier\ns_cbranch_scc1 {Lc}d")
        c("wave 0: o = sum_w 2^(m_w - M) o_w / sum_w 2^(m_w - M) l_w, published as bf16 with lse = M + log2(L)")
        def rd(k): a(f"ds_read2_b64 {WR(4*k,4)}, {vOWR if k < 2 else vOWR2} offset0:{152*(k&1)} offset1:{152*(k&1)+76}")
        a(f"ds_read_b64 {WR(16,2)}, {vMLR} offset:{LML}")
        rd(0); rd(1)
        if L == 1: a("s_barrier"); rd(2); rd(3)
        a(f"s_waitcnt lgkmcnt({2+2*L})")
        M, F, FL = W(18), W(19), W(20)
        a(f"v_max_f32_dpp {M}, {W(16)}, {W(16)} {LO8[0]} {DPP}")
        for mm in LO8[1:]: a(f"v_max_f32_dpp {M}, {M}, {M} {mm} {DPP}")
        a(f"v_sub_f32 {F}, {W(16)}, {M}\nv_exp_f32 {F}, {F}\nv_mul_f32 {FL}, {F}, {W(17)}\ns_waitcnt lgkmcnt({2*L})")
        ex = {k: f"v_add_f32_dpp {FL}, {FL}, {FL} {LO8[k]} {DPP}" for k in range(3)}
        ex.update({3: f"v_rcp_f32 {W(21)}, {FL}", 4: f"v_log_f32 {FL}, {FL}", 5: f"v_add_f32 {M}, {M}, {FL}"})
        for w in range(7):
            if w == 4:
                if L == 0:
                    a(ex.pop(4)); a(ex.pop(5)); a("s_barrier"); rd(2); rd(3)
                a("s_waitcnt lgkmcnt(1)")
            if w == 6: a("s_waitcnt lgkmcnt(0)")
            op = "v_mul_f32_dpp" if w == 0 else "v_fmac_f32_dpp"
            a(f"{op} {W(22)}, {F}, {W(2*w)} row_newbcast:{w} {DPP}\n{op} {W(23)}, {F}, {W(2*w+1)} row_newbcast:{w} {DPP}")
            if w in ex: a(ex[w])
        lstore([f"buffer_store_dword {W(22)}, {vOP}, {sWS}, 0 offen", f"buffer_store_dword {M}, {vL0}, {sWS}, {sLse} offen offset:{H_LSE}"],
               f"v_fmac_f32_dpp {W(22)}, {F}, {W(14)} row_newbcast:7 {DPP}\nv_fmac_f32_dpp {W(23)}, {F}, {W(15)} row_newbcast:7 {DPP}\n"
               f"v_mul_f32 {W(22)}, {W(22)}, {W(21)}\nv_mul_f32 {W(23)}, {W(23)}, {W(21)}\nv_cvt_pk_bf16_f32 {W(22)}, {W(22)}, {W(23)}")
        stamp(f"opub{L}")
        a.label(Ls)

    def x_publish(d, vaddr):
        a(f"v_cvt_pk_bf16_f32 {W(d)}, {W(d)}, {W(d+1)}\nv_cvt_pk_bf16_f32 {W(d+1)}, {W(d+2)}, {W(d+3)}")
        a(f"buffer_store_dwordx2 {WR(d,2)}, {vaddr}, {sWS}, {sOff2} offen sc1")

    def wo_stage(L):
        c(f"================ layer {L+1}: o of the head group x wo[head rows, chunk j] (waves 0-3, 16 columns each) ================")
        if L == 0:
            a(f"v_cmp_gt_u32 vcc, 8, {vN}\nv_cndmask_b32 {vRES}, 0, {vRES}, vcc\nv_and_b32 {vRES1}, 0xffff0000, {vRES}\nv_lshlrev_b32 {vRES}, 16, {vRES}")
            Lx = only(f"s_cmp_eq_u32 {sW}, 3", "z0c")
            c("clear of the Z0 lines: acknowledged by this wave's o poll, before its y line goes out")
            ones4(12); clearX(1, 12)
            a("s_waitcnt vmcnt(1)\ns_branch L_d2")
            a.label(Lx)
        c("first look only after the own stores are acknowledged: earlier reads just get in their way")
        a("s_waitcnt vmcnt(0)")
        if L == 0: a.label("L_d2")
        a("s_barrier")
        Ls = only(f"s_cmp_lt_u32 {sW}, 4", "wos")
        if L == 0:
            for cc in range(4): trread(aWO + 4 * cc, "a", vTR, LWO + cc * 4096, 512)
            for cc in range(2): trread(aWD + 4 * cc, "a", vTR, LWD + cc * 4096, 512)
        a(f"s_mov_b32 {sOff2}, {XB[2*L]}")
        poll(f"buffer_load_dword {W(8)}, {vLG}, {sWS}, 0 offen offset:{H_LSE} sc1\n"
             f"buffer_load_dwordx4 {WR(0,4)}, {vOG}, {sWS}, 0 offen sc1\n"
             f"buffer_load_dwordx4 {WR(4,4)}, {vOG}, {sWS}, 0 offen offset:1024 sc1", [W(k) for k in range(9)],
             f"s_waitcnt vmcnt(1) lgkmcnt(0)\n{MF} {WR(16,4)}, {AR(aWO+4)}, {WR(0,4)}, 0\nv_sub_f32_dpp {W(9)}, {W(8)}, {W(8)} quad_perm:[1,0,3,2] {DPP}\n"
             f"{MF} {WR(12,4)}, {AR(aWO)}, {WR(0,4)}, 0\nv_exp_f32 {W(9)}, {W(9)}\ns_waitcnt vmcnt(0)\n"
             f"{MF} {WR(16,4)}, {AR(aWO+12)}, {WR(4,4)}, {WR(16,4)}\nv_add_f32 {W(9)}, 1.0, {W(9)}\n{MF} {WR(12,4)}, {AR(aWO+8)}, {WR(4,4)}, {WR(12,4)}\nv_rcp_f32 {W(9)}, {W(9)}")
        stamp(f"ogot{L}")
        c("the two key halves of a batch are merged with weight 1 / (1 + 2^(lse_other - lse_own))")
        for r in range(4): a(f"v_add_f32_dpp {W(12+r)}, {W(16+r)}, {W(12+r)} row_ror:8 {DPP}")
        for r in range(4): a(f"v_mul_f32 {W(12+r)}, {W(12+r)}, {W(9)}")
        for r in range(4): a(f"v_add_f32_dpp {W(12+r)}, {W(12+r)}, {W(12+r)} quad_perm:[1,0,3,2] {DPP}")
        x_publish(12, vYP)
        stamp(f"ypub{L}")
        if L == 1:
            if xd[2] < 0: a("s_waitcnt vmcnt(0)")
            a.label(Ls)
        else:
            Lg = lab("gub")
            a("s_barrier")
            if not cs0: a(f"buffer_load_dwordx4 {WR(20,4)}, {vQG}, {sWS}, 0 offen offset:2048 sc1")
            a(f"s_branch {Lg}")
            a.label(Ls)
            a(f"s_and_b32 {sT2}, {sW}, 3\ns_lshl_b32 {sT2}, {sT2}, 10\ns_add_u32 m0, {sT2}, {LGU}\ns_add_u32 {sT1}, {sGUo}, {32*2752}")
            ones4(8)
            a(f"s_cmp_eq_u32 {sW}, 7\ns_barrier\ns_cbranch_scc1 {Lg}c")
            c("behind the y stores: gate/up weights (waves 4-6), clears of the q slot and the Y1 lines (wave 7)")
            a(f"buffer_load_dwordx4 {vDMA}, {sWg}, {sGUo} offen lds\ns_add_u32 m0, {sT2}, {LGU+6144}")
            a(f"buffer_load_dwordx4 {vDMA}, {sWu}, {sGUo} offen lds\ns_add_u32 m0, {sT2}, {LGU+3072}")
            a(f"buffer_load_dwordx4 {vDMA}, {sWg}, {sT1} offen lds\ns_add_u32 m0, {sT2}, {LGU+9216}")
            a(f"buffer_load_dwordx4 {vDMA}, {sWu}, {sT1} offen lds\ns_waitcnt vmcnt({guw})\ns_branch {Lg}")
            a.label(Lg + "c")
            lstore([f"buffer_store_dwordx4 {WR(8,4)}, {vL16}, {sWS}, {sAr} offen offset:{A_Q}", f"buffer_store_dwordx4 {WR(8,4)}, {vL16}, {sWS}, {sAr} offen offset:{A_Q+1024}"])
            clearX(2, 8)
            a.label(Lg)
        a("s_barrier")
        stamp(f"yack{L}")

    def x_gather(k):
        d = 24 if k == 0 else 40
        a(f"s_add_u32 {sOff}, {sNear}, {XB[k]}")
        if xd[k] > 0:
            c("spin-wait back-off: a read that reaches memory before the other XCDs' writes leaves a copy in this L2,")
            c("which those writes must invalidate before anybody sees them")
            a(f"s_sleep {xd[k]}")
        L = lab("xp")
        a.label(L)
        for q in range(4): a(f"buffer_load_dwordx4 {WR(4*q,4)}, {vXG}, {sWS}, {sOff} offen offset:{1024*q} sc1")
        a(BOUND)
        for q in range(4):
            a(f"s_waitcnt vmcnt({3-q})\n{MF} {WR(d,4)}, {AR(aSEL2)}, {WR(4*q,4)}, {RESQ if q == 0 else WR(d,4)}")
            if q == 0: a(f"v_max3_u32 {W(0)}, {W(0)}, {W(1)}, {W(2)}\nv_max_u32 {W(0)}, {W(0)}, {W(3)}")
            else: a(f"v_max3_u32 {W(0)}, {W(0)}, {W(4*q)}, {W(4*q+1)}\nv_max3_u32 {W(0)}, {W(0)}, {W(4*q+2)}, {W(4*q+3)}")
        a(f"v_cmp_eq_u32 vcc, -1, {W(0)}\ns_cbranch_vccnz {L}")
        for r in (W(d), W(d + 1)): a(f"v_add_f32_dpp {r}, {r}, {r} row_ror:8 {DPP}")
        a(f"v_cvt_pk_bf16_f32 {W(0)}, {W(d)}, {W(d+1)}")

    def x_stage(k, name, idle):
        c("waves 4-7: residual + the 32 partials of chunk j (near copy), 16 columns each -> new x chunk in LDS")
        Lx, Ly = lab("xi"), lab("xs")
        a(f"s_cmp_lt_u32 {sW}, 4\ns_cbranch_scc1 {Lx}")
        x_gather(k)
        stamp(name)
        a(f"ds_write_b32 {vXSW}, {W(0)}\nv_lshlrev_b32 {W(2)}, 16, {W(0)}\nv_and_b32 {W(3)}, 0xffff0000, {W(0)}")
        a(f"v_mov_b32_dpp {vRES}, {W(2)} quad_perm:[0,1,2,3] row_mask:0xf bank_mask:0x3\nv_mov_b32_dpp {vRES1}, {W(3)} quad_perm:[0,1,2,3] row_mask:0xf bank_mask:0x3")
        a(f"s_branch {Ly}")
        a.label(Lx)
        idle()
        a.label(Ly)
        a("s_waitcnt lgkmcnt(0)\ns_barrier")
        stamp(f"xs{k}")
        a(f"ds_read_b128 {WR(0,4)}, {vXSR}\nds_read_b128 {WR(4,4)}, {vXSR} offset:64")

    GSEL = f"v_cndmask_b32 {W(12)}, {W(12)}, {W(13)}, {sM1}\nv_cndmask_b32 {W(14)}, {W(14)}, {W(15)}, {sM3}\nv_cndmask_b32 {W(12)}, {W(12)}, {W(14)}, {sM2}"

    def ffn(L):
        c(f"================ layer {L+1}: FFN ================")
        if L == 0:
            a(f"v_lshrrev_b32 {W(16)}, 2, {vN}\nv_lshl_add_u32 {W(16)}, {vGK}, 3, {W(16)}\nv_mul_u32_u24 {W(16)}, 96, {W(16)}\nv_and_b32 {W(17)}, 24, {vTR}")
            a(f"s_lshr_b32 {sT0}, {sW}, 1\ns_lshl_b32 {sT0}, {sT0}, 5\ns_and_b32 {sT1}, {sW}, 1\ns_mul_i32 {sT1}, {sT1}, 6144\ns_add_u32 {sT0}, {sT0}, {sT1}\nv_add3_u32 {W(16)}, {W(16)}, {W(17)}, {sT0}")
        def idle():
            for q in range(4): a(f"v_accvgpr_read_b32 {W(24+q)}, a{aSEL+q}\nv_accvgpr_read_b32 {W(28+q)}, a{aSEL+q}")
            a(f"v_mov_b32 {W(33)}, 0\nv_mov_b32 {W(34)}, {f32(1e-5)}\nv_mov_b32 {W(35)}, {f32(K1)}\ns_lshl_b32 {sOff}, {sW}, 7\ns_mov_b32 {sOff2}, {XB[2*L+1]}")
            for q in range(8): a(f"v_mov_b32_dpp {W(24+q)}, {W(33)} quad_perm:[0,1,2,3] row_mask:0xf bank_mask:{'0xc' if q < 4 else '0x3'}")
            if L == 0 and not cs0:
                c("column sums of wq for the layer-2 LayerNorm")
                a("s_waitcnt vmcnt(0)")
                for k in range(4): a(f"v_and_b32 {W(20+k)}, 0xffffff00, {W(20+k)}")
                red8(W(20), W(21), W(22), W(23))
                a(f"v_mov_b32 {vCSQ}, {W(20)}")
        x_stage(2 * L, f"ygot{L}", idle)
        L6, Ld = lab("gu6"), lab("gud")
        c("waves 0-5: gate/up partials of one tile each (row 4: column sums); wave 7: chunk sum and sum of squares")
        a(f"s_cmp_ge_u32 {sW}, 6\ns_cbranch_scc1 {L6}")
        if L == 0:
            for cc in range(2): trread(aGU + 4 * cc, "a", W(16), LGU + cc * 3072, 384)
        a(f"s_waitcnt lgkmcnt({2-L})\n{MF} {WR(8,4)}, {AR(aGU)}, {WR(0,4)}, 0\ns_waitcnt lgkmcnt(0)\n{MF} {WR(8,4)}, {AR(aGU+4)}, {WR(4,4)}, {WR(8,4)}")
        lstore([f"buffer_store_dwordx2 {WR(8,2)}, {vGP}, {sWS}, 0 offen"],
               f"v_cvt_pk_bf16_f32 {W(8)}, {W(8)}, {W(9)}\nv_cvt_pk_bf16_f32 {W(9)}, {W(10)}, {W(11)}")
        stamp(f"gupub{L}")
        c("waves 0-2: sum the group's partials of tile w, LayerNorm scale, h = gelu(g) * u")
        a(f"s_cmp_ge_u32 {sW}, 3\ns_cbranch_scc1 {Ld}\ns_waitcnt vmcnt(0)")
        s_, mu, cg, cu, ep = W(32), W(33), vCG, vCU, W(34)
        ld = (f"buffer_load_dwordx2 {WR(12,2)}, {vGS}, {sWS}, 0 offen offset:{H_ST['G%d'%L]} sc1\n"
              f"buffer_load_dwordx4 {WR(4,4)}, {vQG}, {sWS}, {sOff} offen offset:{A_G} sc1\n"
              f"buffer_load_dwordx4 {WR(8,4)}, {vQG}, {sWS}, {sOff} offen offset:{A_G+128} sc1")
        if L == 0: ld += f"\nbuffer_load_dwordx4 {WR(16,4)}, {vGC}, {sWS}, 0 offen offset:{A_G+GCS} sc1"
        n0 = 1 - L
        sp = (f"s_waitcnt vmcnt({n0+2})\nv_add_f32_dpp {s_}, {W(12)}, {W(12)} {LO8[0]} {DPP}\nv_add_f32_dpp {mu}, {W(13)}, {W(13)} {LO8[0]} {DPP}\n"
              f"s_waitcnt vmcnt({n0+1})\n{MF} {WR(0,4)}, {WR(4,4)}, {WR(24,4)}, 0\n"
              f"v_add_f32_dpp {s_}, {s_}, {s_} {LO8[1]} {DPP}\nv_add_f32_dpp {mu}, {mu}, {mu} {LO8[1]} {DPP}\n"
              f"s_waitcnt vmcnt({n0})\n{MF} {WR(0,4)}, {WR(8,4)}, {WR(28,4)}, {WR(0,4)}")
        if L == 0: sp += f"\ns_waitcnt vmcnt(0)\n{MF} {WR(20,4)}, {WR(16,4)}, {AR(aSEL)}, 0"
        poll(ld, [W(k) for k in range(4, 14)] + ([W(k) for k in (16, 17, 18, 19)] if L == 0 else []), sp)
        stamp(f"gugot{L}")
        a(f"v_add_f32_dpp {s_}, {s_}, {s_} {LO8[2]} {DPP}\nv_add_f32_dpp {mu}, {mu}, {mu} {LO8[2]} {DPP}")
        if L == 0: a(f"v_mov_b32_dpp {W(20)}, {W(22)} quad_perm:[0,1,2,3] row_mask:0xf bank_mask:0xc\nv_mov_b32_dpp {W(21)}, {W(22)} quad_perm:[0,1,2,3] row_mask:0xf bank_mask:0xc")
        a(f"v_permlane32_swap_b32 {W(0)}, {W(1)}\nv_permlane32_swap_b32 {W(2)}, {W(3)}")
        if L == 0: a(f"v_permlane32_swap_b32 {W(20)}, {W(21)}\nv_add_f32 {cg}, {W(20)}, {W(21)}\nv_add_f32 {cu}, {W(20)}, {W(21)}")
        a(f"v_add_f32 {W(0)}, {W(0)}, {W(1)}\nv_add_f32 {W(4)}, {W(2)}, {W(3)}")
        a(f"v_fmamk_f32 {s_}, {s_}, {f32(1/512)}, {ep}\nv_fma_f32 {s_}, -{mu}, {mu}, {s_}")
        a(f"v_permlane16_swap_b32 {W(0)}, {W(4)}\nv_max_f32 {s_}, {s_}, {ep}\nv_rsq_f32 {s_}, {s_}")
        if L == 0: a(f"v_permlane16_swap_b32 {cg}, {cu}")
        g, u = W(0), W(4)
        c("gelu(g) = 0.5 g (1 + tanh z) = g / (1 + exp(-2z)), z = sqrt(2/pi) (g + 0.044715 g^3)")
        a(f"v_fma_f32 {g}, -{mu}, {cg}, {g}\nv_mul_f32 {g}, {g}, {s_}\nv_mul_f32 {W(1)}, {g}, {g}")
        a(f"v_fmac_f32 {W(35)}, {f32(K1*0.044715)}, {W(1)}\nv_mul_f32 {W(2)}, {W(35)}, {g}\nv_exp_f32 {W(2)}, {W(2)}\nv_fma_f32 {u}, -{mu}, {cu}, {u}")
        a(f"v_add_f32 {W(2)}, 1.0, {W(2)}\nv_rcp_f32 {W(2)}, {W(2)}\nv_mul_f32 {u}, {u}, {s_}\nv_mul_f32 {g}, {g}, {W(2)}\nv_mul_f32 {u}, {u}, {g}")
        a(f"v_cvt_pk_bf16_f32 {u}, {u}, {u}\nds_write_b16 {vHW}, {u}\ns_branch {Ld}")
        a.label(L6)
        a(f"s_cmp_lg_u32 {sW}, 7\ns_cbranch_scc1 {Ld}")
        a(f"s_waitcnt lgkmcnt(1)\n{MF} {WR(12,4)}, {WR(0,4)}, {WR(0,4)}, 0\ns_waitcnt lgkmcnt(0)\n{MF} {WR(12,4)}, {WR(4,4)}, {WR(4,4)}, {WR(12,4)}")
        lstore([f"buffer_store_dword {W(12)}, {vSP}, {sWS}, 0 offen offset:{H_ST['G%d'%L]}"], GSEL)
        a.label(Ld)
        a("s_waitcnt lgkmcnt(0)\ns_barrier")
        stamp(f"hbar{L}")
        c("waves 0-3: h x w_down[48 rows, chunk j]")
        Lz = only(f"s_cmp_lt_u32 {sW}, 4", "dn")
        a(f"ds_read_b128 {WR(0,4)}, {vHR}\nds_read_b128 {WR(4,4)}, {vHR} offset:64")
        a(f"s_waitcnt lgkmcnt(1)\n{MF} {WR(8,4)}, {AR(aWD)}, {WR(0,4)}, 0\ns_waitcnt lgkmcnt(0)\n{MF} {WR(8,4)}, {AR(aWD+4)}, {WR(4,4)}, {WR(8,4)}")
        x_publish(8, vZP)
        stamp(f"zpub{L}")
        if xd[2 * L + 1] < 0: a("s_waitcnt vmcnt(0)")
        a.label(Lz)
        if L == 0: attn_zero()
        else: a(f"s_cmp_lg_u32 {sFin}, 0\ns_cbranch_scc1 L_fin0")
        a("s_barrier")
        stamp(f"zack{L}")

    def q_stage():
        c("================ layer 2: q ================")
        def idle():
            c("meanwhile: wave 1 clears this WG's slice of the o / lse slots again, wave 2 the Z1 lines")
            ones4(8)
            Lx = only(f"s_cmp_eq_u32 {sW}, 1", "oclr")
            a(f"s_lshl_b32 {sT0}, {sJ}, 8\ns_add_u32 {sT0}, {sT0}, {sHa}\nv_lshl_add_u32 {W(12)}, {vGK}, 28, {vL16}")
            lstore([f"buffer_store_dwordx4 {WR(8,4)}, {W(12)}, {sWS}, {sT0} offen", f"buffer_store_dword {W(8)}, {vL0}, {sWS}, {sLse} offen offset:{H_LSE}"])
            a.label(Lx)
            Lx = only(f"s_cmp_eq_u32 {sW}, 2", "zclr")
            clearX(3, 8)
            a.label(Lx)
            a("s_waitcnt vmcnt(0)")
        x_stage(1, "zgot0", idle)
        Ls, Le = lab("q7"), lab("qe")
        a(f"s_cmp_eq_u32 {sW}, 7\ns_cbranch_scc1 {Ls}")
        a(f"s_waitcnt lgkmcnt(1)\n{MF} {WR(8,4)}, {AR(aWQ)}, {WR(0,4)}, 0\ns_waitcnt lgkmcnt(0)\n{MF} {WR(8,4)}, {AR(aWQ+4)}, {WR(4,4)}, {WR(8,4)}")
        lstore([f"buffer_store_dwordx4 {WR(8,4)}, {vQP}, {sWS}, 0 offen"])
        a(f"s_branch {Le}")
        a.label(Ls)
        a(f"s_waitcnt lgkmcnt(1)\n{MF} {WR(12,4)}, {WR(0,4)}, {WR(0,4)}, 0\n{MF} {WR(8,4)}, {AR(aWQ)}, {WR(0,4)}, 0")
        a(f"s_waitcnt lgkmcnt(0)\n{MF} {WR(12,4)}, {WR(4,4)}, {WR(4,4)}, {WR(12,4)}\n{MF} {WR(8,4)}, {AR(aWQ+4)}, {WR(4,4)}, {WR(8,4)}")
        lstore([f"buffer_store_dwordx4 {WR(8,4)}, {vQP}, {sWS}, 0 offen", f"buffer_store_dword {W(12)}, {vSP}, {sWS}, 0 offen offset:{H_ST['Q1']}"], GSEL)
        a.label(Le)
        stamp("qpub1")
        a(f"s_cmp_ge_u32 {sW}, 4\ns_cbranch_scc1 L_hiC1")
        c("waves 0-3: q = (sum of partials - mean * column sum) * rstd * log2(e) / sqrt(128)")
        s_, mu, ep = W(6), W(7), W(12)
        a(f"s_lshl_b32 {sOff}, {sB}, 9\nv_mov_b32 {ep}, {f32(1e-5)}\ns_waitcnt vmcnt(0)")
        poll(f"buffer_load_dwordx2 {WR(4,2)}, {vSG}, {sWS}, 0 offen offset:{H_ST['Q1']} sc1\n"
             f"buffer_load_dwordx4 {WR(0,4)}, {vQG}, {sWS}, {sOff} offen sc1", [W(k) for k in range(6)],
             f"s_waitcnt vmcnt(1)\nv_add_f32_dpp {s_}, {W(4)}, {W(4)} {LO8[0]} {DPP}\nv_add_f32_dpp {mu}, {W(5)}, {W(5)} {LO8[0]} {DPP}\ns_waitcnt vmcnt(0)")
        stamp("qgot1")
        a(f"v_add_f32_dpp {s_}, {s_}, {s_} {LO8[1]} {DPP}\nv_add_f32_dpp {mu}, {mu}, {mu} {LO8[1]} {DPP}")
        a(f"v_permlane32_swap_b32 {W(0)}, {W(1)}\nv_add_f32_dpp {s_}, {s_}, {s_} {LO8[2]} {DPP}\nv_add_f32_dpp {mu}, {mu}, {mu} {LO8[2]} {DPP}\nv_permlane32_swap_b32 {W(2)}, {W(3)}")
        a(f"v_add_f32 {W(0)}, {W(0)}, {W(1)}\nv_add_f32 {W(2)}, {W(2)}, {W(3)}")
        a(f"v_fmamk_f32 {s_}, {s_}, {f32(1/512)}, {ep}\nv_fma_f32 {s_}, -{mu}, {mu}, {s_}")
        a(f"v_permlane16_swap_b32 {W(0)}, {W(2)}\nv_add_f32 {W(0)}, {W(0)}, {W(2)}")
        a(f"v_max_f32 {s_}, {s_}, {ep}\nv_rsq_f32 {s_}, {s_}")
        a(f"v_add_f32_dpp {W(0)}, {W(0)}, {W(0)} row_ror:8 {DPP}\nv_mul_f32 {s_}, {f32(C2)}, {s_}")
        a(f"v_fma_f32 {W(0)}, -{mu}, {vCSQ}, {W(0)}\nv_mul_f32 {W(0)}, {W(0)}, {s_}")
        a(f"v_cvt_pk_bf16_f32 {W(0)}, {W(0)}, {W(0)}\nds_write_b16 {vQSW}, {W(0)}\ns_branch L_toC1")
        a.label("L_hiC1")
        ones4(40)
        a.label("L_toC1")
        a("s_waitcnt lgkmcnt(0)\ns_barrier")
        stamp("barC1")

    a.label("L_toC0")
    c("q is in LDS; wave 0's word carries the majority vote on the near copy")
    await4(2, 20)
    a(f"v_readfirstlane_b32 {sNear}, {W(20)}\ns_lshl_b32 {sT0}, {sXcc}, 11\ns_xor_b32 {sNear}, {sNear}, {sT0}\ns_and_b32 {sNear}, {sNear}, 8192")
    stamp("barC0")
    attention(0); wo_stage(0); ffn(0); q_stage()
    attention(1); wo_stage(1); ffn(1)
    c("================ output: WGs with g == j, wave 4+hl sums tile hl of chunk j ================")
    a(f"s_sub_u32 {sT0}, {sW}, 4\ns_cmp_lg_u32 {sT0}, {sHL}\ns_cbranch_scc1 L_fin")
    x_gather(3)
    a(f"buffer_store_dword {W(0)}, v0, {sOut}, 0 offen")
    a("s_branch L_fin" if stamps or pad else "s_endpgm")
    a.label("L_fin0")
    c("every WG has read the old tag long ago: wave 7 of WG 1 advances it")
    a(f"s_lshl_b32 {sT0}, s2, 3\ns_add_u32 {sT0}, {sT0}, {sW}\ns_cmp_lg_u32 {sT0}, 15\ns_cbranch_scc1 L_fin")
    a(f"v_mov_b32 {W(0)}, {sEp}\nbuffer_store_dword {W(0)}, {vL0}, {sWS}, 0 offen offset:{EPO} sc1")
    a.label("L_fin")
    if amp:
        if not stamps: stamp("end")
        if amp[0] == "start": a("s_mov_b32 s100, s96")
        a(f"s_cmp_lg_u32 {sW}, {stw}\ns_cbranch_scc1 L_end")
        a(f"s_sub_u32 s100, s101, s100\ns_min_u32 s100, s100, 3000\ns_mul_i32 s100, s100, {amp[2]}\ns_add_u32 s96, s96, s100")
    if pad:
        a.label("L_pad")
        a(f"s_memrealtime s[4:5]\ns_waitcnt lgkmcnt(0)\ns_sub_u32 s4, s4, s96\ns_cmp_lt_i32 s4, {pad*100}\ns_cbranch_scc1 L_pad")
    if stamps:
        stamp("end")
        a(f"s_cmp_lg_u32 {sW}, {stw}\ns_cbranch_scc1 L_end")
        a(f"s_lshl_b32 {sT0}, s2, 8\ns_add_u32 {sT0}, {sT0}, 0x10000000\ns_add_u32 s98, s98, {sT0}\ns_addc_u32 s99, s99, 0")
        a(f"v_lshlrev_b32 {W(0)}, 2, {vL}\nglobal_store_dword {W(0)}, {vST}, s[98:99]")
    a.label("L_end")
    a("s_endpgm")
    c("write-through versions of the group hand-off stores, taken when the group is spread over XCDs")
    for L, stores, pre in slow:
        a.label(L)
        a("s_nop 7")
        a(pre)
        for s_ in stores: a(s_ + " sc1")
        a(f"s_nop 1\ns_branch {L}r")
    return wrap(a.text(), 256, 512, LDS_SIZE, 256, 144, comment=DOC), nst[0]

if __name__ == "__main__":
    t, _ = gen(); open("k.s", "w").write(t)
    t, n = gen(stamps=True); open("ks.s", "w").write(t)
    for arg in sys.argv[1:]:
        name, kw = arg.split("=", 1)
        t, n2 = gen(**eval("dict(" + kw + ")")); open(name + ".s", "w").write(t)
    print("stamps", n)
```

```python
import sys, math, struct
from asmlib import *

EPO = 0
XB = [16384 + 262144 * k for k in range(4)]
PRB = 16384 + 1048576
HA = PRB + 65536
H_LSE = 2048; H_ST = {"G0": 2176, "Q1": 2432, "G1": 2688}; H_MF = 2944; H_GF = 3072
HST = 3200
WA = HA + 32 * HST
A_Q = 0; A_G = 2560; GCS = 768
AST = 3712
WSN = WA + 256 * AST
OOB = 0x7FFF0000
LWQ = 0; LWO = 16384; LGU = 32768; LWD = 45056
LXS = 53248; XSS = 144; LXR = 54144; LHS = 54784
LQS = 55424; LZERO = 55680; LDUM = 55712; LFLG = 56768
LOW = 56896; LML = 61760
LDS_SIZE = 61952
C2 = math.log2(math.e) / math.sqrt(128.0)
K1 = -2.0 * math.sqrt(2.0 / math.pi) * math.log2(math.e)
DPP = "row_mask:0xf bank_mask:0xf"
def f32(x): return "0x%08x" % struct.unpack("<I", struct.pack("<f", x))[0]

sK, sV, sWq, sWo, sWg, sWu, sWd, sWS, sX, sOut = [f"s[{28+4*k}:{31+4*k}]" for k in range(10)]
def sr(srd, k): return "s%d" % (int(srd[2:srd.index(":")]) + k)
(sG, sI, sHL, sJ, sW, sB, sH, sAr, sHa, sT0, sT1, sT2, sT3, sCnt, sOff, sOff2, sNT, sTB, sXcc, sFin,
 sEp, sMode, sXp, sGUo, sWDo, sLse, sNear) = [f"s{68+k}" for k in range(27)]
sKV = "s3"; sFlag = sOff2
sM1, sM2, sM3 = "s[12:13]", "s[14:15]", "s[16:17]"
vL, vN, vGK = "v1", "v2", "v3"
W = lambda k: f"v{4+k}"
def WR(k, n): return f"v[{4+k}:{4+k+n-1}]"
P = ["v%d" % k for k in list(range(48, 64)) + list(range(128, 144))]
(vQG, vSG, vOG, vLG, vXG, vCG, vGC, vGS, vQP, vGP, vCU, vYP, vZP, vXSW, vRES, vDW,
 vXSR, vQSW, vQR0, vQR1, vQR2, vQR3, vOWW, vHW, vHR, vCSQ, vIDX, vTR, vL16, vL0, vMLW, vST) = P
vDMA = vSG; vSP = vCG; vRES1 = vDW; RESQ = "v[62:65]"
def vVld(t, c): return 64 + 32 * (t >> 1) + 8 * c + 4 * (t & 1)
aWQ, aWO, aGU, aWD, aSEL, aSEL2 = 64, 72, 88, 96, 104, 108
def AR(b, n=4): return f"a[{b}:{b+n-1}]"
def VR(b, n=4): return f"v[{b}:{b+n-1}]"
MF = "v_mfma_f32_16x16x32_bf16"
SMF = "v_smfmac_f32_16x16x64_bf16"

DOC = """\
;
"""

def gen(stamps=False, stw=4, cyc=False, mini=False, sel_st=(), cnt=False, pad=0, amp=None, limit=4000000,
        wide=7, narrow=5, nmask=0x5f, npre=26, extra=4, tcap=9, hand=3, guw=2, xd=(0, 9, 9, 9), oearly=True, bpos=6, guc0=True, swz=True):
    a = Asm()
    nst = [0]; slow = []; uid = [0]
    def c(txt): a("; " + txt)
    def stamp(name):
        if amp and name == amp[0]: a("s_memrealtime s[4:5]\ns_waitcnt lgkmcnt(0)\ns_mov_b32 s100, s4")
        if amp and name == amp[1]: a("s_memrealtime s[4:5]\ns_waitcnt lgkmcnt(0)\ns_mov_b32 s101, s4")
        if name.startswith("f ") and name not in sel_st: return
        if not stamps or (mini and name not in ("barD0", "end") + tuple(sel_st)): return
        k = nst[0]; nst[0] += 1
        if cnt: a(f"s_mul_i32 s100, {sCnt}, 100\ns_add_u32 s100, s100, s96\nv_writelane_b32 {vST}, s100, {k}")
        else: a(f"{'s_memtime' if cyc else 's_memrealtime'} s[100:101]\ns_waitcnt lgkmcnt(0)\nv_writelane_b32 {vST}, s100, {k}")
    def lab(p):
        uid[0] += 1; return f"L_{p}{uid[0]}"
    BOUND = f"s_add_u32 {sCnt}, {sCnt}, 1\ns_cmp_gt_u32 {sCnt}, {limit}\ns_cbranch_scc1 L_end"
    def poll(loads, regs, spec, first=None):
        L = lab("poll")
        if first:
            a(loads); first(); a(f"s_branch {L}c")
        a.label(L)
        a(loads); a(BOUND)
        if first: a.label(L + "c")
        a(spec)
        t = W(43); r = list(regs)
        a(f"v_max3_u32 {t}, {r[0]}, {r[1]}, {r[2]}"); r = r[3:]
        while len(r) >= 2: a(f"v_max3_u32 {t}, {t}, {r[0]}, {r[1]}"); r = r[2:]
        if r: a(f"v_max_u32 {t}, {t}, {r[0]}")
        a(f"v_cmp_eq_u32 vcc, -1, {t}\ns_cbranch_vccnz {L}")
    def lstore(stores, pre=""):
        L = lab("sc1_")
        a(f"s_cmp_eq_u32 {sMode}, 0\ns_cbranch_scc1 {L}")
        a(pre)
        for s_ in stores: a(s_)
        a.label(L + "r")
        slow.append((L, stores, pre))
    def red8(r0, r1, r2, r3):
        a(f"v_permlane32_swap_b32 {r0}, {r1}\nv_permlane32_swap_b32 {r2}, {r3}")
        a(f"v_add_f32 {r0}, {r0}, {r1}\nv_add_f32 {r2}, {r2}, {r3}")
        a(f"v_permlane16_swap_b32 {r0}, {r2}\nv_add_f32 {r0}, {r0}, {r2}")
        a(f"v_add_f32_dpp {r0}, {r0}, {r0} row_ror:8 {DPP}")
    LO8 = ("quad_perm:[1,0,3,2]", "quad_perm:[2,3,0,1]", "row_half_mirror")
    def trread(dst, kind, vbase, off, qstride):
        a(f"ds_read_b64_tr_b16 {kind}[{dst}:{dst+1}], {vbase} offset:{off}")
        a(f"ds_read_b64_tr_b16 {kind}[{dst+2}:{dst+3}], {vbase} offset:{off+qstride}")
    def sel(dst, vfalse, vtrue, cmp): a(f"{cmp}\nv_cndmask_b32 {dst}, {vfalse}, {vtrue}, vcc")
    def only(cond, name):
        L = lab(name); a(f"{cond}\ns_cbranch_scc0 {L}"); return L
    def ones4(k):
        for q in range(4): a(f"v_mov_b32 {W(k+q)}, -1")
    vXC = W(41)
    def clearX(k, base): a(f"s_add_u32 {sT0}, {sXp}, {XB[k]}\nbuffer_store_dwordx4 {WR(base,4)}, {vXC}, {sWS}, {sT0} offen sc1")
    def signal(grp, val="1", r=34, r2=35):
        a(f"s_and_b32 {sT0}, {sW}, 3\ns_lshl_b32 {sT0}, {sT0}, 2\nv_mov_b32 {W(r)}, {sT0}\nv_mov_b32 {W(r2)}, {val}\nds_write_b32 {W(r)}, {W(r2)} offset:{LFLG+16*grp}")
    def await4(grp, r):
        L = lab("lds")
        a(f"v_mov_b32 {W(34)}, 0")
        a.label(L)
        a(f"ds_read_b128 {WR(r,4)}, {W(34)} offset:{LFLG+16*grp}\n{BOUND}\ns_waitcnt lgkmcnt(0)")
        a(f"v_min3_u32 {W(35)}, {W(r)}, {W(r+1)}, {W(r+2)}\nv_min_u32 {W(35)}, {W(35)}, {W(r+3)}\nv_cmp_eq_u32 vcc, 0, {W(35)}\ns_cbranch_vccnz {L}")

    vKO, vWQO = W(40), W(42)
    t0, t1, t2, t3, vE, vHi3, vLo3 = W(0), W(1), W(2), W(3), W(4), W(5), W(6)
    XR = 12
    a("s_cmp_ge_u32 s2, 256\ns_cbranch_scc1 L_end")
    a("s_load_dwordx16 s[4:19], s[0:1], 0\ns_load_dwordx8 s[20:27], s[0:1], 64")
    if stamps or pad: a(f"{'s_memtime' if cyc else 's_memrealtime'} s[96:97]")
    c("only what the first K loads need comes before them")
    a(f"v_readfirstlane_b32 {sW}, v0\ns_and_b32 {sG}, s2, 7\ns_bfe_u32 {sHL}, s2, 0x20003\ns_lshl2_add_u32 {sH}, {sG}, {sHL}\ns_lshr_b32 {sW}, {sW}, 6")
    c("K/V base in 64 KB units: (b*32+h)*16 + 12 (window start) + 2*(key half) + (w>>2)")
    a(f"s_and_b32 {sT0}, s2, 0x60\ns_add_u32 {sT0}, {sT0}, {sH}\ns_lshr_b32 {sT1}, s2, 7\ns_lshr_b32 {sT2}, {sW}, 2\ns_lshl1_add_u32 {sT1}, {sT1}, {sT2}")
    a(f"s_lshl4_add_u32 {sT0}, {sT0}, {sT1}\ns_add_u32 {sT0}, {sT0}, 12\ns_lshl_b32 {sT0}, {sT0}, 16\ns_and_b32 {sT3}, {sW}, 3\ns_lshl_b32 {sKV}, {sT3}, 12")
    c("K lane offset: tile pair (n>>3)*32K, row 8*((n>>1)&1) + ((n>>2)&1), byte gk*32 + (n&1)*16")
    a(f"v_and_b32 {vN}, 15, v0\nv_mul_u32_u24 v4, 0x410, {vN}\nv_mul_u32_u24 v5, 0x1040, {vN}\nv_and_b32 v4, 0x810, v4\nv_and_b32 v5, 0x8100, v5")
    a(f"v_bfe_u32 {vGK}, v0, 4, 2\nv_lshl_add_u32 v4, {vGK}, 5, v4\nv_add_u32 {vKO}, v4, v5")
    a(f"s_mov_b32 {sr(sK,2)}, 0x10000\ns_mov_b32 {sr(sK,3)}, 0x20000\ns_cmp_ge_u32 {sW}, 4\ns_cbranch_scc1 L_late0")
    def common0():
        a(f"s_load_dword {sEp}, s[26:27], {EPO}")
        a(f"s_add_u32 {sr(sV,0)}, s8, {sT0}\ns_addc_u32 {sr(sV,1)}, s9, 0\ns_mov_b32 {sr(sV,2)}, 0x10000\ns_mov_b32 {sr(sV,3)}, 0x20000")
        a(f"s_lshr_b32 {sI}, s2, 3\ns_lshr_b32 {sJ}, s2, 5\ns_and_b32 {sB}, {sJ}, 3")
        a(f"s_getreg_b32 {sXcc}, hwreg(HW_REG_XCC_ID)\ns_and_b32 {sXcc}, {sXcc}, 15\ns_mov_b32 {sCnt}, 0")
        if stamps: a(f"v_mov_b32 {vST}, 0\nv_writelane_b32 {vST}, s96, 0"); nst[0] = max(nst[0], 1)
    def window():
        c("loads in flight per wave: fewer than the CU could queue, so that the XCDs share HBM evenly (vcc: narrow)")
        a(f"s_lshr_b32 {sT0}, {nmask}, {sXcc}\ns_and_b32 {sT0}, {sT0}, 1\ns_cselect_b64 vcc, -1, 0")
    def ldKV(k, capped=True):
        t, cc = (k & 15) >> 2, k & 3
        if k == 8 or (k >= 16 and cc == 0): a(f"s_xor_b32 {sKV}, {sKV}, {0xc000 if k == 24 else 0x4000}")
        if capped and k == narrow + 1: window()
        if capped and k > wide: a(f"s_waitcnt vmcnt({wide})")
        if capped and k > narrow:
            L = lab("w"); a(f"s_cbranch_vccz {L}\ns_waitcnt vmcnt({narrow})"); a.label(L)
        if k < 16:
            g_, tq, hf = (k >> 2) & 1, 2 * (k >> 3) + ((k >> 1) & 1), k & 1
            b0 = 32 * g_ + 8 * tq + 4 * hf
            a(f"buffer_load_dwordx4 a[{b0}:{b0+3}], {vKO}, {sK}, {sKV} offen offset:{(4*g_+2*(tq&1))*256+hf*128} nt")
        else: a(f"buffer_load_dwordx4 {VR(vVld(t,cc))}, {vL16}, {sV}, {sKV} offen offset:{cc*1024} nt")
    c("waves 0-3 stream their K and V")
    a(f"s_waitcnt lgkmcnt(0)\ns_add_u32 {sr(sK,0)}, s6, {sT0}\ns_addc_u32 {sr(sK,1)}, s7, 0")
    for k in range(narrow + 1): ldKV(k)
    a("s_branch L_early0")
    a.label("L_late0")
    c("waves 4-7: wave 4 pulls this kernel's code into L2 (3 lines per WG, 32 WGs usually share an XCD);")
    c("LDS flag words zeroed; input row w-4 and the wq slab fetched")
    a("s_getpc_b64 s[32:33]")
    a.label("L_pcref")
    a(f"s_lshr_b32 s34, s2, 3\ns_mul_i32 s34, s34, 384\nv_lshl_add_u32 v4, {vN}, 7, s34\nv_min_u32 v4, L_end-L_pcref, v4")
    a(f"v_cmp_gt_u32 vcc, 259, v0\ns_and_saveexec_b64 s[34:35], vcc\ns_cbranch_execz L_nopf\nglobal_load_dword {W(36)}, v4, s[32:33]")
    a.label("L_nopf")
    a("s_mov_b64 exec, -1")
    a(f"v_lshlrev_b32 v4, 2, {vN}\nv_mov_b32 v5, 0\nds_write_b32 v4, v5 offset:{LFLG}")
    a(f"v_and_b32 {vL}, 63, v0\nv_lshlrev_b32 {vL16}, 4, {vL}\nv_lshlrev_b32 v4, 13, {vGK}\nv_lshl_add_u32 {vWQO}, {vN}, 4, v4")
    a(f"s_mov_b32 {sr(sWq,2)}, 0x400000\ns_mov_b32 {sr(sWq,3)}, 0x20000\ns_mov_b32 {sr(sX,2)}, 4096\ns_mov_b32 {sr(sX,3)}, 0x20000")
    a(f"s_lshr_b32 {sT1}, s2, 5\ns_lshl2_add_u32 {sT1}, {sT1}, {sT3}\ns_lshl_b32 {sT1}, {sT1}, 17\ns_lshl_b32 {sT2}, {sH}, 8\ns_add_u32 {sT1}, {sT1}, {sT2}")
    a(f"s_mov_b32 m0, {sKV}\ns_lshl_b32 {sT3}, {sT3}, 10\ns_waitcnt lgkmcnt(0)")
    a(f"s_mov_b32 {sr(sX,0)}, s4\ns_mov_b32 {sr(sX,1)}, s5\ns_mov_b32 {sr(sWq,0)}, s10\ns_mov_b32 {sr(sWq,1)}, s11")
    a(f"buffer_load_dwordx4 {WR(XR,4)}, {vL16}, {sX}, {sT3} offen")
    for k in range(4):
        if k: a(f"s_add_u32 m0, {sKV}, {k*1024}\ns_add_u32 {sT1}, {sT1}, 32768")
        a(f"buffer_load_dwordx4 {vWQO}, {sWq}, {sT1} offen nt lds")
    a(f"s_barrier\ns_add_u32 {sr(sK,0)}, s6, {sT0}\ns_addc_u32 {sr(sK,1)}, s7, 0")
    common0()
    a("s_branch L_common")
    a.label("L_early0")
    common0()
    a(f"v_and_b32 {vL}, 63, v0\nv_lshlrev_b32 {vL16}, 4, {vL}\nv_mov_b32 {W(42)}, {OOB}")
    for k in range(narrow + 1, 32):
        if k == bpos: a("s_barrier")
        ldKV(k)
    a(f"s_waitcnt vmcnt({hand})")
    c("hand the stream over to wave w+4")
    signal(1)
    stamp("E done")
    a.label("L_common")
    for srd in (sWo, sWg, sWu, sWd, sWS, sOut): a(f"s_mov_b32 {sr(srd,3)}, 0x20000")
    a(f"s_mov_b32 {sr(sWS,0)}, s26\ns_mov_b32 {sr(sWS,1)}, s27\ns_mov_b32 {sr(sWS,2)}, {WSN}")
    a(f"s_mul_i32 {sAr}, s2, {AST}\ns_add_u32 {sAr}, {sAr}, {WA}\ns_and_b32 {sT0}, s2, 31\ns_mul_i32 {sHa}, {sT0}, {HST}\ns_add_u32 {sHa}, {sHa}, {HA}")
    c("cross-XCD line (wg, tile t, copy c) = j*32K + (t>>1)*16K + c*8K + (t&1)*4K + (wg&31)*128")
    a(f"s_lshl_b32 {sXp}, {sJ}, 15\ns_lshl_b32 {sT0}, {sT0}, 7\ns_add_u32 {sXp}, {sXp}, {sT0}")
    a(f"v_mov_b32 {t3}, {OOB}\nv_lshrrev_b32 {vHi3}, 3, {vL}\nv_and_b32 {vLo3}, 7, {vL}\nv_lshlrev_b32 {vL0}, 24, {vL}")
    a(f"v_and_b32 {t0}, 32, {vL}\nv_lshlrev_b32 {t0}, 8, {t0}\nv_and_b32 {t1}, 8, {vL}")
    a(f"v_lshl_add_u32 {t0}, {t1}, 9, {t0}\nv_and_b32 {t1}, 16, {vL}\nv_lshl_add_u32 {t0}, {t1}, 10, {t0}\nv_lshl_add_u32 {vXC}, {vLo3}, 4, {t0}")
    c("this launch's tag: previous one + 1, low byte never zero")
    a(f"s_mov_b32 {sMode}, 0\ns_waitcnt lgkmcnt(0)\ns_add_u32 {sEp}, {sEp}, 1\ns_and_b32 {sT0}, {sEp}, 0xff\ns_cselect_b32 {sT0}, 0, 1\ns_add_u32 {sEp}, {sEp}, {sT0}")
    a(f"s_cmp_lt_u32 {sW}, 4\ns_cbranch_scc1 L_part2")
    Lx = only(f"s_cmp_eq_u32 {sW}, 7", "w7")
    c("wave 7: XCD id to the head group, clear of the own Y0 lines")
    a(f"s_and_b32 {sT1}, {sEp}, 0x0fffffff\ns_lshl_b32 {sT2}, {sXcc}, 28\ns_or_b32 {sFlag}, {sT1}, {sT2}\nv_mov_b32 {W(30)}, {sFlag}")
    a(f"s_lshl_b32 {sT0}, {sJ}, 2\ns_add_u32 {sT0}, {sT0}, {sHa}\nbuffer_store_dword {W(30)}, {vL0}, {sWS}, {sT0} offen offset:{H_MF} sc1")
    ones4(24)
    clearX(0, 24)
    a(f"s_mul_i32 {sT1}, {sJ}, 112\ns_add_u32 {sT1}, {sT1}, {sHa}\ns_add_u32 s10, s26, {sT1}\ns_addc_u32 s11, s27, 0")
    for o in (0, 56, 108): a(f"s_load_dword s4, s[10:11], {H_LSE+o}")
    a.label(Lx)
    c("a plain store only stays in L2 when its line is there: fetch the lines about to be written (scalar path)")
    Lx = only(f"s_cmp_eq_u32 {sW}, 5", "w5")
    a(f"s_lshl_b32 {sT0}, {sJ}, 8\ns_add_u32 {sT0}, {sT0}, {sHa}\ns_add_u32 s8, s26, {sT0}\ns_addc_u32 s9, s27, 0")
    for o in (0, 64, 128, 192): a(f"s_load_dword s4, s[8:9], {o}")
    a.label(Lx)
    a(f"s_and_b32 {sT0}, {sW}, 3\ns_mul_i32 {sT0}, {sT0}, 640\ns_add_u32 {sT0}, {sT0}, {sAr}\ns_add_u32 s6, s26, {sT0}\ns_addc_u32 s7, s27, 0")
    for k in range(10): a(f"s_load_dword s5, s[6:7], {64*k}")
    a.label("L_part2")
    c("remaining descriptors and scalars")
    a(f"s_mov_b32 {sr(sWo,0)}, s12\ns_mov_b32 {sr(sWo,1)}, s13\ns_mov_b32 {sr(sWo,2)}, 0x400000")
    a(f"s_mov_b32 {sr(sWg,0)}, s16\ns_mov_b32 {sr(sWg,1)}, s17\ns_mov_b32 {sr(sWg,2)}, 1409024")
    a(f"s_mov_b32 {sr(sWu,0)}, s18\ns_mov_b32 {sr(sWu,1)}, s19\ns_mov_b32 {sr(sWu,2)}, 1409024")
    c("86 FFN tiles of 16: 11 per g (10 for g = 6, 7), 3 per head group; rows past the last valid tile read as zero")
    a(f"s_mul_i32 {sTB}, {sG}, 11\ns_cmp_eq_u32 {sG}, 7\ns_cselect_b32 {sTB}, 76, {sTB}\ns_cmp_lt_u32 {sG}, 6\ns_cselect_b32 {sNT}, 11, 10")
    a(f"s_mul_i32 {sT0}, {sHL}, 3\ns_add_u32 {sTB}, {sTB}, {sT0}\ns_sub_u32 {sNT}, {sNT}, {sT0}\ns_min_u32 {sNT}, {sNT}, 3")
    a(f"s_add_u32 {sT0}, {sTB}, {sNT}\ns_lshl_b32 {sr(sWd,2)}, {sT0}, 14\ns_mov_b32 {sr(sWd,0)}, s20\ns_mov_b32 {sr(sWd,1)}, s21")
    a(f"s_mov_b32 {sr(sOut,0)}, s22\ns_mov_b32 {sr(sOut,1)}, s23\ns_mov_b32 {sr(sOut,2)}, 4096")
    if stamps: a("s_mov_b32 s98, s26\ns_mov_b32 s99, s27")
    a(f"s_xor_b32 {sFin}, {sG}, {sJ}")
    a(f"s_mov_b64 {sM1}, 0xf0002\ns_mov_b64 {sM2}, 12\ns_mov_b64 {sM3}, 8")
    a(f"s_lshl_b32 {sGUo}, {sTB}, 5\ns_mul_i32 {sT1}, {sJ}, {64*2752}\ns_add_u32 {sGUo}, {sGUo}, {sT1}")
    a(f"s_lshl_b32 {sWDo}, {sTB}, 14\ns_lshl_b32 {sT1}, {sW}, 13\ns_add_u32 {sWDo}, {sWDo}, {sT1}\ns_lshl_b32 {sT1}, {sJ}, 7\ns_add_u32 {sWDo}, {sWDo}, {sT1}")
    c("per-lane addresses (n = l&15, gk = l>>4); lanes with nothing to move get an out-of-range offset")
    a(f"v_lshlrev_b32 {t0}, 9, {vN}\nv_lshl_add_u32 {t0}, {vGK}, 4, {t0}\ns_lshl_b32 {sT1}, {sW}, 6\ns_add_u32 {sT1}, {sT1}, {sAr}\nv_add_u32 {t0}, {sT1}, {t0}")
    sel(W(39), t3, t0, f"v_cmp_gt_u32 vcc, 5, {vN}")
    sel(vQP, t3, t0, f"v_cmp_gt_u32 vcc, 4, {vN}")
    a(f"v_min_u32 {t0}, 5, {vN}\nv_mul_u32_u24 {t0}, {XSS}, {t0}\nv_lshl_add_u32 {t0}, {vGK}, 4, {t0}\nv_add_u32 {vXSR}, {LXS}, {t0}")
    vTRQ = W(38)
    a(f"v_lshrrev_b32 {t0}, 2, {vN}\nv_lshl_add_u32 {t0}, {vGK}, 3, {t0}\nv_and_b32 {t1}, 3, {vN}\ns_lshl_b32 {sT0}, {sW}, 5\nv_lshl_add_u32 {t1}, {t1}, 3, {sT0}")
    a(f"v_lshl_add_u32 {vTRQ}, {t0}, 8, {t1}\nv_lshl_add_u32 {vTR}, {t0}, 7, {t1}")
    if swz:
        c("wo / w_down images: the 32-byte quarters of row R are stored XORed with (R bit 1, R bit 3), against bank conflicts")
        a(f"v_and_b32 {t0}, 24, {vL}\nv_lshlrev_b32 {t0}, 2, {t0}\nv_xor_b32 {vTR}, {vTR}, {t0}")
    a(f"v_lshrrev_b32 {t0}, 1, {vGK}\nv_and_b32 {t1}, 1, {vGK}\nv_lshl_add_u32 {vE}, {t1}, 1, {t0}")
    a(f"s_and_b32 {sT1}, {sW}, 3\ns_lshl_b32 {sT1}, {sT1}, 5\nv_and_b32 {t0}, 4, {vN}\nv_add_u32 {t0}, {t0}, {vGK}\nv_lshl_add_u32 {t1}, {t0}, 2, {sT1}")
    a(f"v_and_b32 {t0}, 3, {vN}\nv_mul_u32_u24 {t2}, {XSS}, {t0}\nv_add_u32 {t2}, {t1}, {t2}\nv_add_u32 {vXSW}, {LXS}, {t2}")
    a(f"v_and_b32 {t0}, 11, {vN}\nv_lshl_add_u32 {t0}, {t0}, 10, {t1}\ns_lshl_b32 {sT0}, {sJ}, 7\nv_add_u32 v0, {sT0}, {t0}")
    a(f"s_lshl_b32 {sT1}, {sW}, 5\ns_add_u32 {sT1}, {sT1}, {LHS}\nv_lshl_add_u32 {t1}, {vN}, 1, {sT1}\nv_mul_u32_u24 {t2}, {XSS}, {vE}\nv_add_u32 {vHW}, {t1}, {t2}\nv_add_u32 {t2}, {LDUM}, {vL16}")
    a(f"s_and_b32 {sT0}, s2, 31\ns_mul_i32 {sT0}, {sT0}, {AST}\ns_add_u32 {sT0}, {sT0}, {WA}\ns_mov_b32 {sT3}, {32*AST}\nv_mul_lo_u32 {t0}, {vHi3}, {sT3}\nv_add_u32 {W(7)}, {sT0}, {t0}")
    a(f"s_lshl_b32 {sT1}, {sW}, 7\nv_lshl_add_u32 {t0}, {vLo3}, 4, {W(7)}\nv_add_u32 {vQG}, {sT1}, {t0}")
    a(f"s_lshl_b32 {sT1}, {sW}, 6\nv_and_b32 {t0}, 4, {vL}\nv_lshl_add_u32 {t0}, {t0}, 2, {W(7)}\nv_and_b32 {t1}, 2, {vL}\nv_lshl_add_u32 {t0}, {t1}, 4, {t0}\nv_add_u32 {vGC}, {sT1}, {t0}\nv_mov_b32 {vCG}, {t3}")
    a(f"v_lshl_add_u32 {t0}, {vLo3}, 3, {sHa}\nv_lshl_add_u32 {vGS}, {vE}, 6, {t0}\ns_lshl_b32 {sT0}, {sB}, 6\nv_add_u32 {vSG}, {sT0}, {t0}")
    a(f"v_lshrrev_b32 {t0}, 3, {vN}\nv_lshl_add_u32 {t0}, {t0}, 2, {vGK}\nv_lshlrev_b32 {t0}, 7, {t0}\nv_lshl_add_u32 {t0}, {vLo3}, 4, {t0}\nv_add_u32 {vOG}, {sHa}, {t0}")
    a(f"v_lshl_add_u32 {t0}, {vLo3}, 2, {sHa}")
    sel(vLG, t3, t0, f"v_cmp_gt_u32 vcc, 8, {vN}")
    a(f"s_and_b32 {sT0}, {sW}, 1\ns_lshl_b32 {sT0}, {sT0}, 12\ns_and_b32 {sT1}, {sW}, 2\ns_lshl_b32 {sT1}, {sT1}, 13\ns_add_u32 {sT0}, {sT0}, {sT1}")
    a(f"s_lshl_b32 {sT1}, {sJ}, 15\ns_add_u32 {sT1}, {sT1}, {sT0}\nv_add_u32 {vXG}, {sT1}, {vL16}\ns_add_u32 {sT0}, {sT0}, {sXp}")
    a(f"v_and_b32 {t0}, 2, {vGK}\nv_lshlrev_b32 {t0}, 5, {t0}\nv_and_b32 {t1}, 1, {vGK}\nv_lshl_add_u32 {t0}, {t1}, 3, {t0}\nv_add_u32 {t0}, {sT0}, {t0}")
    a(f"v_and_b32 {t1}, 3, {vN}\nv_lshl_add_u32 {t1}, {t1}, 4, {t0}\nv_and_b32 {W(7)}, 4, {vN}\nv_lshl_add_u32 {t1}, {W(7)}, 11, {t1}\nv_cndmask_b32 {vZP}, {t3}, {t1}, vcc")
    a(f"v_and_b32 {t1}, 6, {vN}\nv_lshl_add_u32 {t1}, {t1}, 3, {t0}\nv_and_b32 {W(7)}, 1, {vN}\nv_lshl_add_u32 {t1}, {W(7)}, 13, {t1}\nv_cndmask_b32 {vYP}, {t3}, {t1}, vcc")
    a(f"v_and_b32 {t0}, 2, {vL}\nv_lshlrev_b32 {t0}, 4, {t0}\nv_and_b32 {t1}, 1, {vE}\nv_lshl_add_u32 {t0}, {t1}, 4, {t0}\nv_and_b32 {t1}, 4, {vL}\nv_lshl_add_u32 {t0}, {t1}, 1, {t0}")
    a(f"v_and_b32 {t1}, 1, {vL}\nv_lshl_add_u32 {t0}, {t1}, 2, {t0}\nv_and_b32 {t1}, 2, {vE}\ns_lshl_b32 {sT0}, {sW}, 6\ns_add_u32 {sT0}, {sT0}, {LQS}\nv_add3_u32 {t0}, {t0}, {t1}, {sT0}\nv_cndmask_b32 {vQSW}, {t2}, {t0}, vcc")
    a(f"s_and_b32 {sT0}, {sW}, 6\ns_lshl_b32 {sT0}, {sT0}, 1\ns_and_b32 {sT1}, {sW}, 1\ns_add_u32 {sT0}, {sT0}, {sT1}\nv_and_b32 {t0}, 2, {vGK}\nv_add_u32 {t0}, {sT0}, {t0}")
    a(f"s_add_u32 {sT0}, {sAr}, {A_G}\nv_and_b32 {t1}, 1, {vGK}\nv_lshl_add_u32 {t1}, {t1}, 3, {sT0}\nv_lshl_add_u32 {W(7)}, {t0}, 4, {t1}\nv_add_u32 {W(7)}, {GCS}, {W(7)}")
    a(f"v_lshl_add_u32 {t0}, {t0}, 6, {t1}\nv_lshl_add_u32 {t0}, {vN}, 4, {t0}")
    sel(t0, W(7), t0, f"v_cmp_gt_u32 vcc, 4, {vN}")
    sel(vGP, t3, t0, f"v_cmp_gt_u32 vcc, 5, {vN}")
    a(f"s_lshr_b32 {sT1}, {sJ}, 2\ns_lshl_b32 {sT0}, {sB}, 1\ns_add_u32 {sT0}, {sT0}, {sT1}\ns_lshl_b32 {sLse}, {sT0}, 2\ns_add_u32 {sLse}, {sLse}, {sHa}")
    a(f"v_and_b32 {t0}, 3, {vN}\nv_mul_u32_u24 {t1}, {XSS}, {t0}\nv_lshl_add_u32 {t1}, {vGK}, 4, {t1}\nv_add_u32 {vHR}, {LHS}, {t1}")
    a(f"v_lshlrev_b32 {t0}, 4, {t0}\nv_lshl_add_u32 {t0}, {vGK}, 6, {t0}\nv_add_u32 {t0}, {LQS}, {t0}\nv_mov_b32 {t1}, {LZERO}\nv_lshrrev_b32 {W(7)}, 2, {vN}")
    for cc, r in enumerate((vQR0, vQR1, vQR2, vQR3)): sel(r, t1, t0, f"v_cmp_eq_u32 vcc, {cc}, {W(7)}")
    a(f"s_mul_i32 {sT0}, {sW}, 608\ns_add_u32 {sT0}, {sT0}, {LOW}\nv_lshl_add_u32 {t0}, {vN}, 3, {sT0}\nv_lshlrev_b32 {t1}, 3, {vN}\nv_add_u32 {t1}, {LDUM}, {t1}")
    sel(vOWW, t1, t0, f"v_cmp_gt_u32 vcc, 16, {vL}")
    a(f"s_lshl_b32 {sT0}, {sW}, 3\ns_add_u32 {sT0}, {sT0}, {LML}\nv_lshlrev_b32 {t0}, 3, {vL}\nv_add_u32 {vMLW}, {LDUM}, {t0}\nv_writelane_b32 {vMLW}, {sT0}, 63")
    c("sparsity index (even rows take elements 0,2 of each 4, odd rows 1,3) and the 0/1 operands that sum bf16 partials")
    a(f"v_and_b32 {t0}, 1, {vL}\nv_mul_u32_u24 {t1}, 0x5555, {t0}\nv_add_u32 {vIDX}, 0x8888, {t1}")
    a(f"v_lshlrev_b32 {t0}, 4, {t0}\nv_mov_b32 {t1}, 0x3f80\nv_lshlrev_b32 {t0}, {t0}, {t1}\nv_lshrrev_b32 {t1}, 1, {vLo3}")
    for q in range(4): a(f"v_cmp_eq_u32 vcc, {q}, {t1}\nv_cndmask_b32 {t2}, 0, {t0}, vcc\nv_accvgpr_write_b32 a{aSEL+q}, {t2}")
    for q in range(4): a(f"v_cmp_eq_u32 vcc, {q}, {W(7)}\nv_cndmask_b32 {t2}, 0, {t0}, vcc\nv_accvgpr_write_b32 a{aSEL2+q}, {t2}")
    a(f"v_lshlrev_b32 {t0}, 10, {vHi3}\nv_lshl_add_u32 {vDW}, {vLo3}, 4, {t0}")
    if swz: a(f"v_and_b32 {t0}, 16, {vL}\nv_lshlrev_b32 {t0}, 1, {t0}\nv_xor_b32 {vDW}, {vDW}, {t0}")
    a(f"s_cmp_lt_u32 {sW}, 4\ns_cbranch_scc1 L_early1")

    c("waves 4-7: gate/up DMA pieces p = 64(w&3) + l -> row p/6, 16-byte piece p%6")
    a(f"s_and_b32 {sT0}, {sW}, 3\ns_lshl_b32 {sT0}, {sT0}, 6\nv_add_u32 {t0}, {sT0}, {vL}\nv_mul_u32_u24 {t1}, 43691, {t0}\nv_lshrrev_b32 {t1}, 18, {t1}\nv_mul_u32_u24 {t2}, 6, {t1}\nv_sub_u32 {t0}, {t0}, {t2}")
    a(f"v_mul_u32_u24 {t1}, 2752, {t1}\nv_lshl_add_u32 {t1}, {t0}, 4, {t1}\ns_lshl_b32 {sT0}, {sNT}, 1")
    sel(vDMA, t3, t1, f"v_cmp_gt_u32 vcc, {sT0}, {t0}")
    a(f"s_lshl_b32 {sT0}, {sJ}, 3\ns_add_u32 {sT0}, {sT0}, {sHa}\nv_lshlrev_b32 {t0}, 6, {vN}\nv_lshl_add_u32 {t0}, {vGK}, 2, {t0}\nv_add_u32 {t0}, {sT0}, {t0}\nv_and_b32 {t1}, 0x2c, {vL}")
    sel(vSP, t3, t0, f"v_cmp_eq_u32 vcc, 0, {t1}")
    Lx = only(f"s_cmp_eq_u32 {sW}, 6", "w6")
    c("LDS constants: rows of 1.0 and 1/512 behind the x chunk, zero block, zero padding of h")
    a(f"v_mov_b32 {t0}, 0x3f803f80\nv_and_b32 {t1}, 31, {vL}\nv_lshlrev_b32 {t1}, 2, {t1}\nds_write_b32 {t1}, {t0} offset:{LXS+4*XSS}\nv_mov_b32 {t0}, 0x3b003b00\nds_write_b32 {t1}, {t0} offset:{LXS+5*XSS}")
    a(f"v_mov_b32 {t2}, 0\nv_and_b32 {t0}, 12, {t1}\nds_write_b32 {t0}, {t2} offset:{LZERO}")
    a(f"v_mul_u32_u24 {t0}, {XSS}, {vGK}\nv_lshl_add_u32 {t0}, {vLo3}, 2, {t0}\nds_write_b32 {t0}, {t2} offset:{LHS+96}")
    a.label(Lx)
    a(f"v_mov_b32 {W(8)}, 0\nv_mov_b32 {W(9)}, 0\nv_mov_b32 {W(10)}, 0x3f803f80")
    a(f"s_and_b32 {sT0}, {sW}, 3\ns_mul_i32 {sT0}, {sT0}, {XSS}\ns_add_u32 {sT0}, {sT0}, {LXS}\nv_lshl_add_u32 {t0}, {vLo3}, 4, {sT0}\nv_mov_b32 {t2}, {LDUM}")
    sel(W(11), t2, t0, f"v_cmp_eq_u32 vcc, {sJ}, {vHi3}")
    a(f"s_cmp_lt_u32 {sW}, 7\ns_cbranch_scc1 L_w0a\ns_add_u32 s22, s26, {sHa}\ns_addc_u32 s23, s27, 0\ns_waitcnt vmcnt(6) lgkmcnt(0)\ns_load_dwordx8 s[4:11], s[22:23], {H_MF}\ns_branch L_w0b")
    a.label("L_w0a")
    a("s_waitcnt vmcnt(4) lgkmcnt(0)")
    a.label("L_w0b")
    c("LayerNorm of input row w-4; chunk j goes to LDS raw (residual) and normalised")
    for k in range(4): a(f"v_dot2_f32_bf16 {W(8)}, {W(XR+k)}, {W(XR+k)}, {W(8)}\nv_dot2_f32_bf16 {W(9)}, {W(XR+k)}, {W(10)}, {W(9)}")
    a(f"ds_write_b128 {W(11)}, {WR(XR,4)} offset:{LXR-LXS}\ns_nop 1")
    for m in LO8 + ("row_ror:8",):
        for r in (W(8), W(9)): a(f"v_add_f32_dpp {r}, {r}, {r} {m} {DPP}")
    for r in (W(8), W(9)):
        a(f"v_mov_b32 {W(7)}, {r}\nv_permlane16_swap_b32 {r}, {W(7)}\nv_add_f32 {r}, {r}, {W(7)}")
        a(f"v_mov_b32 {W(7)}, {r}\nv_permlane32_swap_b32 {r}, {W(7)}\nv_add_f32 {r}, {r}, {W(7)}")
    a(f"v_mul_f32 {W(9)}, {f32(1/512)}, {W(9)}\nv_mul_f32 {W(8)}, {f32(1/512)}, {W(8)}")
    a(f"v_fma_f32 {W(8)}, -{W(9)}, {W(9)}, {W(8)}\nv_max_f32 {W(8)}, 0, {W(8)}\nv_add_f32 {W(8)}, {f32(1e-5)}, {W(8)}\nv_rsq_f32 {W(8)}, {W(8)}")
    for k in range(4):
        a(f"v_lshlrev_b32 {t0}, 16, {W(XR+k)}\nv_and_b32 {t1}, 0xffff0000, {W(XR+k)}\nv_sub_f32 {t0}, {t0}, {W(9)}\nv_sub_f32 {t1}, {t1}, {W(9)}")
        a(f"v_mul_f32 {t0}, {t0}, {W(8)}\nv_mul_f32 {t1}, {t1}, {W(8)}\nv_cvt_pk_bf16_f32 {W(16+k)}, {t0}, {t1}")
    a(f"ds_write_b128 {W(11)}, {WR(16,4)}")
    Lx = only(f"s_cmp_eq_u32 {sW}, 7", "w7m")
    c("wave 7: do the 8 WGs of the head group share an XCD?  then clear this WG's slices of the group area")
    Lm = lab("mf")
    a(f"s_lshl_b32 {sT0}, {sJ}, 8\ns_mul_i32 {sT1}, {sJ}, 112\ns_add_u32 {sT1}, {sT1}, {H_LSE-256}\nv_add_u32 {t0}, {sT0}, {vL16}\nv_add_u32 {t1}, {sT1}, {vL16}")
    sel(t0, t1, t0, f"v_cmp_gt_u32 vcc, 16, {vL}")
    sel(W(31), t3, t0, f"v_cmp_gt_u32 vcc, 23, {vL}")
    a(f"s_waitcnt lgkmcnt(0)\ns_xor_b32 {sT0}, s4, {sFlag}")
    for k in range(1, 8): a(f"s_xor_b32 {sT1}, s{4+k}, {sFlag}\ns_or_b32 {sT0}, {sT0}, {sT1}")
    a(f"s_and_b32 {sT1}, {sT0}, 0x0fffffff\ns_cbranch_scc0 {Lm}k\nv_lshlrev_b32 {t0}, 2, {vLo3}")
    a.label(Lm)
    a(f"buffer_load_dword {t1}, {t0}, {sWS}, {sHa} offen offset:{H_MF} sc1\n{BOUND}\ns_waitcnt vmcnt(0)")
    a(f"v_xor_b32 {t1}, {sFlag}, {t1}\nv_and_b32 {t2}, 0x0fffffff, {t1}\nv_cmp_ne_u32 vcc, 0, {t2}\ns_cbranch_vccnz {Lm}")
    a(f"v_cmp_ne_u32 vcc, 0, {t1}\ns_nop 1\ns_mov_b32 {sT0}, vcc_lo")
    a.label(Lm + "k")
    a(f"s_cmp_eq_u32 {sT0}, 0\ns_cselect_b32 {sMode}, 1, 0")
    lstore([f"buffer_store_dwordx4 {WR(24,4)}, {W(31)}, {sWS}, {sHa} offen"])
    a("s_waitcnt vmcnt(1)\ns_branch L_w1b")
    a.label(Lx)
    a("s_waitcnt vmcnt(0)")
    a.label("L_w1b")
    a(f"s_add_u32 {sT1}, {sMode}, 1")
    signal(0, sT1)
    Lx = only(f"s_cmp_eq_u32 {sW}, 4", "race")
    c("wave 4: which of two addresses 8 KB apart is on this XCD's memory die?  Scalar loads return in order: when the")
    c("second is already there as the first arrives, the first took the long way.  One vote per WG, speed only.")
    a(f"s_lshr_b32 {sT0}, s2, 6\ns_lshl_b32 {sT0}, {sT0}, 14\ns_and_b32 {sT1}, s2, 63\ns_lshl_b32 {sT1}, {sT1}, 7\ns_add_u32 {sT0}, {sT0}, {sT1}\ns_add_u32 {sT0}, {sT0}, {PRB}")
    a(f"s_and_b32 {sT2}, {sHL}, 1\ns_lshl_b32 {sT1}, {sT2}, 13\ns_add_u32 {sT0}, {sT0}, {sT1}\ns_xor_b32 {sT1}, {sT0}, 8192\ns_waitcnt lgkmcnt(0)")
    a(f"s_load_dword s4, s[26:27], {sT0}\ns_load_dword s5, s[26:27], {sT1}\ns_waitcnt lgkmcnt(1)")
    a(f"s_lshr_b32 {sT1}, {sXcc}, 2\ns_xor_b32 {sT2}, {sT2}, {sT1}\ns_and_b32 {sT2}, {sT2}, 1\ns_and_b32 {sT1}, {sEp}, 0x0fffffff\ns_getreg_b32 {sT0}, hwreg(HW_REG_IB_STS, 8, 4)")
    a(f"s_cmp_eq_u32 {sT0}, 0\ns_cselect_b32 {sT0}, 1, 0\ns_xor_b32 {sT0}, {sT0}, {sT2}\ns_lshl_b32 {sT0}, {sT0}, 28\ns_or_b32 {sT0}, {sT0}, {sT1}\nv_mov_b32 {W(30)}, {sT0}")
    a.label(Lx)
    await4(0, 20)
    a(f"v_readfirstlane_b32 {sMode}, {W(23)}\ns_sub_u32 {sMode}, {sMode}, 1")
    Lx = only(f"s_cmp_eq_u32 {sW}, 4", "gf")
    c("flag: this WG's Y0 lines are cleared (with the vote)")
    a(f"s_lshl_b32 {sT0}, {sJ}, 2\ns_add_u32 {sT0}, {sT0}, {sHa}\nbuffer_store_dword {W(30)}, {vL0}, {sWS}, {sT0} offen offset:{H_GF} sc1")
    a.label(Lx)
    stamp("barA")
    c("layer-1 q partials, tiles w and w-4 (row 4: column sums of the wq slab); low byte of every word = tag")
    a(f"ds_read_b128 {WR(0,4)}, {vXSR}\nds_read_b128 {WR(4,4)}, {vXSR} offset:64\nv_subrev_u32 {W(28)}, 128, {vTRQ}")
    for cc in range(2): trread(aWQ + 4 * cc, "a", vTRQ, LWQ + cc * 8192, 1024)
    for cc in range(2): trread(4 + 20 + 4 * cc, "v", W(28), LWQ + cc * 8192, 1024)
    a(f"s_movk_i32 {sT2}, 0xff\nv_mov_b32 {W(16)}, {sEp}\nv_subrev_u32 {W(29)}, 256, {W(39)}\ns_waitcnt lgkmcnt(0)")
    a(f"{MF} {WR(8,4)}, {AR(aWQ)}, {WR(0,4)}, 0\n{MF} {WR(12,4)}, {WR(20,4)}, {WR(0,4)}, 0")
    a(f"{MF} {WR(8,4)}, {AR(aWQ+4)}, {WR(4,4)}, {WR(8,4)}\n{MF} {WR(12,4)}, {WR(24,4)}, {WR(4,4)}, {WR(12,4)}")
    for k in range(8): a(f"v_bfi_b32 {W(8+k)}, {sT2}, {W(16)}, {W(8+k)}")
    Lx = only(f"s_cmp_eq_u32 {sW}, 7", "hack")
    c("wave 7's tiles also tell the group that the slice clears are done")
    a("s_waitcnt vmcnt(0)")
    a.label(Lx)
    lstore([f"buffer_store_dwordx4 {WR(8,4)}, {W(39)}, {sWS}, 0 offen", f"buffer_store_dwordx4 {WR(12,4)}, {W(29)}, {sWS}, 0 offen"])
    stamp("q0 pub")
    Lb = lab("hand")
    a(f"s_and_b32 {sT0}, {sW}, 3\ns_lshl_b32 {sT0}, {sT0}, 2\nv_mov_b32 {W(34)}, {sT0}")
    a.label(Lb)
    a(f"ds_read_b32 {W(35)}, {W(34)} offset:{LFLG+16}\n{BOUND}\ns_waitcnt lgkmcnt(0)\nv_cmp_eq_u32 vcc, 0, {W(35)}\ns_cbranch_vccnz {Lb}")
    stamp("barB")
    for k in range(npre): ldKV(k, k < npre - extra)
    stamp("L preC")
    a("s_branch L_toC0")

    a.label("L_early1")
    await4(0, 20)
    a(f"v_readfirstlane_b32 {sMode}, {W(23)}\ns_sub_u32 {sMode}, {sMode}, 1")
    for cc in range(2): trread(aWQ + 4 * cc, "a", vTRQ, LWQ + cc * 8192, 1024)
    vOWR, vMLR, vOP = W(40), W(41), W(42)
    Lx = only(f"s_cmp_eq_u32 {sW}, 0", "cmb")
    c("wave 0 merges the eight waves' attention partials: its LDS and publish addresses")
    a(f"s_sub_u32 {sT0}, {sLse}, {sHa}\ns_lshl_b32 {sT0}, {sT0}, 2\ns_add_u32 {sT0}, {sT0}, {sHa}")
    a(f"v_and_b32 {t0}, 3, {vL}\nv_lshrrev_b32 {t1}, 2, {vL}\nv_lshlrev_b32 {vOP}, 7, {t1}\nv_lshl_add_u32 {vOP}, {t0}, 2, {vOP}\nv_add_u32 {vOP}, {sT0}, {vOP}")
    a(f"v_mul_u32_u24 {t0}, 160, {t0}\nv_lshl_add_u32 {t0}, {t1}, 3, {t0}\nv_add_u32 {vOWR}, {LOW}, {t0}\nv_lshlrev_b32 {vMLR}, 3, {vLo3}")
    a.label(Lx)
    Lx = only(f"s_cmp_eq_u32 {sW}, 1", "gw")
    c("wave 1 fetches the lines of the own gate/up slot (it clears them below)")
    a(f"v_lshlrev_b32 {W(21)}, 7, {vL}\nv_lshl_add_u32 {W(21)}, {vHi3}, 24, {W(21)}\nbuffer_load_dword {W(42)}, {W(21)}, {sWS}, {sAr} offen offset:{A_G} sc1")
    a.label(Lx)
    c("layer-1 q gather (tagged words); wave 0 also reads the flags of the 32 WGs whose Y0 lines this WG will read")
    a(f"s_lshl_b32 {sOff}, {sB}, 9\ns_lshl_b32 {sOff2}, {sJ}, 2\ns_add_u32 {sOff2}, {sOff2}, {HA}\nv_lshrrev_b32 {W(17)}, 1, {vL}\nv_mul_u32_u24 {W(17)}, {HST}, {W(17)}")
    La = lab("arr")
    a.label(La)
    a(f"buffer_load_dwordx4 {WR(0,4)}, {vQG}, {sWS}, {sOff} offen sc1")
    a(f"v_mov_b32 {W(16)}, {sEp}\ns_cmp_lg_u32 {sW}, 0\ns_cbranch_scc1 {La}c")
    a(f"buffer_load_dword {W(16)}, {W(17)}, {sWS}, {sOff2} offen offset:{H_GF} sc1")
    a.label(La + "c")
    a(f"{BOUND}\ns_waitcnt vmcnt(0)\nv_xor_b32 {W(9)}, {sEp}, {W(0)}")
    for k in range(1, 4): a(f"v_xor_b32 {W(11)}, {sEp}, {W(k)}\nv_or_b32 {W(9)}, {W(9)}, {W(11)}")
    a(f"v_xor_b32 {W(10)}, {sEp}, {W(16)}\nv_and_b32 {W(9)}, 0xff, {W(9)}\nv_and_b32 {W(10)}, 0x0fffffff, {W(10)}\nv_or_b32 {W(9)}, {W(9)}, {W(10)}")
    a(f"v_cmp_ne_u32 vcc, 0, {W(9)}\ns_cbranch_vccnz {La}")
    stamp("q0 got")
    for k in range(4): a(f"v_and_b32 {W(k)}, 0xffffff00, {W(k)}")
    red8(W(0), W(1), W(2), W(3))
    a(f"v_mul_f32 {W(0)}, {f32(C2)}, {W(0)}\nv_cvt_pk_bf16_f32 {W(0)}, {W(0)}, {W(0)}\nds_write_b16 {vQSW}, {W(0)}")
    a(f"v_bfe_u32 {W(16)}, {W(16)}, 28, 1\nv_cmp_ne_u32 vcc, 0, {W(16)}\ns_nop 1\ns_bcnt1_i32_b64 {sT1}, vcc\ns_cmp_gt_u32 {sT1}, 32\ns_cselect_b32 {sT1}, 8193, 1")
    signal(2, sT1)

    SD, OA = 16, 24
    def attn_zero():
        for k in range(24): a(f"v_mov_b32 {W(SD+k)}, 0")

    def attention(L):
        c(f"================ layer {L+1}: attention over this wave's 64 keys ================")
        for cc, r in enumerate((vQR0, vQR1, vQR2, vQR3)): a(f"ds_read_b128 {WR(4*cc,4)}, {r}")
        if L == 0:
            a(f"ds_read_b32 {vRES}, {vXSW} offset:{LXR-LXS}\ns_waitcnt vmcnt({npre-16}) lgkmcnt(0)")
            a(f"s_cmp_ge_u32 {sW}, 4\ns_cbranch_scc1 L_noclr")
            Lx = only(f"s_cmp_eq_u32 {sW}, 1", "c1")
            ones4(16)
            lstore([f"buffer_store_dwordx4 {WR(16,4)}, {vL16}, {sWS}, {sAr} offen offset:{A_G}"])
            a.label(Lx)
            c("the stream has pushed early lines out of L2: fetch 3 group lines (wave 2) and 2 code lines (wave 3) again")
            a(f"v_min_u32 {W(21)}, 2, {vL}\nv_lshlrev_b32 {W(21)}, 7, {W(21)}")
            Lx = only(f"s_cmp_eq_u32 {sW}, 2", "c2")
            a(f"s_mul_i32 {sT0}, {sJ}, 384\ns_add_u32 {sT0}, {sT0}, {sHa}\nbuffer_load_dword {W(42)}, {W(21)}, {sWS}, {sT0} offen sc1")
            a.label(Lx)
            Lx = only(f"s_cmp_eq_u32 {sW}, 3", "c3")
            a("s_getpc_b64 s[6:7]")
            a.label("L_pcref2")
            a(f"s_lshl_b32 {sT0}, {sI}, 8\nv_min_u32 {W(21)}, 128, {W(21)}\nv_add_u32 {W(21)}, {sT0}, {W(21)}\nv_min_u32 {W(21)}, L_end-L_pcref2, {W(21)}\nglobal_load_dword {W(42)}, {W(21)}, s[6:7]")
            a.label(Lx)
            a.label("L_noclr")
            attn_zero()
        else:
            Lx = only(f"s_cmp_eq_u32 {sW}, 4", "gclr")
            c("the group has read the layer-1 gate/up partials: clear the slot again")
            lstore([f"buffer_store_dwordx4 {WR(40,4)}, {vL16}, {sWS}, {sAr} offen offset:{A_G}"])
            a.label(Lx)
        s0, s1, m, l = W(18), W(22), W(16), W(17)
        for g_ in range(2):
            for t in range(4):
                if L == 1 and g_ == 0: a(f"s_waitcnt lgkmcnt({3-t})")
                a(f"{SMF} {WR(SD+4*g_,4)}, {WR(4*t,4)}, a[{32*g_+8*t}:{32*g_+8*t+7}], {vIDX}")
        c("scores (log2 units) end up in the odd lanes; max over the wave, exp, p packed as the sparse operand")
        a(f"v_add_f32 {W(16)}, {W(16)}, {W(17)}\nv_add_f32 {s0}, {W(18)}, {W(19)}")
        a(f"v_add_f32 {W(20)}, {W(20)}, {W(21)}\nv_add_f32 {s1}, {W(22)}, {W(23)}")
        a(f"v_add_f32_dpp {s0}, {W(16)}, {s0} quad_perm:[0,0,2,2] {DPP}\nv_add_f32_dpp {s1}, {W(20)}, {s1} quad_perm:[0,0,2,2] {DPP}")
        RED = [f"quad_perm:[2,3,0,1] {DPP}", f"row_ror:4 {DPP}", f"row_ror:8 {DPP}", "row_bcast:15 row_mask:0xa bank_mask:0xf", "row_bcast:31 row_mask:0xc bank_mask:0xf"]
        a(f"v_max_f32 {m}, {s0}, {s1}")
        for mm in RED: a(f"v_max_f32_dpp {m}, {m}, {m} {mm}")
        a(f"v_readlane_b32 {sT3}, {m}, 63")
        a(f"v_subrev_f32 {s0}, {sT3}, {s0}\nv_subrev_f32 {s1}, {sT3}, {s1}\nv_exp_f32 {s0}, {s0}\nv_exp_f32 {s1}, {s1}")
        a(f"v_cvt_pk_bf16_f32 {W(20)}, {s0}, {s1}\nv_add_f32 {l}, {s0}, {s1}")
        def pb(g_, i): return f"v_mov_b32_dpp {W(4*g_+i)}, {W(20)} row_newbcast:{8*g_+2*i+1} {DPP}"
        def pv(g_, u): return f"{SMF} {WR(OA+4*u,4)}, {WR(4*g_,4)}, v[{64+32*g_+8*u}:{71+32*g_+8*u}], {vIDX}"
        for i in range(4): a(pb(0, i))
        a(pb(1, 0)); a(pb(1, 1))
        lr = [f"v_add_f32_dpp {l}, {l}, {l} {mm}" for mm in RED]
        wr_ml = f"ds_write_b64 {vMLW}, {WR(16,2)}"
        wr01 = f"ds_write2_b64 {vOWW}, {WR(OA,2)}, {WR(OA+4,2)} offset0:0 offset1:20"
        wr2 = f"ds_write_b64 {vOWW}, {WR(OA+8,2)} offset:320"
        wr3 = f"ds_write_b64 {vOWW}, {WR(OA+12,2)} offset:480"
        if L == 1:
            for x in [pv(0, 0), pb(1, 2), pb(1, 3), pv(0, 1), lr[0], pv(1, 0), lr[1], pv(1, 1), lr[2], pv(0, 2), lr[3], pv(1, 2), lr[4],
                      wr_ml, pv(0, 3), wr01, pv(1, 3)]: a(x)
        else:
            fill = [[pb(1, 2), pb(1, 3)], [lr[0]], [lr[1]], lr[2:] + [wr_ml], [], [], [], []]
            nxt = npre
            for g_ in range(2):
                for t in (2 * g_, 2 * g_ + 1):
                    last = min(31, max(20 + 4 * t + tcap, nxt - 1))
                    if last >= nxt:
                        Lx = only(f"s_cmp_ge_u32 {sW}, 4", "tail")
                        for k in range(nxt, last + 1):
                            a(f"s_waitcnt vmcnt({tcap})"); ldKV(k, False)
                        if last == 31: signal(3, "1", 40, 42)
                        a.label(Lx)
                        nxt = last + 1
                    c(f"V tile {t} has landed: 4x4 dword transpose in place (kept for layer 2)")
                    a(f"s_waitcnt vmcnt({last - (19 + 4 * t)})")
                    if t == 3: stamp("L vdone")
                    sw = [f"v_swap_b32 v{vVld(t,cc)+u}, v{vVld(t,u)+cc}" for cc in range(4) for u in range(cc + 1, 4)]
                    if t == 3: fill[4].append(sw.pop())
                    for x in sw: a(x)
                for u in range(4):
                    a(pv(g_, u))
                    for x in fill[4 * g_ + u]: a(x)
                if g_ == 0:
                    assert nxt == 32
                    Lx = only(f"s_cmp_ge_u32 {sW}, 4", "d0y")
                    a("s_waitcnt lgkmcnt(0)\ns_barrier")
                    a.label(Lx)
            a(f"{wr01}\n{wr2}\n{wr3}")
            Lx = only(f"s_cmp_lt_u32 {sW}, 4", "wo")
            c("once every V load of this WG is queued, wo and w_down go behind them")
            a("s_waitcnt vmcnt(0)")
            a(f"s_lshl_b32 {sT3}, {sH}, 17\ns_lshl_b32 {sT1}, {sW}, 15\ns_add_u32 {sT3}, {sT3}, {sT1}\ns_lshl_b32 {sT1}, {sJ}, 7\ns_add_u32 {sT3}, {sT3}, {sT1}\ns_lshl_b32 {sT2}, {sW}, 12")
            if swz: a(f"v_xor_b32 {W(8)}, 64, {vDW}\ns_and_b32 {sT1}, {sW}, 1\ns_lshl_b32 {sT1}, {sT1}, 6\nv_xor_b32 {W(9)}, {sT1}, {vDW}")
            await4(3, 0)
            for k in range(4):
                a(f"s_add_u32 m0, {sT2}, {LWO+k*1024}")
                if k: a(f"s_add_u32 {sT3}, {sT3}, 8192")
                a(f"buffer_load_dwordx4 {W(8) if swz and k & 1 else vDW}, {sWo}, {sT3} offen nt lds")
            a(f"s_lshl_b32 {sT2}, {sW}, 10\ns_add_u32 m0, {sT2}, {LWD}\ns_add_u32 {sT1}, {sWDo}, 32768")
            a(f"buffer_load_dwordx4 {W(9) if swz else vDW}, {sWd}, {sWDo} offen nt lds\ns_add_u32 m0, {sT2}, {LWD+4096}")
            a(f"buffer_load_dwordx4 {W(9) if swz else vDW}, {sWd}, {sT1} offen nt lds")
            a.label(Lx)
        Lc, Ls = lab("comb"), lab("ocomb")
        c("two barriers: after the first every wave's (max, sum) and the partials of waves 0-3 are in LDS, after the second all")
        a(f"s_cmp_lt_u32 {sW}, 4\ns_cbranch_scc1 {Lc}")
        if L == 1: a(f"{wr2}\ns_waitcnt lgkmcnt(2)\ns_barrier\n{wr3}")
        a("s_waitcnt vmcnt(0) lgkmcnt(0)")
        a.label(Lc + "d")
        a("s_barrier")
        stamp(f"barD{L}")
        a(f"s_branch {Ls}")
        a.label(Lc)
        vOWR2 = W(29)
        if L == 1: a(f"{wr2}\ns_nop 4\n{wr3}")
        a(f"s_cmp_lg_u32 {sW}, 0\ns_waitcnt lgkmcnt(0)\nv_add_u32 {vOWR2}, {4*608}, {vOWR}\ns_barrier\ns_cbranch_scc1 {Lc}d")
        c("wave 0: o = sum_w 2^(m_w - M) o_w / sum_w 2^(m_w - M) l_w, published as bf16 with lse = M + log2(L)")
        def rd(k): a(f"ds_read2_b64 {WR(4*k,4)}, {vOWR if k < 2 else vOWR2} offset0:{152*(k&1)} offset1:{152*(k&1)+76}")
        a(f"ds_read_b64 {WR(16,2)}, {vMLR} offset:{LML}")
        rd(0); rd(1)
        if L == 1: a("s_barrier"); rd(2); rd(3)
        a(f"s_waitcnt lgkmcnt({2+2*L})")
        M, F, FL = W(18), W(19), W(20)
        a(f"v_max_f32_dpp {M}, {W(16)}, {W(16)} {LO8[0]} {DPP}")
        for mm in LO8[1:]: a(f"v_max_f32_dpp {M}, {M}, {M} {mm} {DPP}")
        a(f"v_sub_f32 {F}, {W(16)}, {M}\nv_exp_f32 {F}, {F}\nv_mul_f32 {FL}, {F}, {W(17)}\ns_waitcnt lgkmcnt({2*L})")
        ex = {k: f"v_add_f32_dpp {FL}, {FL}, {FL} {LO8[k]} {DPP}" for k in range(3)}
        ex.update({3: f"v_rcp_f32 {W(21)}, {FL}", 4: f"v_log_f32 {FL}, {FL}", 5: f"v_add_f32 {M}, {M}, {FL}"})
        for w in range(7):
            if w == 4:
                if L == 0:
                    a(ex.pop(4)); a(ex.pop(5)); a("s_barrier"); rd(2); rd(3)
                a("s_waitcnt lgkmcnt(1)")
            if w == 6: a("s_waitcnt lgkmcnt(0)")
            op = "v_mul_f32_dpp" if w == 0 else "v_fmac_f32_dpp"
            a(f"{op} {W(22)}, {F}, {W(2*w)} row_newbcast:{w} {DPP}\n{op} {W(23)}, {F}, {W(2*w+1)} row_newbcast:{w} {DPP}")
            if w in ex: a(ex[w])
        lstore([f"buffer_store_dword {W(22)}, {vOP}, {sWS}, 0 offen", f"buffer_store_dword {M}, {vL0}, {sWS}, {sLse} offen offset:{H_LSE}"],
               f"v_fmac_f32_dpp {W(22)}, {F}, {W(14)} row_newbcast:7 {DPP}\nv_fmac_f32_dpp {W(23)}, {F}, {W(15)} row_newbcast:7 {DPP}\n"
               f"v_mul_f32 {W(22)}, {W(22)}, {W(21)}\nv_mul_f32 {W(23)}, {W(23)}, {W(21)}\nv_cvt_pk_bf16_f32 {W(22)}, {W(22)}, {W(23)}")
        stamp(f"opub{L}")
        a.label(Ls)

    def x_publish(d, vaddr):
        a(f"v_cvt_pk_bf16_f32 {W(d)}, {W(d)}, {W(d+1)}\nv_cvt_pk_bf16_f32 {W(d+1)}, {W(d+2)}, {W(d+3)}")
        a(f"buffer_store_dwordx2 {WR(d,2)}, {vaddr}, {sWS}, {sOff2} offen sc1")

    def wo_stage(L):
        c(f"================ layer {L+1}: o of the head group x wo[head rows, chunk j] (waves 0-3, 16 columns each) ================")
        if L == 0:
            a(f"v_cmp_gt_u32 vcc, 8, {vN}\nv_cndmask_b32 {vRES}, 0, {vRES}, vcc\nv_and_b32 {vRES1}, 0xffff0000, {vRES}\nv_lshlrev_b32 {vRES}, 16, {vRES}")
            Lx = only(f"s_cmp_eq_u32 {sW}, 3", "z0c")
            c("clear of the Z0 lines: acknowledged by this wave's o poll, before its y line goes out")
            ones4(12); clearX(1, 12)
            if not oearly: a("s_waitcnt vmcnt(1)\ns_branch L_d2")
            a.label(Lx)
        if L == 1 or not oearly:
            c("first look only after the own stores are acknowledged: earlier reads just get in their way")
            a("s_waitcnt vmcnt(0)")
        if L == 0: a.label("L_d2")
        a("s_barrier")
        Ls = only(f"s_cmp_lt_u32 {sW}, 4", "wos")
        def first():
            if oearly:
                c("the first round was queued behind the weights; they are in LDS once it returns")
                a("s_waitcnt vmcnt(3)\ns_barrier")
            for cc in range(4): trread(aWO + 4 * cc, "a", vTR, LWO + cc * 4096, 512)
            if not oearly:
                for cc in range(2): trread(aWD + 4 * cc, "a", vTR, LWD + cc * 4096, 512)
        if L == 0 and not oearly: first()
        a(f"s_mov_b32 {sOff2}, {XB[2*L]}")
        poll(f"buffer_load_dword {W(8)}, {vLG}, {sWS}, 0 offen offset:{H_LSE} sc1\n"
             f"buffer_load_dwordx4 {WR(0,4)}, {vOG}, {sWS}, 0 offen sc1\n"
             f"buffer_load_dwordx4 {WR(4,4)}, {vOG}, {sWS}, 0 offen offset:1024 sc1", [W(k) for k in range(9)],
             f"s_waitcnt vmcnt(1) lgkmcnt(0)\n{MF} {WR(16,4)}, {AR(aWO+4)}, {WR(0,4)}, 0\nv_sub_f32_dpp {W(9)}, {W(8)}, {W(8)} quad_perm:[1,0,3,2] {DPP}\n"
             f"{MF} {WR(12,4)}, {AR(aWO)}, {WR(0,4)}, 0\nv_exp_f32 {W(9)}, {W(9)}\ns_waitcnt vmcnt(0)\n"
             f"{MF} {WR(16,4)}, {AR(aWO+12)}, {WR(4,4)}, {WR(16,4)}\nv_add_f32 {W(9)}, 1.0, {W(9)}\n{MF} {WR(12,4)}, {AR(aWO+8)}, {WR(4,4)}, {WR(12,4)}\nv_rcp_f32 {W(9)}, {W(9)}",
             first if L == 0 and oearly else None)
        stamp(f"ogot{L}")
        c("the two key halves of a batch are merged with weight 1 / (1 + 2^(lse_other - lse_own))")
        for r in range(4): a(f"v_add_f32_dpp {W(12+r)}, {W(16+r)}, {W(12+r)} row_ror:8 {DPP}")
        for r in range(4): a(f"v_mul_f32 {W(12+r)}, {W(12+r)}, {W(9)}")
        for r in range(4): a(f"v_add_f32_dpp {W(12+r)}, {W(12+r)}, {W(12+r)} quad_perm:[1,0,3,2] {DPP}")
        x_publish(12, vYP)
        stamp(f"ypub{L}")
        if L == 1:
            if xd[2] < 0: a("s_waitcnt vmcnt(0)")
            a.label(Ls)
        else:
            Lg = lab("gub")
            a("s_barrier")
            a(f"buffer_load_dwordx4 {WR(20,4)}, {vQG}, {sWS}, 0 offen offset:2048 sc1")
            if oearly:
                for cc in range(2): trread(aWD + 4 * cc, "a", vTR, LWD + cc * 4096, 512)
            a(f"s_branch {Lg}")
            a.label(Ls)
            if oearly: a("s_barrier")
            a(f"s_and_b32 {sT2}, {sW}, 3\ns_lshl_b32 {sT2}, {sT2}, 10\ns_add_u32 m0, {sT2}, {LGU}\ns_add_u32 {sT1}, {sGUo}, {32*2752}")
            ones4(8)
            a(f"s_cmp_eq_u32 {sW}, 7\ns_barrier\ns_cbranch_scc1 {Lg}c")
            c("behind the y stores: gate/up weights (waves 4-6), clears of the q slot and the Y1 lines (wave 7)")
            a(f"buffer_load_dwordx4 {vDMA}, {sWg}, {sGUo} offen lds\ns_add_u32 m0, {sT2}, {LGU+6144}")
            a(f"buffer_load_dwordx4 {vDMA}, {sWu}, {sGUo} offen lds\ns_add_u32 m0, {sT2}, {LGU+3072}")
            a(f"buffer_load_dwordx4 {vDMA}, {sWg}, {sT1} offen lds\ns_add_u32 m0, {sT2}, {LGU+9216}")
            a(f"buffer_load_dwordx4 {vDMA}, {sWu}, {sT1} offen lds\ns_waitcnt vmcnt({guw})\ns_branch {Lg}")
            a.label(Lg + "c")
            lstore([f"buffer_store_dwordx4 {WR(8,4)}, {vL16}, {sWS}, {sAr} offen offset:{A_Q}", f"buffer_store_dwordx4 {WR(8,4)}, {vL16}, {sWS}, {sAr} offen offset:{A_Q+1024}"])
            clearX(2, 8)
            a.label(Lg)
        a("s_barrier")
        stamp(f"yack{L}")

    def x_gather(k):
        d = 24 if k == 0 else 40
        a(f"s_add_u32 {sOff}, {sNear}, {XB[k]}")
        if xd[k] > 0:
            c("spin-wait back-off: a read that reaches memory before the other XCDs' writes leaves a copy in this L2,")
            c("which those writes must invalidate before anybody sees them")
            a(f"s_sleep {xd[k]}")
        L = lab("xp")
        a.label(L)
        for q in range(4): a(f"buffer_load_dwordx4 {WR(4*q,4)}, {vXG}, {sWS}, {sOff} offen offset:{1024*q} sc1")
        a(BOUND)
        for q in range(4):
            a(f"s_waitcnt vmcnt({3-q})\n{MF} {WR(d,4)}, {AR(aSEL2)}, {WR(4*q,4)}, {RESQ if q == 0 else WR(d,4)}")
            if q == 0: a(f"v_max3_u32 {W(0)}, {W(0)}, {W(1)}, {W(2)}\nv_max_u32 {W(0)}, {W(0)}, {W(3)}")
            else: a(f"v_max3_u32 {W(0)}, {W(0)}, {W(4*q)}, {W(4*q+1)}\nv_max3_u32 {W(0)}, {W(0)}, {W(4*q+2)}, {W(4*q+3)}")
        a(f"v_cmp_eq_u32 vcc, -1, {W(0)}\ns_cbranch_vccnz {L}")
        for r in (W(d), W(d + 1)): a(f"v_add_f32_dpp {r}, {r}, {r} row_ror:8 {DPP}")
        a(f"v_cvt_pk_bf16_f32 {W(0)}, {W(d)}, {W(d+1)}")

    def x_stage(k, name, idle):
        c("waves 4-7: residual + the 32 partials of chunk j (near copy), 16 columns each -> new x chunk in LDS")
        Lx, Ly = lab("xi"), lab("xs")
        a(f"s_cmp_lt_u32 {sW}, 4\ns_cbranch_scc1 {Lx}")
        x_gather(k)
        stamp(name)
        a(f"ds_write_b32 {vXSW}, {W(0)}\nv_lshlrev_b32 {W(2)}, 16, {W(0)}\nv_and_b32 {W(3)}, 0xffff0000, {W(0)}")
        a(f"v_mov_b32_dpp {vRES}, {W(2)} quad_perm:[0,1,2,3] row_mask:0xf bank_mask:0x3\nv_mov_b32_dpp {vRES1}, {W(3)} quad_perm:[0,1,2,3] row_mask:0xf bank_mask:0x3")
        a(f"s_branch {Ly}")
        a.label(Lx)
        idle()
        a.label(Ly)
        a("s_waitcnt lgkmcnt(0)\ns_barrier")
        stamp(f"xs{k}")
        a(f"ds_read_b128 {WR(0,4)}, {vXSR}\nds_read_b128 {WR(4,4)}, {vXSR} offset:64")

    GSEL = f"v_cndmask_b32 {W(12)}, {W(12)}, {W(13)}, {sM1}\nv_cndmask_b32 {W(14)}, {W(14)}, {W(15)}, {sM3}\nv_cndmask_b32 {W(12)}, {W(12)}, {W(14)}, {sM2}"

    def ffn(L):
        c(f"================ layer {L+1}: FFN ================")
        if L == 0:
            a(f"v_lshrrev_b32 {W(16)}, 2, {vN}\nv_lshl_add_u32 {W(16)}, {vGK}, 3, {W(16)}\nv_mul_u32_u24 {W(16)}, 96, {W(16)}\nv_and_b32 {W(17)}, 24, {vTR}")
            a(f"s_lshr_b32 {sT0}, {sW}, 1\ns_lshl_b32 {sT0}, {sT0}, 5\ns_and_b32 {sT1}, {sW}, 1\ns_mul_i32 {sT1}, {sT1}, 6144\ns_add_u32 {sT0}, {sT0}, {sT1}\nv_add3_u32 {W(16)}, {W(16)}, {W(17)}, {sT0}")
            if guc0: trread(aGU, "a", W(16), LGU, 384)
        def idle():
            for q in range(4): a(f"v_accvgpr_read_b32 {W(24+q)}, a{aSEL+q}\nv_accvgpr_read_b32 {W(28+q)}, a{aSEL+q}")
            a(f"v_mov_b32 {W(33)}, 0\nv_mov_b32 {W(34)}, {f32(1e-5)}\nv_mov_b32 {W(35)}, {f32(K1)}\ns_lshl_b32 {sOff}, {sW}, 7\ns_mov_b32 {sOff2}, {XB[2*L+1]}")
            for q in range(8): a(f"v_mov_b32_dpp {W(24+q)}, {W(33)} quad_perm:[0,1,2,3] row_mask:0xf bank_mask:{'0xc' if q < 4 else '0x3'}")
            if L == 0:
                c("column sums of wq for the layer-2 LayerNorm")
                a("s_waitcnt vmcnt(0)")
                for k in range(4): a(f"v_and_b32 {W(20+k)}, 0xffffff00, {W(20+k)}")
                red8(W(20), W(21), W(22), W(23))
                a(f"v_mov_b32 {vCSQ}, {W(20)}")
        x_stage(2 * L, f"ygot{L}", idle)
        L6, Ld = lab("gu6"), lab("gud")
        c("waves 0-5: gate/up partials of one tile each (row 4: column sums); wave 7: chunk sum and sum of squares")
        a(f"s_cmp_ge_u32 {sW}, 6\ns_cbranch_scc1 {L6}")
        if L == 0:
            for cc in range(int(guc0), 2): trread(aGU + 4 * cc, "a", W(16), LGU + cc * 3072, 384)
        a(f"s_waitcnt lgkmcnt({1 if L else 3 if guc0 else 2})\n{MF} {WR(8,4)}, {AR(aGU)}, {WR(0,4)}, 0\ns_waitcnt lgkmcnt(0)\n{MF} {WR(8,4)}, {AR(aGU+4)}, {WR(4,4)}, {WR(8,4)}")
        lstore([f"buffer_store_dwordx2 {WR(8,2)}, {vGP}, {sWS}, 0 offen"],
               f"v_cvt_pk_bf16_f32 {W(8)}, {W(8)}, {W(9)}\nv_cvt_pk_bf16_f32 {W(9)}, {W(10)}, {W(11)}")
        stamp(f"gupub{L}")
        c("waves 0-2: sum the group's partials of tile w, LayerNorm scale, h = gelu(g) * u")
        a(f"s_cmp_ge_u32 {sW}, 3\ns_cbranch_scc1 {Ld}\ns_waitcnt vmcnt(0)")
        s_, mu, cg, cu, ep = W(32), W(33), vCG, vCU, W(34)
        ld = (f"buffer_load_dwordx2 {WR(12,2)}, {vGS}, {sWS}, 0 offen offset:{H_ST['G%d'%L]} sc1\n"
              f"buffer_load_dwordx4 {WR(4,4)}, {vQG}, {sWS}, {sOff} offen offset:{A_G} sc1\n"
              f"buffer_load_dwordx4 {WR(8,4)}, {vQG}, {sWS}, {sOff} offen offset:{A_G+128} sc1")
        if L == 0: ld += f"\nbuffer_load_dwordx4 {WR(16,4)}, {vGC}, {sWS}, 0 offen offset:{A_G+GCS} sc1"
        n0 = 1 - L
        sp = (f"s_waitcnt vmcnt({n0+2})\nv_add_f32_dpp {s_}, {W(12)}, {W(12)} {LO8[0]} {DPP}\nv_add_f32_dpp {mu}, {W(13)}, {W(13)} {LO8[0]} {DPP}\n"
              f"s_waitcnt vmcnt({n0+1})\n{MF} {WR(0,4)}, {WR(4,4)}, {WR(24,4)}, 0\n"
              f"v_add_f32_dpp {s_}, {s_}, {s_} {LO8[1]} {DPP}\nv_add_f32_dpp {mu}, {mu}, {mu} {LO8[1]} {DPP}\n"
              f"s_waitcnt vmcnt({n0})\n{MF} {WR(0,4)}, {WR(8,4)}, {WR(28,4)}, {WR(0,4)}")
        if L == 0: sp += f"\ns_waitcnt vmcnt(0)\n{MF} {WR(20,4)}, {WR(16,4)}, {AR(aSEL)}, 0"
        poll(ld, [W(k) for k in range(4, 14)] + ([W(k) for k in (16, 17, 18, 19)] if L == 0 else []), sp)
        stamp(f"gugot{L}")
        a(f"v_add_f32_dpp {s_}, {s_}, {s_} {LO8[2]} {DPP}\nv_add_f32_dpp {mu}, {mu}, {mu} {LO8[2]} {DPP}")
        if L == 0: a(f"v_mov_b32_dpp {W(20)}, {W(22)} quad_perm:[0,1,2,3] row_mask:0xf bank_mask:0xc\nv_mov_b32_dpp {W(21)}, {W(22)} quad_perm:[0,1,2,3] row_mask:0xf bank_mask:0xc")
        a(f"v_permlane32_swap_b32 {W(0)}, {W(1)}\nv_permlane32_swap_b32 {W(2)}, {W(3)}")
        if L == 0: a(f"v_permlane32_swap_b32 {W(20)}, {W(21)}\nv_add_f32 {cg}, {W(20)}, {W(21)}\nv_add_f32 {cu}, {W(20)}, {W(21)}")
        a(f"v_add_f32 {W(0)}, {W(0)}, {W(1)}\nv_add_f32 {W(4)}, {W(2)}, {W(3)}")
        a(f"v_fmamk_f32 {s_}, {s_}, {f32(1/512)}, {ep}\nv_fma_f32 {s_}, -{mu}, {mu}, {s_}")
        a(f"v_permlane16_swap_b32 {W(0)}, {W(4)}\nv_max_f32 {s_}, {s_}, {ep}\nv_rsq_f32 {s_}, {s_}")
        if L == 0: a(f"v_permlane16_swap_b32 {cg}, {cu}")
        g, u = W(0), W(4)
        c("gelu(g) = 0.5 g (1 + tanh z) = g / (1 + exp(-2z)), z = sqrt(2/pi) (g + 0.044715 g^3)")
        a(f"v_fma_f32 {g}, -{mu}, {cg}, {g}\nv_mul_f32 {g}, {g}, {s_}\nv_mul_f32 {W(1)}, {g}, {g}")
        a(f"v_fmac_f32 {W(35)}, {f32(K1*0.044715)}, {W(1)}\nv_mul_f32 {W(2)}, {W(35)}, {g}\nv_exp_f32 {W(2)}, {W(2)}\nv_fma_f32 {u}, -{mu}, {cu}, {u}")
        a(f"v_add_f32 {W(2)}, 1.0, {W(2)}\nv_rcp_f32 {W(2)}, {W(2)}\nv_mul_f32 {u}, {u}, {s_}\nv_mul_f32 {g}, {g}, {W(2)}\nv_mul_f32 {u}, {u}, {g}")
        a(f"v_cvt_pk_bf16_f32 {u}, {u}, {u}\nds_write_b16 {vHW}, {u}\ns_branch {Ld}")
        a.label(L6)
        a(f"s_cmp_lg_u32 {sW}, 7\ns_cbranch_scc1 {Ld}")
        a(f"s_waitcnt lgkmcnt(1)\n{MF} {WR(12,4)}, {WR(0,4)}, {WR(0,4)}, 0\ns_waitcnt lgkmcnt(0)\n{MF} {WR(12,4)}, {WR(4,4)}, {WR(4,4)}, {WR(12,4)}")
        lstore([f"buffer_store_dword {W(12)}, {vSP}, {sWS}, 0 offen offset:{H_ST['G%d'%L]}"], GSEL)
        a.label(Ld)
        a("s_waitcnt lgkmcnt(0)\ns_barrier")
        stamp(f"hbar{L}")
        c("waves 0-3: h x w_down[48 rows, chunk j]")
        Lz = only(f"s_cmp_lt_u32 {sW}, 4", "dn")
        a(f"ds_read_b128 {WR(0,4)}, {vHR}\nds_read_b128 {WR(4,4)}, {vHR} offset:64")
        a(f"s_waitcnt lgkmcnt(1)\n{MF} {WR(8,4)}, {AR(aWD)}, {WR(0,4)}, 0\ns_waitcnt lgkmcnt(0)\n{MF} {WR(8,4)}, {AR(aWD+4)}, {WR(4,4)}, {WR(8,4)}")
        x_publish(8, vZP)
        stamp(f"zpub{L}")
        if xd[2 * L + 1] < 0: a("s_waitcnt vmcnt(0)")
        a.label(Lz)
        if L == 0: attn_zero()
        else: a(f"s_cmp_lg_u32 {sFin}, 0\ns_cbranch_scc1 L_fin0")
        a("s_barrier")
        stamp(f"zack{L}")

    def q_stage():
        c("================ layer 2: q ================")
        def idle():
            c("meanwhile: wave 1 clears this WG's slice of the o / lse slots again, wave 2 the Z1 lines")
            ones4(8)
            Lx = only(f"s_cmp_eq_u32 {sW}, 1", "oclr")
            a(f"s_lshl_b32 {sT0}, {sJ}, 8\ns_add_u32 {sT0}, {sT0}, {sHa}\nv_lshl_add_u32 {W(12)}, {vGK}, 28, {vL16}")
            lstore([f"buffer_store_dwordx4 {WR(8,4)}, {W(12)}, {sWS}, {sT0} offen", f"buffer_store_dword {W(8)}, {vL0}, {sWS}, {sLse} offen offset:{H_LSE}"])
            a.label(Lx)
            Lx = only(f"s_cmp_eq_u32 {sW}, 2", "zclr")
            clearX(3, 8)
            a.label(Lx)
            a("s_waitcnt vmcnt(0)")
        x_stage(1, "zgot0", idle)
        Ls, Le = lab("q7"), lab("qe")
        a(f"s_cmp_eq_u32 {sW}, 7\ns_cbranch_scc1 {Ls}")
        a(f"s_waitcnt lgkmcnt(1)\n{MF} {WR(8,4)}, {AR(aWQ)}, {WR(0,4)}, 0\ns_waitcnt lgkmcnt(0)\n{MF} {WR(8,4)}, {AR(aWQ+4)}, {WR(4,4)}, {WR(8,4)}")
        lstore([f"buffer_store_dwordx4 {WR(8,4)}, {vQP}, {sWS}, 0 offen"])
        a(f"s_branch {Le}")
        a.label(Ls)
        a(f"s_waitcnt lgkmcnt(1)\n{MF} {WR(12,4)}, {WR(0,4)}, {WR(0,4)}, 0\n{MF} {WR(8,4)}, {AR(aWQ)}, {WR(0,4)}, 0")
        a(f"s_waitcnt lgkmcnt(0)\n{MF} {WR(12,4)}, {WR(4,4)}, {WR(4,4)}, {WR(12,4)}\n{MF} {WR(8,4)}, {AR(aWQ+4)}, {WR(4,4)}, {WR(8,4)}")
        lstore([f"buffer_store_dwordx4 {WR(8,4)}, {vQP}, {sWS}, 0 offen", f"buffer_store_dword {W(12)}, {vSP}, {sWS}, 0 offen offset:{H_ST['Q1']}"], GSEL)
        a.label(Le)
        stamp("qpub1")
        a(f"s_cmp_ge_u32 {sW}, 4\ns_cbranch_scc1 L_hiC1")
        c("waves 0-3: q = (sum of partials - mean * column sum) * rstd * log2(e) / sqrt(128)")
        s_, mu, ep = W(6), W(7), W(12)
        a(f"s_lshl_b32 {sOff}, {sB}, 9\nv_mov_b32 {ep}, {f32(1e-5)}\ns_waitcnt vmcnt(0)")
        poll(f"buffer_load_dwordx2 {WR(4,2)}, {vSG}, {sWS}, 0 offen offset:{H_ST['Q1']} sc1\n"
             f"buffer_load_dwordx4 {WR(0,4)}, {vQG}, {sWS}, {sOff} offen sc1", [W(k) for k in range(6)],
             f"s_waitcnt vmcnt(1)\nv_add_f32_dpp {s_}, {W(4)}, {W(4)} {LO8[0]} {DPP}\nv_add_f32_dpp {mu}, {W(5)}, {W(5)} {LO8[0]} {DPP}\ns_waitcnt vmcnt(0)")
        stamp("qgot1")
        a(f"v_add_f32_dpp {s_}, {s_}, {s_} {LO8[1]} {DPP}\nv_add_f32_dpp {mu}, {mu}, {mu} {LO8[1]} {DPP}")
        a(f"v_permlane32_swap_b32 {W(0)}, {W(1)}\nv_add_f32_dpp {s_}, {s_}, {s_} {LO8[2]} {DPP}\nv_add_f32_dpp {mu}, {mu}, {mu} {LO8[2]} {DPP}\nv_permlane32_swap_b32 {W(2)}, {W(3)}")
        a(f"v_add_f32 {W(0)}, {W(0)}, {W(1)}\nv_add_f32 {W(2)}, {W(2)}, {W(3)}")
        a(f"v_fmamk_f32 {s_}, {s_}, {f32(1/512)}, {ep}\nv_fma_f32 {s_}, -{mu}, {mu}, {s_}")
        a(f"v_permlane16_swap_b32 {W(0)}, {W(2)}\nv_add_f32 {W(0)}, {W(0)}, {W(2)}")
        a(f"v_max_f32 {s_}, {s_}, {ep}\nv_rsq_f32 {s_}, {s_}")
        a(f"v_add_f32_dpp {W(0)}, {W(0)}, {W(0)} row_ror:8 {DPP}\nv_mul_f32 {s_}, {f32(C2)}, {s_}")
        a(f"v_fma_f32 {W(0)}, -{mu}, {vCSQ}, {W(0)}\nv_mul_f32 {W(0)}, {W(0)}, {s_}")
        a(f"v_cvt_pk_bf16_f32 {W(0)}, {W(0)}, {W(0)}\nds_write_b16 {vQSW}, {W(0)}\ns_branch L_toC1")
        a.label("L_hiC1")
        ones4(40)
        a.label("L_toC1")
        a("s_waitcnt lgkmcnt(0)\ns_barrier")
        stamp("barC1")

    a.label("L_toC0")
    c("q is in LDS; wave 0's word carries the majority vote on the near copy")
    await4(2, 20)
    a(f"v_readfirstlane_b32 {sNear}, {W(20)}\ns_lshl_b32 {sT0}, {sXcc}, 11\ns_xor_b32 {sNear}, {sNear}, {sT0}\ns_and_b32 {sNear}, {sNear}, 8192")
    stamp("barC0")
    attention(0); wo_stage(0); ffn(0); q_stage()
    attention(1); wo_stage(1); ffn(1)
    c("================ output: WGs with g == j, wave 4+hl sums tile hl of chunk j ================")
    a(f"s_sub_u32 {sT0}, {sW}, 4\ns_cmp_lg_u32 {sT0}, {sHL}\ns_cbranch_scc1 L_fin")
    x_gather(3)
    a(f"buffer_store_dword {W(0)}, v0, {sOut}, 0 offen")
    a("s_branch L_fin" if stamps or pad else "s_endpgm")
    a.label("L_fin0")
    c("every WG has read the old tag long ago: wave 7 of WG 1 advances it")
    a(f"s_lshl_b32 {sT0}, s2, 3\ns_add_u32 {sT0}, {sT0}, {sW}\ns_cmp_lg_u32 {sT0}, 15\ns_cbranch_scc1 L_fin")
    a(f"v_mov_b32 {W(0)}, {sEp}\nbuffer_store_dword {W(0)}, {vL0}, {sWS}, 0 offen offset:{EPO} sc1")
    a.label("L_fin")
    if amp:
        if not stamps: stamp("end")
        if amp[0] == "start": a("s_mov_b32 s100, s96")
        a(f"s_cmp_lg_u32 {sW}, {stw}\ns_cbranch_scc1 L_end")
        a(f"s_sub_u32 s100, s101, s100\ns_min_u32 s100, s100, 3000\ns_mul_i32 s100, s100, {amp[2]}\ns_add_u32 s96, s96, s100")
    if pad:
        a.label("L_pad")
        a(f"s_memrealtime s[4:5]\ns_waitcnt lgkmcnt(0)\ns_sub_u32 s4, s4, s96\ns_cmp_lt_i32 s4, {pad*100}\ns_cbranch_scc1 L_pad")
    if stamps:
        stamp("end")
        a(f"s_cmp_lg_u32 {sW}, {stw}\ns_cbranch_scc1 L_end")
        a(f"s_lshl_b32 {sT0}, s2, 8\ns_add_u32 {sT0}, {sT0}, 0x10000000\ns_add_u32 s98, s98, {sT0}\ns_addc_u32 s99, s99, 0")
        a(f"v_lshlrev_b32 {W(0)}, 2, {vL}\nglobal_store_dword {W(0)}, {vST}, s[98:99]")
    a.label("L_end")
    a("s_endpgm")
    c("write-through versions of the group hand-off stores, taken when the group is spread over XCDs")
    for L, stores, pre in slow:
        a.label(L)
        a("s_nop 7")
        a(pre)
        for s_ in stores: a(s_ + " sc1")
        a(f"s_nop 1\ns_branch {L}r")
    return wrap(a.text(), 256, 512, LDS_SIZE, 256, 144, comment=DOC), nst[0]

if __name__ == "__main__":
    t, _ = gen(); open("k.s", "w").write(t)
    t, n = gen(stamps=True); open("ks.s", "w").write(t)
    for arg in sys.argv[1:]:
        name, kw = arg.split("=", 1)
        t, n2 = gen(**eval("dict(" + kw + ")")); open(name + ".s", "w").write(t)
    print("stamps", n)
```
